```python
import torch

def _softmax(x, axis=-1):
    return torch.softmax(x, dim=axis)
def _gelu(x):
    return torch.nn.functional.gelu(x, approximate="tanh")
def _silu(x):
    return torch.nn.functional.silu(x)
def _sigmoid(x):
    return torch.sigmoid(x)
def _layernorm(x, axis=-1, eps=1e-5):
    m = x.mean(dim=axis, keepdim=True)
    v = x.var(dim=axis, keepdim=True, unbiased=False)
    return (x - m) / torch.sqrt(v + eps)
def _scatter_add(tgt, idx, src, axis=0):
    return tgt.clone().index_add_(axis, idx, src)
def _segment_sum(src, seg, n):
    out = torch.zeros((n,) + src.shape[1:], dtype=src.dtype)
    return out.index_add_(0, seg, src)
def _pad(x, pw):
    flat = tuple(v for pair in reversed(pw) for v in pair)
    return torch.nn.functional.pad(x, flat)

kernel_name = 'interleave_layers__softmax_full_mha__mixer_channel_mlp__prompt'

def setup_inputs():

    _w = (lambda a: (lambda t: t.to(torch.bfloat16) if t.is_floating_point() else t)(torch.as_tensor(a)))
    def _A_setup():
        B, S, D = 1, 2048, 640
        return {
            "x": _w((lambda *s: torch.randn(*s, dtype=torch.bfloat16) * 0.05)(B, S, D)),
            "wqkv": _w((lambda *s: torch.randn(*s, dtype=torch.bfloat16) * 0.05)(D, 3 * D)),
            "wo": _w((lambda *s: torch.randn(*s, dtype=torch.bfloat16) * 0.05)(D, D)),
        }
    _A_in = _A_setup()

    def _B_setup():
        B, S, D, F = 1, 2048, 640, 1536
        return {
            "x": _w((lambda *s: torch.randn(*s, dtype=torch.bfloat16) * 0.05)(B, S, D)),
            "w1": _w((lambda *s: torch.randn(*s, dtype=torch.bfloat16) * 3.2)(D, F) * (D ** -0.5)),
            "b1": _w((lambda *s: torch.randn(*s, dtype=torch.bfloat16) * 0.8)(F)),
            "w2": _w((lambda *s: torch.randn(*s, dtype=torch.bfloat16) * 0.4)(F, D) * (F ** -0.5)),
            "b2": _w((lambda *s: torch.randn(*s, dtype=torch.bfloat16) * 0.4)(D)),
        }
    _B_in = _B_setup()

    return {
        "A_x": _A_in["x"],
        "A_wqkv": _A_in["wqkv"],
        "A_wo": _A_in["wo"],
        "B_x": _B_in["x"],
        "B_w1": _B_in["w1"],
        "B_b1": _B_in["b1"],
        "B_w2": _B_in["w2"],
        "B_b2": _B_in["b2"],
    }

def reference(A_x, A_wqkv, A_wo, B_x, B_w1, B_b1, B_w2, B_b2):
    def _A_ref(x, wqkv, wo):
        B, S, D = x.shape
        H = 32; Dh = D // H
        qkv = (lambda x, *d: x.permute(*d))((x @ wqkv).reshape(B, S, 3, H, Dh), 2, 0, 3, 1, 4)
        q, k, v = qkv[0], qkv[1], qkv[2]
        scale = Dh ** -0.5
        scores = torch.einsum("bhqd,bhkd->bhqk", q, k) * scale
        p = _softmax(scores, axis=-1)
        o = torch.einsum("bhqk,bhkd->bhqd", p, v)
        return (lambda x, *d: x.permute(*d))(o, 0, 2, 1, 3).reshape(B, S, D) @ wo

    def _B_ref(x, w1, b1, w2, b2):
        y = _layernorm(x, axis=-1)
        h = _gelu(torch.einsum("bsd,df->bsf", y, w1) + b1)
        return torch.einsum("bsf,fd->bsd", h, w2) + b2

    x = A_x
    x = x + _A_ref(_layernorm(x, axis=-1), A_wqkv, A_wo)
    x = x + _B_ref(_layernorm(x, axis=-1), B_w1, B_b1, B_w2, B_b2)
    x = x + _A_ref(_layernorm(x, axis=-1), A_wqkv, A_wo)
    x = x + _B_ref(_layernorm(x, axis=-1), B_w1, B_b1, B_w2, B_b2)
    return x
```

```python
import re


def v(i, n=1):
    return f"v{i}" if n == 1 else f"v[{i}:{i+n-1}]"


def s(i, n=1):
    return f"s{i}" if n == 1 else f"s[{i}:{i+n-1}]"


class Asm:
    def __init__(self):
        self.lines = []
        self.uid = 0

    def __call__(self, text):
        for ln in text.split("\n"):
            ln = ln.strip()
            if not ln:
                continue
            if ln.endswith(":") or ln.startswith("."):
                self.lines.append(ln)
            else:
                self.lines.append("    " + ln)

    def label(self, base):
        self.uid += 1
        return f"L_{base}_{self.uid}"

    def nop(self, n):
        while n > 0:
            k = min(n, 16)
            self(f"s_nop {k-1}")
            n -= k

    def text(self):
        return "\n".join(self.lines) + "\n"


_REG = re.compile(r"^(-|abs\(|\|)?([vsa])(\d+|\[(\d+):(\d+)\])")


def _regs(tok):
    tok = tok.strip()
    m = _REG.match(tok)
    if not m:
        if tok in ("vcc", "vcc_lo", "vcc_hi"):
            return {("s", "vcc")}
        if tok in ("exec", "exec_lo", "exec_hi"):
            return {("s", "exec")}
        if tok == "m0":
            return {("s", "m0")}
        return set()
    k = m.group(2)
    if m.group(4) is not None:
        return {(k, i) for i in range(int(m.group(4)), int(m.group(5)) + 1)}
    return {(k, int(m.group(3)))}


TRANS = ("v_exp_f32", "v_log_f32", "v_rcp_f32", "v_rsq_f32", "v_sqrt_f32", "v_sin_f32", "v_cos_f32")


def _passes(op):
    if "32x32x4_2b" in op or "32x32x2" in op:
        return 16
    if "32x32" in op:
        return 8
    if "16x16" in op:
        return 4
    return 16


class Ins:
    def __init__(self, text, lineno):
        self.text = text
        self.lineno = lineno
        t = text.split(";")[0].strip()
        parts = t.split(None, 1)
        self.op = parts[0]
        ops = []
        if len(parts) > 1:
            depth = 0
            cur = ""
            for ch in parts[1]:
                if ch in "[(":
                    depth += 1
                if ch in "])":
                    depth -= 1
                if ch == "," and depth == 0:
                    ops.append(cur.strip())
                    cur = ""
                else:
                    cur += ch
            ops.append(cur.strip())
        self.ops = [o.split()[0] if o and not o.startswith("hwreg") else o for o in ops]
        self.raw_ops = ops
        op = self.op
        self.is_mfma = op.startswith("v_mfma") or op.startswith("v_smfmac")
        self.is_valu = op.startswith("v_") and not self.is_mfma
        self.is_trans = any(op.startswith(x) for x in TRANS)
        self.is_vmem = op.startswith(("buffer_", "global_", "flat_"))
        self.is_ds = op.startswith("ds_")
        self.is_salu = op.startswith("s_")
        self.is_dot = op.startswith("v_dot")
        self.w = set()
        self.r = set()
        self.srcC = set()
        self.ab = set()
        o = self.ops
        if self.is_mfma:
            self.w = _regs(o[0])
            self.ab = _regs(o[1]) | _regs(o[2])
            if op.startswith("v_smfmac"):
                self.srcC = set(self.w)
                self.ab |= _regs(o[3])
            else:
                self.srcC = _regs(o[3])
            self.r = self.ab | self.srcC
            self.passes = _passes(op)
        elif self.is_valu:
            if op.startswith("v_cmp"):
                self.w = _regs(o[0])
                for x in o[1:]:
                    self.r |= _regs(x)
            elif op.startswith("v_permlane") and "swap" in op:
                self.w = _regs(o[0]) | _regs(o[1])
                self.r = set(self.w)
            elif op.startswith(("v_add_co", "v_sub_co", "v_addc_co", "v_subb_co", "v_mad_u64")):
                self.w = _regs(o[0]) | _regs(o[1])
                for x in o[2:]:
                    self.r |= _regs(x)
            else:
                self.w = _regs(o[0])
                for x in o[1:]:
                    self.r |= _regs(x)
                if op.startswith(("v_fmac", "v_dot2c", "v_pk_fmac", "v_writelane")) or "dpp" in text or "row_" in text or "quad_perm" in text:
                    self.r |= self.w
                if op.startswith("v_cndmask") and len(o) == 3:
                    self.r |= {("s", "vcc")}
        elif self.is_vmem:
            lds = " lds" in text
            if "load" in op and not lds:
                self.w = _regs(o[0])
                for x in o[1:]:
                    self.r |= _regs(x)
            else:
                for x in o:
                    self.r |= _regs(x)
                if lds:
                    self.r |= {("s", "m0")}
                if "atomic" in op and " sc0" in text:
                    self.w = _regs(o[0])
            self.lds_dma = lds
        elif self.is_ds:
            if "read" in op or "bpermute" in op or "swizzle" in op or "permute" in op:
                self.w = _regs(o[0])
                for x in o[1:]:
                    self.r |= _regs(x)
            else:
                for x in o:
                    self.r |= _regs(x)
        elif self.is_salu:
            if op.startswith(("s_cmp", "s_cbranch", "s_branch", "s_waitcnt", "s_barrier", "s_nop", "s_endpgm", "s_setprio", "s_sleep", "s_bitcmp")):
                for x in o:
                    self.r |= _regs(x)
            else:
                if o:
                    self.w = _regs(o[0])
                for x in o[1:]:
                    self.r |= _regs(x)
                if "saveexec" in op:
                    self.w |= {("s", "exec")}
        self.states = 1
        if op == "s_nop":
            self.states = int(o[0], 0) + 1


def _need(p, c):
    best = (0, "")

    def up(n, why):
        nonlocal best
        if n > best[0]:
            best = (n, why)

    vw = {x for x in p.w if x[0] in "va"}
    sw = {x for x in p.w if x[0] == "s"}
    if p.is_mfma:
        k = {2: 0, 4: 1, 8: 2, 16: 3}[p.passes]
        if c.is_mfma:
            if p.w & c.ab:
                up((5, 8, 12, 20)[k], "mfma D->mfma A/B")
            if p.w & c.srcC:
                if p.w == c.srcC and p.passes == c.passes:
                    pass
                else:
                    up((4, 6, 10, 18)[k], "mfma D->mfma C overlap")
            elif p.w & c.w:
                up((4, 6, 10, 18)[k], "mfma D->mfma D WAW")
        else:
            if (c.is_valu or c.is_vmem or c.is_ds) and (p.w & (c.r | c.w)):
                up((5, 8, 12, 20)[k], "mfma D->valu/mem")
            if c.is_valu and (p.srcC & c.w):
                up((1, 3, 7, 15)[k], "mfma C WAR valu")
    if p.is_valu:
        if c.is_mfma and (vw & c.r):
            up(2, "valu->mfma")
        if p.is_trans and c.is_valu and not c.is_trans and (vw & c.r):
            up(1, "trans->valu")
        if p.is_dot and (c.is_valu or c.is_mfma or c.is_vmem or c.is_ds) and (vw & (c.r | c.w)):
            if c.op == p.op and not (vw & (_regs(c.ops[1]) | _regs(c.ops[2]))):
                pass
            else:
                up(3, "dot->other")
        if c.op.startswith(("v_readfirstlane", "v_readlane")) and (vw & c.r):
            up(1, "valu->readlane")
        if c.op.startswith("v_permlane") and (vw & c.r):
            up(2, "valu->permlane")
        if c.is_valu and ("dpp" in c.text or "row_" in c.text or "quad_perm" in c.text) and (vw & c.r):
            up(2, "valu->dpp")
        if sw:
            if c.is_vmem and (sw & c.r):
                up(5, "valu sgpr->vmem")
            if c.is_valu and (sw & c.r):
                up(2, "valu sgpr->valu")
            if c.op.startswith(("v_readlane", "v_writelane")) and (sw & c.r):
                up(4, "valu sgpr->lane sel")
    if p.is_salu and ("s", "m0") in p.w:
        if (c.is_vmem and getattr(c, "lds_dma", False)):
            up(1, "m0->lds dma")
    if p.is_vmem and "store" in p.op and ("x3" in p.op or "x4" in p.op):
        data = _regs(p.ops[0]) if p.op.startswith("buffer") else _regs(p.ops[1])
        if c.is_valu and (data & c.w):
            up(2, "wide store WAR")
        elif (c.is_vmem or c.is_ds or c.is_mfma) and (data & c.w):
            up(1, "wide store WAR")
    return best


def check_hazards(text, window=24):
    lines = text.split("\n")
    ins = []
    labels = {}
    for n, ln in enumerate(lines, 1):
        t = ln.split(";")[0].strip()
        if not t or t.startswith("."):
            continue
        if t.endswith(":"):
            labels[t[:-1]] = len(ins)
            continue
        ins.append(Ins(t, n))
    probs = []

    def succ(i):
        I = ins[i]
        if I.op == "s_endpgm":
            return []
        if I.op == "s_branch":
            return [labels[I.ops[0]]]
        if I.op.startswith("s_cbranch"):
            return [labels[I.ops[0]], i + 1]
        if I.op.startswith("s_setpc"):
            return []
        return [i + 1]

    for i, P in enumerate(ins):
        if not (P.is_mfma or P.is_valu or (P.is_salu and ("s", "m0") in P.w) or (P.is_vmem and "store" in P.op)):
            continue
        lim = 20 if P.is_mfma else 5
        stack = [(j, 0) for j in succ(i)]
        seen = {}
        while stack:
            j, d = stack.pop()
            if j >= len(ins) or d >= lim:
                continue
            if j in seen and seen[j] <= d:
                continue
            seen[j] = d
            C = ins[j]
            n, why = _need(P, C)
            if n > d:
                probs.append(f"line {P.lineno} [{P.text}] -> line {C.lineno} [{C.text}]: need {n} have {d} ({why})")
            for k in succ(j):
                stack.append((k, d + C.states))
    return probs
```

```python
import math
import struct
import sys
from asmlib import Asm, v, s, check_hazards

NAME = "interleave_layers__softmax_full_mha__mixer_channel_mlp__prompt"

WOT = 0x000000
W1T = 0x100000
W2T = 0x300000
WQT = 0x500000
CSQ = 0x780000
CS1 = CSQ + 0x2000
B1F = CSQ + 0x4000
XB = [0x800000, 0xB00000, 0xE00000, 0x1100000]
STB = [0x1400000 + i * 0x20000 for i in range(4)]
KVB = [0x1500000, 0x1A00000]
QB = [0x1F00000, 0x2180000]
OB = [0x2400000, 0x2680000]
HB = [0x2900000, 0x2F00000]
WS_END = 0x3510000

EPS = 1e-5
QSCALE = (20 ** -0.5) * math.log2(math.e)


def fhex(x):
    return "0x%08x" % struct.unpack("<I", struct.pack("<f", x))[0]


def magic(d):
    return (2 ** 32 + d - 1) // d


S_WS = 4
S_A = 8
S_B = 12
S_C = 16
S_W = 20
S_DBG = 92

PROFILE = False


def load_srd(a, dst, slot, nbytes):
    a(f"s_load_dwordx2 {s(dst,2)}, s[0:1], {slot*8}")
    a(f"s_mov_b32 {s(dst+2)}, {nbytes}")
    a(f"s_mov_b32 {s(dst+3)}, 0x00020000")


def kernel_head(a, name, nwg, srds):
    a(f".globl {name}")
    a(".p2align 8")
    a(f".type {name},@function")
    a(f"{name}:")
    end = f"L_end_{name}"
    if PROFILE:
        a("s_memrealtime s[96:97]")
    a(f"s_cmp_ge_u32 s2, {nwg}")
    a(f"s_cbranch_scc1 {end}")
    load_srd(a, S_WS, 10, WS_END)
    for dst, slot, nbytes in srds:
        load_srd(a, dst, slot, nbytes)
    a("v_lshrrev_b32 v1, 6, v0")
    a("v_and_b32 v0, 63, v0")
    a(f"v_readfirstlane_b32 {s(S_W)}, v1")
    a("s_waitcnt lgkmcnt(0)")
    return end


def kernel_tail(a, name, kidx=0):
    if PROFILE:
        lab = a.label("noprof")
        a("s_waitcnt vmcnt(0) lgkmcnt(0)")
        a(f"s_cmp_lg_u32 {s(S_W)}, 0")
        a(f"s_cbranch_scc1 {lab}")
        a("s_memrealtime s[98:99]")
        a("s_waitcnt lgkmcnt(0)")
        a("v_mov_b32 v2, s96")
        a("v_mov_b32 v3, s98")
        a("s_lshl_b32 s21, s2, 3")
        a(f"s_add_u32 s21, s21, {WS_END - 0x10000 + kidx*2048}")
        a("v_mov_b32 v1, 0")
        a("s_mov_b64 exec, 1")
        a(f"buffer_store_dwordx2 v[2:3], v1, {s(S_WS,4)}, s21 offen")
        a(f"{lab}:")
    a(f"L_end_{name}:")
    a("s_endpgm")


def descriptor(name, vgpr=256, sgpr=102):
    return f""".amdhsa_kernel {name}
  .amdhsa_next_free_vgpr {vgpr}
  .amdhsa_next_free_sgpr {sgpr}
  .amdhsa_accum_offset {vgpr}
  .amdhsa_group_segment_fixed_size 0
  .amdhsa_kernarg_size 88
  .amdhsa_user_sgpr_count 2
  .amdhsa_user_sgpr_kernarg_segment_ptr 1
  .amdhsa_system_sgpr_workgroup_id_x 1
  .amdhsa_float_denorm_mode_32 3
  .amdhsa_float_denorm_mode_16_64 3
.end_amdhsa_kernel
"""


def sum_xor32(a, r, t):
    a(f"v_mov_b32 {v(t)}, {v(r)}")
    a.nop(2)
    a(f"v_permlane32_swap_b32 {v(r)}, {v(t)}")
    a(f"v_add_f32 {v(r)}, {v(r)}, {v(t)}")


def sum_xor16(a, r, t):
    a(f"v_mov_b32 {v(t)}, {v(r)}")
    a.nop(2)
    a(f"v_permlane16_swap_b32 {v(r)}, {v(t)}")
    a(f"v_add_f32 {v(r)}, {v(r)}, {v(t)}")


def gen_prep(a):
    name = "prep_kernel"
    kernel_head(a, name, 256, [(8, 0, 2621440), (12, 1, 2457600), (16, 2, 819200), (24, 4, 1966080),
                               (28, 6, 1966080), (32, 5, 3072)])
    a(f"s_lshl_b32 s21, s2, 3")
    a(f"s_add_u32 s21, s21, {s(S_W)}")
    a(f"s_lshl_b32 s22, {s(S_W)}, 12")
    done = f"L_done_{name}"

    def piece(srd, RS, nfb, typ, perm, outbase, nks, ntile):
        a(f"s_mov_b32 s36, {magic(nfb)}")
        a("s_mul_hi_u32 s37, s23, s36")
        a(f"s_mul_i32 s38, s37, {nfb}")
        a("s_sub_u32 s38, s23, s38")
        a(f"s_mul_i32 s39, s37, {32*RS}")
        a("s_lshl_b32 s40, s38, 7")
        a("s_add_u32 s39, s39, s40")
        a("v_lshrrev_b32 v2, 3, v0")
        a(f"s_mov_b32 s41, {RS}")
        a("v_mul_lo_u32 v2, v2, s41")
        a("v_and_b32 v3, 7, v0")
        a("v_lshl_add_u32 v2, v3, 4, v2")
        for j in range(4):
            a(f"s_add_u32 m0, s22, {j*1024}")
            a(f"s_add_u32 s42, s39, {8*j*RS}")
            a(f"buffer_load_dwordx4 v2, {s(srd,4)}, s42 offen lds")
        a("v_lshrrev_b32 v4, 4, v0")
        a("v_bfe_u32 v5, v0, 2, 2")
        a("v_and_b32 v6, 3, v0")
        if typ == 16:
            if perm:
                a("v_lshrrev_b32 v7, 1, v4")
                a("v_lshlrev_b32 v7, 4, v7")
                a("v_and_b32 v8, 1, v4")
                a("v_lshl_add_u32 v7, v8, 2, v7")
                second = 8
            else:
                a("v_lshlrev_b32 v7, 3, v4")
                second = 4
            a("v_add_u32 v7, v7, v5")
            a("v_lshlrev_b32 v7, 7, v7")
            a("v_lshl_add_u32 v7, v6, 3, v7")
            frs = [(ft * 32, ft, 0) for ft in range(4)]
        else:
            a("v_lshrrev_b32 v7, 1, v4")
            a("v_lshlrev_b32 v7, 3, v7")
            a("v_add_u32 v7, v7, v5")
            a("v_lshlrev_b32 v7, 7, v7")
            a("v_lshl_add_u32 v7, v6, 3, v7")
            a("v_and_b32 v8, 1, v4")
            a("v_lshl_add_u32 v7, v8, 5, v7")
            second = 4
            frs = [(ks * 16 * 128 + ft * 64, ft, ks) for ft in range(2) for ks in range(2)]
        a("v_add_u32 v7, s22, v7")
        a("v_lshlrev_b32 v9, 4, v0")
        a("s_waitcnt vmcnt(0)")
        for i, (off, ft, ks) in enumerate(frs):
            a(f"ds_read_b64_tr_b16 {v(12+4*i,2)}, v7 offset:{off}")
            a(f"ds_read_b64_tr_b16 {v(14+4*i,2)}, v7 offset:{off+second*128}")
        a(f"s_mov_b32 s36, {magic(ntile)}")
        for i, (off, ft, ks) in enumerate(frs):
            if typ == 16:
                a(f"s_lshl_b32 s43, s38, 2")
                a(f"s_add_u32 s43, s43, {ft}")
                a(f"s_mov_b32 s45, s37")
            else:
                a(f"s_lshl_b32 s43, s38, 1")
                a(f"s_add_u32 s43, s43, {ft}")
                a(f"s_lshl_b32 s45, s37, 1")
                a(f"s_add_u32 s45, s45, {ks}")
            a("s_mul_hi_u32 s44, s43, s36")
            a(f"s_mul_i32 s46, s44, {ntile}")
            a("s_sub_u32 s46, s43, s46")
            a(f"s_mul_i32 s44, s44, {nks}")
            a("s_add_u32 s44, s44, s45")
            a(f"s_mul_i32 s44, s44, {ntile}")
            a("s_add_u32 s44, s44, s46")
            a("s_lshl_b32 s44, s44, 10")
            a(f"s_add_u32 s44, s44, {outbase}")
            a(f"s_waitcnt lgkmcnt({2*(3-i)})")
            a(f"buffer_store_dwordx4 {v(12+4*i,4)}, v9, {s(S_WS,4)}, s44 offen")
        a(f"s_branch {done}")

    bounds = [(200, 16, 1280, 10, 16, False, WOT, 20, 5), (480, 28, 1280, 10, 16, True, W2T, 48, 5),
              (480, 24, 3072, 24, 32, False, W1T, 40, 3), (600, 12, 3840, 30, 32, False, WQT, 40, 4)]
    lo = 0
    for cnt, srd, RS, nfb, typ, perm, outbase, nks, ntile in bounds:
        nxt = a.label("nextjob")
        a(f"s_cmp_ge_u32 s21, {lo+cnt}")
        a(f"s_cbranch_scc1 {nxt}")
        a(f"s_sub_u32 s23, s21, {lo}")
        piece(srd, RS, nfb, typ, perm, outbase, nks, ntile)
        a(f"{nxt}:")
        lo += cnt
    nxt = a.label("nextjob")
    a(f"s_cmp_ge_u32 s21, {lo+64}")
    a(f"s_cbranch_scc1 {nxt}")
    a(f"s_sub_u32 s23, s21, {lo}")
    a("v_and_b32 v2, 31, v0")
    a("s_movk_i32 s41, 1280")
    a("v_mul_lo_u32 v3, v2, s41")
    a("v_lshrrev_b32 v4, 5, v0")
    a("v_lshl_add_u32 v3, v4, 4, v3")
    a(f"s_mul_i32 s39, s23, {32*1280}")
    for k in range(40):
        a(f"buffer_load_dwordx4 {v(16+4*k,4)}, v3, s[8:11], s39 offen offset:{32*k}")
    a("v_mov_b32 v8, 0")
    a("v_mov_b32 v9, 0")
    a("v_mov_b32 v10, 0")
    a("v_mov_b32 v11, 0")
    a("v_mov_b32 v12, 0x3f803f80")
    a("v_lshlrev_b32 v5, 4, v0")
    a(f"s_add_u32 s40, s39, {XB[0]}")
    for k in range(40):
        a("s_waitcnt vmcnt(39)")
        for j in range(4):
            a(f"v_dot2_f32_bf16 v8, {v(16+4*k+j)}, v12, v8")
            a(f"v_dot2_f32_bf16 v9, {v(16+4*k+j)}, {v(16+4*k+j)}, v9")
        a(f"s_add_u32 s42, s40, {k*1024}")
        a(f"buffer_store_dwordx4 {v(16+4*k,4)}, v5, {s(S_WS,4)}, s42 offen")
    a.nop(3)
    sum_xor32(a, 8, 13)
    sum_xor32(a, 9, 13)
    a("v_cmp_gt_u32 vcc, 32, v0")
    a.nop(2)
    a("v_cndmask_b32 v8, 0, v8, vcc")
    a("v_cndmask_b32 v9, 0, v9, vcc")
    a("v_lshlrev_b32 v6, 6, v2")
    a("v_lshl_add_u32 v6, v4, 5, v6")
    a("s_lshl_b32 s42, s23, 11")
    a(f"s_add_u32 s42, s42, {STB[0]}")
    a(f"buffer_store_dwordx4 v[8:11], v6, {s(S_WS,4)}, s42 offen")
    a("v_mov_b32 v16, 0")
    a("v_mov_b32 v17, 0")
    a("v_mov_b32 v18, 0")
    a("v_mov_b32 v19, 0")
    a(f"buffer_store_dwordx4 v[16:19], v6, {s(S_WS,4)}, s42 offen offset:16")
    a(f"s_branch {done}")
    a(f"{nxt}:")
    lo += 64

    def colsum(srd, RS, outbase, bias):
        a("v_lshrrev_b32 v2, 3, v0")
        a(f"s_mov_b32 s41, {RS}")
        a("v_mul_lo_u32 v2, v2, s41")
        a("v_and_b32 v3, 7, v0")
        a("v_lshl_add_u32 v2, v3, 4, v2")
        a("s_lshl_b32 s39, s23, 7")
        for j in range(8):
            a(f"v_mov_b32 {v(4+j)}, 0")
        a("v_mov_b32 v12, 0x00003f80")
        a("v_mov_b32 v13, 0x3f800000")
        for b in range(2):
            for i in range(40):
                a(f"s_add_u32 s42, s39, {(b*40+i)*8*RS}")
                a(f"buffer_load_dwordx4 {v(16+4*i,4)}, v2, {s(srd,4)}, s42 offen")
            for i in range(40):
                a(f"s_waitcnt vmcnt({39-i})")
                for j in range(4):
                    a(f"v_dot2_f32_bf16 {v(4+2*j)}, {v(16+4*i+j)}, v12, {v(4+2*j)}")
                    a(f"v_dot2_f32_bf16 {v(5+2*j)}, {v(16+4*i+j)}, v13, {v(5+2*j)}")
        a.nop(3)
        for j in range(8):
            a(f"v_add_f32_dpp {v(4+j)}, {v(4+j)}, {v(4+j)} row_ror:8 row_mask:0xf bank_mask:0xf")
        for j in range(8):
            sum_xor16(a, 4 + j, 14)
            sum_xor32(a, 4 + j, 14)
        a("v_lshlrev_b32 v15, 5, v3")
        a("s_lshl_b32 s42, s23, 8")
        a(f"s_add_u32 s42, s42, {outbase}")
        a("s_mov_b64 exec, 0xff")
        a(f"buffer_store_dwordx4 v[4:7], v15, {s(S_WS,4)}, s42 offen")
        a(f"buffer_store_dwordx4 v[8:11], v15, {s(S_WS,4)}, s42 offen offset:16")
        a("s_mov_b64 exec, -1")
        if bias:
            a("v_lshlrev_b32 v16, 1, v0")
            a(f"buffer_load_ushort v17, v16, s[32:35], s39 offen")
            a("v_lshlrev_b32 v16, 2, v0")
            a(f"s_add_u32 s42, s42, {B1F-CS1}")
            a("s_waitcnt vmcnt(0)")
            a("v_lshlrev_b32 v17, 16, v17")
            a(f"buffer_store_dword v17, v16, {s(S_WS,4)}, s42 offen")
        a(f"s_branch {done}")

    for cnt, srd, RS, outbase, bias in ((30, 12, 3840, CSQ, False), (24, 24, 3072, CS1, True)):
        nxt = a.label("nextjob")
        a(f"s_cmp_ge_u32 s21, {lo+cnt}")
        a(f"s_cbranch_scc1 {nxt}")
        a(f"s_sub_u32 s23, s21, {lo}")
        colsum(srd, RS, outbase, bias)
        a(f"{nxt}:")
        lo += cnt
    a(f"{done}:")
    kernel_tail(a, name, 0)
    return name


def helper_stream(a, s_src, nchunk, per_wave, nslot, lead, extra_barriers=0):
    CB = 4 * per_wave * 1024
    a("v_lshlrev_b32 v2, 4, v0")
    a(f"s_sub_u32 s22, {s(S_W)}, 4")
    a(f"s_mul_i32 s22, s22, {per_wave*1024}")
    a(f"s_add_u32 s23, {s(s_src)}, s22")
    issued = []

    def issue(c):
        for j in range(per_wave):
            a(f"s_add_u32 m0, s22, {(c % nslot)*CB + j*1024}")
            a(f"s_add_u32 s24, s23, {c*CB + j*1024}")
            a(f"buffer_load_dwordx4 v2, {s(S_WS,4)}, s24 offen lds")
        issued.append(c)

    for c in range(min(nslot, nchunk)):
        issue(c)
    for c in range(nchunk):
        after = len(issued) - 1 - issued.index(c)
        a(f"s_waitcnt vmcnt({after*per_wave})")
        a("s_barrier")
        cn = c + nslot - lead
        if cn >= nslot and cn < nchunk:
            issue(cn)
    for _ in range(extra_barriers):
        a("s_barrier")


def ln_stats(a, r, double, qs=None):
    a(f"v_add_f32 {v(r)}, {v(r)}, {v(r+2)}")
    a(f"v_add_f32 {v(r+1)}, {v(r+1)}, {v(r+3)}")
    a(f"v_add_f32 {v(r+4)}, {v(r+4)}, {v(r+6)}")
    a(f"v_add_f32 {v(r+5)}, {v(r+5)}, {v(r+7)}")
    a(f"v_add_f32 {v(r)}, {v(r)}, {v(r+4)}")
    a(f"v_add_f32 {v(r+1)}, {v(r+1)}, {v(r+5)}")
    sum_xor32(a, r, r + 2)
    sum_xor32(a, r + 1, r + 3)
    a(f"v_mul_f32 {v(r)}, {fhex(1/640)}, {v(r)}")
    a(f"v_mul_f32 {v(r+1)}, {fhex(1/640)}, {v(r+1)}")
    a(f"v_fma_f32 {v(r+1)}, -{v(r)}, {v(r)}, {v(r+1)}")
    a(f"v_max_f32 {v(r+1)}, 0, {v(r+1)}")
    a(f"v_add_f32 {v(r+2)}, {fhex(EPS)}, {v(r+1)}")
    a(f"v_rsq_f32 {v(r+2)}, {v(r+2)}")
    a.nop(1)
    if double:
        a(f"v_mul_f32 {v(r+3)}, {v(r+2)}, {v(r+2)}")
        a(f"v_mul_f32 {v(r+3)}, {v(r+3)}, {v(r+1)}")
        a(f"v_add_f32 {v(r+3)}, {fhex(EPS)}, {v(r+3)}")
        a(f"v_rsq_f32 {v(r+3)}, {v(r+3)}")
        a.nop(1)
        a(f"v_mul_f32 {v(r+1)}, {v(r+2)}, {v(r+3)}")
    else:
        a(f"v_mov_b32 {v(r+1)}, {v(r+2)}")


G_ACC = 64
G_WB = 128
G_AW = 160
G_NW = 24


def gemm32_main(a, NT, nslot, swap, s_act, extra_loads):
    CB = 4 * NT * 1024
    loads = ["st0", "st1"]

    def act_load(k):
        a(f"s_add_u32 s24, {s(s_act)}, {k*1024}")
        a(f"buffer_load_dwordx4 {v(G_AW + 4*(k % G_NW), 4)}, v2, {s(S_WS,4)}, s24 offen")
        loads.append(("a", k))

    def wread(k, t):
        c = k // 4
        off = (c % nslot) * CB + ((k % 4) * NT + t) * 1024
        base = 2 if off < 65536 else (3 if off < 131072 else 4)
        a(f"ds_read_b128 {v(G_WB + 16*(k & 1) + 4*t, 4)}, {v(base)} offset:{off % 65536}")

    for k in range(G_NW):
        act_load(k)
    yield "prologue"
    a("v_add_u32 v3, 0x10000, v2")
    a("v_add_u32 v4, 0x20000, v2")
    a("s_barrier")
    for t in range(NT):
        wread(0, t)
    ex = list(extra_loads)
    for k in range(40):
        after = len(loads) - 1 - loads.index(("a", k))
        last = (k == 39)
        bar = (k % 4 == 3) and not last
        for t in range(NT):
            if t == 0:
                a(f"s_waitcnt vmcnt({after}) lgkmcnt({NT-1})")
            else:
                a(f"s_waitcnt lgkmcnt({NT-1 if not last else NT-1-t})")
            A_ = v(G_WB + 16 * (k & 1) + 4 * t, 4)
            B_ = v(G_AW + 4 * (k % G_NW), 4)
            if swap:
                A_, B_ = B_, A_
            D_ = v(G_ACC + 16 * t, 16)
            a(f"v_mfma_f32_32x32x16_bf16 {D_}, {A_}, {B_}, {D_ if k else 0}")
            if not last:
                if bar and t == 0:
                    a("s_barrier")
                wread(k + 1, t)
        if k + G_NW < 40:
            act_load(k + G_NW)
        elif ex:
            f = ex.pop(0)
            f(G_AW + 4 * (k % G_NW))
            loads.append(("x", k))
    assert not ex
    yield "done"


def gen_qkv(a, layer):
    name = f"qkv{layer}_kernel"
    kernel_head(a, name, 256, [])
    X = XB[2 * layer]
    ST = STB[2 * layer]
    a("s_and_b32 s21, s2, 7")
    a("s_lshr_b32 s25, s2, 3")
    a(f"s_cmp_ge_u32 s25, 30")
    a(f"s_cbranch_scc1 L_end_{name}")
    a("s_cmp_ge_u32 s25, 15")
    a("s_cselect_b32 s26, 1, 0")
    a("s_mul_i32 s27, s26, 15")
    a("s_sub_u32 s27, s25, s27")
    a(f"s_mul_i32 s28, s27, {160*1024}")
    a(f"s_add_u32 s28, s28, {WQT}")
    comp = a.label("comp")
    fin = a.label("fin")
    a(f"s_cmp_lt_u32 {s(S_W)}, 4")
    a(f"s_cbranch_scc1 {comp}")
    helper_stream(a, 28, 10, 4, 9, 2)
    a(f"s_branch {fin}")
    a(f"{comp}:")
    a("s_lshl_b32 s29, s21, 3")
    a("s_lshl_b32 s30, s26, 2")
    a("s_add_u32 s29, s29, s30")
    a(f"s_add_u32 s29, s29, {s(S_W)}")
    a(f"s_mul_i32 s30, s29, {40*1024}")
    a(f"s_add_u32 s30, s30, {X}")
    a("v_lshlrev_b32 v2, 4, v0")
    a("v_and_b32 v5, 31, v0")
    a("v_lshrrev_b32 v6, 5, v0")
    a("v_lshlrev_b32 v7, 6, v5")
    a("v_lshl_add_u32 v7, v6, 5, v7")
    a("s_lshl_b32 s31, s29, 11")
    a(f"s_add_u32 s31, s31, {ST}")
    a(f"buffer_load_dwordx4 v[8:11], v7, {s(S_WS,4)}, s31 offen")
    a(f"buffer_load_dwordx4 v[12:15], v7, {s(S_WS,4)}, s31 offen offset:16")
    a("s_lshl_b32 s32, s27, 9")
    a(f"s_add_u32 s32, s32, {CSQ}")
    a("s_lshr_b32 s33, s29, 1")
    a("s_and_b32 s34, s29, 1")
    vpath = a.label("vpath")
    a("s_cmp_ge_u32 s27, 10")
    a(f"s_cbranch_scc1 {vpath}")

    cs = {}

    def mk_cs(i):
        def f(reg):
            cs[i] = reg
            a(f"buffer_load_dwordx4 {v(reg,4)}, v16, {s(S_WS,4)}, s32 offen offset:{(i//4)*128 + (i%4)*32}")
        return f

    g = gemm32_main(a, 4, 9, False, 30, [mk_cs(i) for i in range(16)])
    next(g)
    a("v_lshlrev_b32 v16, 4, v6")
    a("s_cmp_ge_u32 s27, 5")
    a("s_cselect_b32 s35, 5, 0")
    a("s_sub_u32 s35, s27, s35")
    a("s_mov_b32 s36, 81920")
    a("s_cmp_ge_u32 s27, 5")
    a(f"s_cselect_b32 s36, 163840, s36")
    a(f"s_mov_b32 s37, {KVB[layer]}")
    a(f"s_mov_b32 s38, {QB[layer]}")
    a("s_cselect_b32 s37, s37, s38")
    a(f"s_cselect_b32 s39, 1.0, {fhex(QSCALE)}")
    a("v_and_b32 v17, 0x13, v5")
    a("v_and_b32 v18, 4, v5")
    a("v_lshl_or_b32 v17, v18, 1, v17")
    a("v_and_b32 v18, 8, v5")
    a("v_lshrrev_b32 v18, 1, v18")
    a("v_or_b32 v17, v17, v18")
    a("s_cselect_b32 s40, -1, 0")
    a("s_cselect_b32 s41, -1, 0")
    a("v_cndmask_b32 v17, v5, v17, s[40:41]")
    a("s_mul_i32 s42, s33, 5120")
    a("s_lshl_b32 s43, s34, 10")
    a("s_add_u32 s43, s43, s42")
    a("s_lshl_b32 s44, s34, 8")
    a("s_add_u32 s44, s44, s42")
    a("s_add_u32 s44, s44, 1024")
    a("s_mul_i32 s45, s29, 1280")
    a("s_cmp_ge_u32 s27, 5")
    a("s_cselect_b32 s43, s43, s45")
    a("s_cselect_b32 s44, s44, s45")
    a("v_lshlrev_b32 v18, 4, v17")
    a("v_add_u32 v18, s43, v18")
    a("v_lshlrev_b32 v19, 3, v17")
    a("v_add_u32 v19, s44, v19")
    a("s_lshl_b32 s46, s35, 5")
    a("s_mov_b32 s47, 52429")
    for i in range(16):
        a(f"s_add_u32 s48, s46, {2*i}")
        a("v_add_u32 v20, s48, v6")
        a("v_mul_u32_u24 v21, s47, v20")
        a("v_lshrrev_b32 v21, 18, v21")
        a("v_mul_u32_u24 v22, 5, v21")
        a("v_sub_u32 v22, v20, v22")
        a("v_cmp_eq_u32 vcc, 4, v22")
        a("v_mul_lo_u32 v21, v21, s36")
        a("v_lshrrev_b32 v23, 1, v22")
        a("v_cndmask_b32 v20, v18, v19, vcc")
        a("v_lshl_add_u32 v21, v23, 9, v21")
        a("v_and_b32 v22, 1, v22")
        a("v_lshl_add_u32 v21, v22, 3, v21")
        a(f"v_add_u32 {v(32+i)}, v21, v20")
    next(g)
    ln_stats(a, 8, False)
    a("v_mul_f32 v9, s39, v9")
    a("v_sub_f32 v10, 0, v8")
    a("v_mov_b32 v11, v10")
    a("v_mov_b32 v8, v9")
    a("s_waitcnt vmcnt(0)")
    for i in range(16):
        r = G_ACC + 4 * i
        for p in range(2):
            a(f"v_pk_fma_f32 {v(r+2*p,2)}, {v(cs[i]+2*p,2)}, v[10:11], {v(r+2*p,2)}")
        for p in range(2):
            a(f"v_pk_mul_f32 {v(r+2*p,2)}, {v(r+2*p,2)}, v[8:9]")
        a(f"v_cvt_pk_bf16_f32 {v(r)}, {v(r)}, {v(r+1)}")
        a(f"v_cvt_pk_bf16_f32 {v(r+1)}, {v(r+2)}, {v(r+3)}")
        a(f"buffer_store_dwordx2 {v(r,2)}, {v(32+i)}, {s(S_WS,4)}, s37 offen")
    a(f"s_branch {fin}")

    a(f"{vpath}:")
    csv = {}

    def mk_csv(i):
        def f(reg):
            csv[i] = reg
            a(f"buffer_load_dword {v(reg)}, v16, {s(S_WS,4)}, s32 offen offset:{i*128}")
        return f

    g = gemm32_main(a, 4, 9, True, 30, [mk_csv(i) for i in range(4)])
    next(g)
    a("v_lshlrev_b32 v16, 2, v5")
    a("s_sub_u32 s35, s27, 10")
    a("s_lshl_b32 s46, s35, 7")
    a("s_mul_i32 s42, s33, 5120")
    a("s_mul_i32 s43, s34, 1280")
    a("s_add_u32 s42, s42, s43")
    a(f"s_add_u32 s42, s42, {2560 + KVB[layer]}")
    a("s_mov_b32 s47, 52429")
    a("s_mov_b32 s36, 163840")
    a("v_mul_u32_u24 v17, 320, v6")
    for t in range(4):
        a(f"s_add_u32 s48, s46, {32*t}")
        a("v_add_u32 v20, s48, v5")
        a("v_mul_u32_u24 v21, s47, v20")
        a("v_lshrrev_b32 v21, 20, v21")
        a("v_mul_u32_u24 v22, 20, v21")
        a("v_sub_u32 v22, v20, v22")
        a("v_mul_lo_u32 v21, v21, s36")
        a("v_lshl_add_u32 v21, v22, 4, v21")
        a(f"v_add_u32 {v(32+t)}, v21, v17")
    next(g)
    ln_stats(a, 8, False)
    a("v_mul_f32 v8, v8, v9")
    a("v_sub_f32 v8, 0, v8")
    a(f"s_lshl_b32 s49, {s(S_W)}, 8")
    a(f"s_add_u32 s49, s49, {144*1024}")
    a("v_lshlrev_b32 v10, 2, v5")
    a("v_add_u32 v10, s49, v10")
    a("ds_write_b32 v10, v9")
    a("ds_write_b32 v10, v8 offset:128")
    a("v_lshlrev_b32 v11, 4, v6")
    a("v_add_u32 v11, s49, v11")
    a("s_waitcnt lgkmcnt(0)")
    RR = G_WB
    for gq in range(4):
        a(f"ds_read_b128 {v(RR+4*gq,4)}, v11 offset:{32*gq}")
        a(f"ds_read_b128 {v(RR+16+4*gq,4)}, v11 offset:{128+32*gq}")
    a("s_waitcnt vmcnt(0) lgkmcnt(0)")
    for t in range(4):
        a(f"v_mov_b32 {v(csv[t]+1)}, {v(csv[t])}")
        r = G_ACC + 16 * t
        for p in range(8):
            a(f"v_pk_mul_f32 {v(r+2*p,2)}, {v(r+2*p,2)}, {v(RR+2*p,2)}")
        for p in range(8):
            a(f"v_pk_fma_f32 {v(r+2*p,2)}, {v(RR+16+2*p,2)}, {v(csv[t],2)}, {v(r+2*p,2)}")
        for p in range(8):
            a(f"v_cvt_pk_bf16_f32 {v(r+p)}, {v(r+2*p)}, {v(r+2*p+1)}")
        a(f"buffer_store_dwordx4 {v(r,4)}, {v(32+t)}, {s(S_WS,4)}, s42 offen")
        a(f"buffer_store_dwordx4 {v(r+4,4)}, {v(32+t)}, {s(S_WS,4)}, s42 offen offset:640")
    a(f"{fin}:")
    kernel_tail(a, name, 1 + 5 * layer)
    return name


def gen_mlp1(a, layer):
    name = f"mlpa{layer}_kernel"
    kernel_head(a, name, 256, [])
    X = XB[2 * layer + 1]
    ST = STB[2 * layer + 1]
    a("s_and_b32 s21, s2, 7")
    a("s_lshr_b32 s25, s2, 3")
    a("s_lshr_b32 s26, s25, 4")
    a("s_and_b32 s27, s25, 15")
    a(f"s_mul_i32 s28, s27, {120*1024}")
    a(f"s_add_u32 s28, s28, {W1T}")
    comp = a.label("comp")
    fin = a.label("fin")
    a(f"s_cmp_lt_u32 {s(S_W)}, 4")
    a(f"s_cbranch_scc1 {comp}")
    helper_stream(a, 28, 10, 3, 10, 2)
    a(f"s_branch {fin}")
    a(f"{comp}:")
    a("s_lshl_b32 s29, s21, 3")
    a("s_lshl_b32 s30, s26, 2")
    a("s_add_u32 s29, s29, s30")
    a(f"s_add_u32 s29, s29, {s(S_W)}")
    a(f"s_mul_i32 s30, s29, {40*1024}")
    a(f"s_add_u32 s30, s30, {X}")
    a("v_lshlrev_b32 v2, 4, v0")
    a("v_and_b32 v5, 31, v0")
    a("v_lshrrev_b32 v6, 5, v0")
    a("v_lshlrev_b32 v7, 6, v5")
    a("v_lshl_add_u32 v7, v6, 5, v7")
    a("s_lshl_b32 s31, s29, 11")
    a(f"s_add_u32 s31, s31, {ST}")
    a(f"buffer_load_dwordx4 v[8:11], v7, {s(S_WS,4)}, s31 offen")
    a(f"buffer_load_dwordx4 v[12:15], v7, {s(S_WS,4)}, s31 offen offset:16")
    a("s_mul_i32 s32, s27, 384")
    a(f"s_add_u32 s33, s32, {B1F}")
    a(f"s_add_u32 s32, s32, {CS1}")
    cs = {}

    def mk(i):
        def f(reg):
            cs[i] = reg
            j = i % 12
            a(f"buffer_load_dwordx4 {v(reg,4)}, v16, {s(S_WS,4)}, {'s32' if i < 12 else 's33'} offen offset:{(j//4)*128 + (j%4)*32}")
        return f

    g = gemm32_main(a, 3, 10, False, 30, [mk(i) for i in range(24)])
    next(g)
    a("v_lshlrev_b32 v16, 4, v6")
    a("v_lshrrev_b32 v17, 4, v5")
    a(f"v_mul_u32_u24 v17, {48*1024}, v17")
    a("v_and_b32 v18, 15, v5")
    a("v_lshl_add_u32 v17, v18, 4, v17")
    a("v_lshl_add_u32 v17, v6, 8, v17")
    a(f"s_mul_i32 s34, s29, {2*48*1024}")
    a(f"s_mul_i32 s35, s27, {3*1024}")
    a("s_add_u32 s34, s34, s35")
    a(f"s_add_u32 s34, s34, {HB[layer]}")
    next(g)
    ln_stats(a, 8, True)
    a("v_sub_f32 v10, 0, v8")
    a("v_mov_b32 v11, v10")
    a("v_mov_b32 v8, v9")
    k0 = -2.0 * math.sqrt(2.0 / math.pi) * math.log2(math.e)
    a(f"v_mov_b32 v12, {fhex(k0)}")
    a(f"v_mov_b32 v13, {fhex(k0)}")
    a(f"v_mov_b32 v14, {fhex(k0*0.044715)}")
    a(f"v_mov_b32 v15, {fhex(k0*0.044715)}")
    a(f"v_mov_b32 v18, 1.0")
    a(f"v_mov_b32 v19, 1.0")
    a("s_waitcnt vmcnt(0)")
    T0 = 20
    for t in range(3):
        for gp in range(2):
            r = G_ACC + 16 * t + 8 * gp
            for p in range(4):
                c = cs[4 * t + 2 * gp + p // 2] + 2 * (p % 2)
                a(f"v_pk_fma_f32 {v(r+2*p,2)}, {v(c,2)}, v[10:11], {v(r+2*p,2)}")
            for p in range(4):
                b = cs[12 + 4 * t + 2 * gp + p // 2] + 2 * (p % 2)
                a(f"v_pk_fma_f32 {v(r+2*p,2)}, {v(r+2*p,2)}, v[8:9], {v(b,2)}")
            for p in range(4):
                a(f"v_pk_mul_f32 {v(T0+2*p,2)}, {v(r+2*p,2)}, {v(r+2*p,2)}")
            for p in range(4):
                a(f"v_pk_fma_f32 {v(T0+2*p,2)}, {v(T0+2*p,2)}, v[14:15], v[12:13]")
            for p in range(4):
                a(f"v_pk_mul_f32 {v(T0+2*p,2)}, {v(T0+2*p,2)}, {v(r+2*p,2)}")
            for e in range(8):
                a(f"v_exp_f32 {v(T0+e)}, {v(T0+e)}")
            for p in range(4):
                a(f"v_pk_add_f32 {v(T0+2*p,2)}, {v(T0+2*p,2)}, v[18:19]")
            for e in range(8):
                a(f"v_rcp_f32 {v(T0+e)}, {v(T0+e)}")
            for p in range(4):
                a(f"v_pk_mul_f32 {v(r+2*p,2)}, {v(r+2*p,2)}, {v(T0+2*p,2)}")
            for p in range(4):
                a(f"v_cvt_pk_bf16_f32 {v(r+p)}, {v(r+2*p)}, {v(r+2*p+1)}")
            a(f"buffer_store_dwordx4 {v(r,4)}, v17, {s(S_WS,4)}, s34 offen offset:{t*1024 + gp*512}")
    a(f"{fin}:")
    kernel_tail(a, name, 4 + 5 * layer)
    return name


def gen_g16(a, layer, mlp2):
    name = f"{'mlpb' if mlp2 else 'wo'}{layer}_kernel"
    final = mlp2 and layer == 1
    srds = []
    if mlp2:
        srds.append((8, 7, 1280))
    if final:
        srds.append((12, 8, 2621440))
    kernel_head(a, name, 256, srds)
    KS = 48 if mlp2 else 20
    ACT = HB[layer] if mlp2 else OB[layer]
    WT = W2T if mlp2 else WOT
    XIN = XB[2 * layer + 1] if mlp2 else XB[2 * layer]
    XOUT = None if final else (XB[2 * layer + 2] if mlp2 else XB[2 * layer + 1])
    STO = None if final else (STB[2 * layer + 2] if mlp2 else STB[2 * layer + 1])
    nchunk = KS // 4
    nslot = 7
    CB = 20 * 1024
    RED = 140 * 1024
    a("s_and_b32 s21, s2, 7")
    a("s_lshr_b32 s25, s2, 3")
    a("s_lshr_b32 s26, s25, 3")
    a("s_and_b32 s27, s25, 7")
    a(f"s_mul_i32 s28, s27, {KS*5*1024}")
    a(f"s_add_u32 s28, s28, {WT}")
    comp = a.label("comp")
    fin = a.label("fin")
    a(f"s_cmp_lt_u32 {s(S_W)}, 4")
    a(f"s_cbranch_scc1 {comp}")
    helper_stream(a, 28, nchunk, 5, nslot, 2, extra_barriers=1)
    a(f"s_branch {fin}")
    a(f"{comp}:")
    ACC = 16
    WB = 56
    AW = 96
    NW = 16
    RES = 224
    a(f"s_and_b32 s29, {s(S_W)}, 1")
    a(f"s_lshr_b32 s30, {s(S_W)}, 1")
    a("s_lshl_b32 s31, s21, 4")
    a("s_lshl_b32 s32, s26, 2")
    a("s_add_u32 s31, s31, s32")
    a("s_lshl_b32 s32, s29, 1")
    a("s_add_u32 s31, s31, s32")
    a(f"s_mul_i32 s32, s31, {KS*1024}")
    a("s_lshl_b32 s33, s30, 10")
    a("s_add_u32 s32, s32, s33")
    a(f"s_add_u32 s32, s32, {ACT}")
    a("v_lshlrev_b32 v2, 4, v0")
    nk = KS // 2
    loads = []

    def act_load(i):
        for tt in range(2):
            a(f"s_add_u32 s24, s32, {tt*KS*1024 + i*2048}")
            a(f"buffer_load_dwordx4 {v(AW + 8*(i % NW) + 4*tt, 4)}, v2, {s(S_WS,4)}, s24 offen")
            loads.append((i, tt))

    for i in range(min(NW, nk)):
        act_load(i)
    a("s_add_u32 s34, s31, s30")
    a("v_and_b32 v5, 15, v0")
    a("v_lshrrev_b32 v6, 4, v0")
    a("v_lshrrev_b32 v7, 1, v6")
    a("v_lshlrev_b32 v7, 9, v7")
    a("v_lshl_add_u32 v7, v5, 4, v7")
    a("v_and_b32 v8, 1, v6")
    a("v_lshl_add_u32 v7, v8, 3, v7")
    a("s_lshr_b32 s35, s34, 1")
    a(f"s_mul_i32 s35, s35, {40*1024}")
    a("s_and_b32 s36, s34, 1")
    a("s_lshl_b32 s36, s36, 8")
    a("s_add_u32 s35, s35, s36")
    a(f"s_mul_i32 s36, s27, {5*1024}")
    a("s_add_u32 s35, s35, s36")
    a(f"s_add_u32 s36, s35, {XIN}")
    for t in range(5):
        if t == 4:
            a(f"s_add_u32 s36, s36, 4096")
        a(f"buffer_load_dwordx2 {v(RES+2*t,2)}, v7, {s(S_WS,4)}, s36 offen offset:{(t*1024) % 4096}")
        loads.append(("r", t))
    if mlp2:
        a("v_lshlrev_b32 v9, 3, v6")
        a("s_mul_i32 s37, s27, 160")
        for t in range(5):
            a(f"buffer_load_dwordx2 {v(RES+10+2*t,2)}, v9, s[8:11], s37 offen offset:{t*32}")
            loads.append(("b", t))
    a(f"s_mul_i32 s38, s30, {5*1024}")
    a("v_add_u32 v10, s38, v2")
    a("v_add_u32 v11, 0x10000, v10")
    a("v_add_u32 v12, 0x20000, v10")

    def wread(i, t):
        c = i // 2
        off = (c % nslot) * CB + (i % 2) * 10240 + t * 1024
        base = 10 + off // 65536
        a(f"ds_read_b128 {v(WB + 20*(i & 1) + 4*t, 4)}, {v(base)} offset:{off % 65536}")

    a("s_barrier")
    for t in range(5):
        wread(0, t)
    for i in range(nk):
        last = (i == nk - 1)
        bar = (i % 2 == 1) and not last
        for t in range(5):
            for tt in range(2):
                w = []
                if t == 0:
                    after = len(loads) - 1 - loads.index((i, tt))
                    w.append(f"vmcnt({min(after,63)})")
                if tt == 0:
                    w.append(f"lgkmcnt({4 if not last else 4-t})")
                if w:
                    a("s_waitcnt " + " ".join(w))
                D_ = v(ACC + 20 * tt + 4 * t, 4)
                a(f"v_mfma_f32_16x16x32_bf16 {D_}, {v(WB + 20*(i & 1) + 4*t, 4)}, {v(AW + 8*(i % NW) + 4*tt, 4)}, {D_ if i else 0}")
            if not last:
                if bar and t == 0:
                    a("s_barrier")
                wread(i + 1, t)
        if i + NW < nk:
            act_load(i + NW)
    a(f"s_mul_i32 s39, {s(S_W)}, 5120")
    a(f"s_add_u32 s39, s39, {RED}")
    a("v_add_u32 v13, s39, v2")
    a(f"s_xor_b32 s40, {s(S_W)}, 2")
    a("s_mul_i32 s40, s40, 5120")
    a(f"s_add_u32 s40, s40, {RED}")
    a("v_add_u32 v14, s40, v2")
    k1 = a.label("kh1")
    kj = a.label("khj")
    a("s_cmp_eq_u32 s30, 1")
    a(f"s_cbranch_scc1 {k1}")
    a.nop(4)
    for t in range(5):
        a(f"ds_write_b128 v13, {v(ACC+20+4*t,4)} offset:{t*1024}")
    a(f"s_branch {kj}")
    a(f"{k1}:")
    a.nop(4)
    for t in range(5):
        a(f"ds_write_b128 v13, {v(ACC+4*t,4)} offset:{t*1024}")
    a("s_waitcnt lgkmcnt(0)")
    for j in range(20):
        a(f"v_mov_b32 {v(ACC+j)}, {v(ACC+20+j)}")
    a(f"{kj}:")
    a("s_waitcnt lgkmcnt(0)")
    a("s_barrier")
    for t in range(5):
        a(f"ds_read_b128 {v(WB+4*t,4)}, v14 offset:{t*1024}")
    a("s_waitcnt vmcnt(0)")
    a("v_mov_b32 v3, 0")
    a("v_mov_b32 v4, 0")
    if final:
        a("s_movk_i32 s41, 1280")
        a("v_mul_lo_u32 v15, v5, s41")
        a("v_lshl_add_u32 v15, v6, 3, v15")
        a(f"s_mul_i32 s42, s34, {16*1280}")
        a("s_mul_i32 s43, s27, 160")
        a("s_add_u32 s42, s42, s43")
    else:
        a(f"s_add_u32 s42, s35, {XOUT}")
    for t in range(5):
        r = ACC + 4 * t
        T = AW
        a(f"v_lshlrev_b32 {v(T)}, 16, {v(RES+2*t)}")
        a(f"v_and_b32 {v(T+1)}, 0xffff0000, {v(RES+2*t)}")
        a(f"v_lshlrev_b32 {v(T+2)}, 16, {v(RES+2*t+1)}")
        a(f"v_and_b32 {v(T+3)}, 0xffff0000, {v(RES+2*t+1)}")
        for p in range(2):
            a(f"v_pk_add_f32 {v(r+2*p,2)}, {v(r+2*p,2)}, {v(T+2*p,2)}")
        if mlp2:
            a(f"v_lshlrev_b32 {v(T)}, 16, {v(RES+10+2*t)}")
            a(f"v_and_b32 {v(T+1)}, 0xffff0000, {v(RES+10+2*t)}")
            a(f"v_lshlrev_b32 {v(T+2)}, 16, {v(RES+10+2*t+1)}")
            a(f"v_and_b32 {v(T+3)}, 0xffff0000, {v(RES+10+2*t+1)}")
            for p in range(2):
                a(f"v_pk_add_f32 {v(r+2*p,2)}, {v(r+2*p,2)}, {v(T+2*p,2)}")
        a(f"s_waitcnt lgkmcnt({4-t})")
        for p in range(2):
            a(f"v_pk_add_f32 {v(r+2*p,2)}, {v(r+2*p,2)}, {v(WB+4*t+2*p,2)}")
        a(f"v_cvt_pk_bf16_f32 {v(r)}, {v(r)}, {v(r+1)}")
        a(f"v_cvt_pk_bf16_f32 {v(r+1)}, {v(r+2)}, {v(r+3)}")
        if final:
            a(f"buffer_store_dwordx2 {v(r,2)}, v15, s[12:15], s42 offen offset:{t*32}")
        else:
            if t == 4:
                a("s_add_u32 s42, s42, 4096")
            a(f"buffer_store_dwordx2 {v(r,2)}, v7, {s(S_WS,4)}, s42 offen offset:{(t*1024) % 4096}")
            if t == 0:
                a("v_mov_b32 v9, 0x3f803f80")
            for p in range(2):
                a(f"v_dot2_f32_bf16 v3, {v(r+p)}, v9, v3")
                a(f"v_dot2_f32_bf16 v4, {v(r+p)}, {v(r+p)}, v4")
    if not final:
        a.nop(3)
        a("v_mov_b32 v2, v3")
        a("v_mov_b32 v3, v4")
        sum_xor16(a, 2, 8)
        sum_xor16(a, 3, 9)
        sum_xor32(a, 2, 8)
        sum_xor32(a, 3, 9)
        a("v_lshlrev_b32 v8, 6, v5")
        a("s_lshl_b32 s43, s34, 10")
        a("s_lshl_b32 s44, s27, 3")
        a("s_add_u32 s43, s43, s44")
        a(f"s_add_u32 s43, s43, {STO}")
        a("s_mov_b64 exec, 0xffff")
        a(f"buffer_store_dwordx2 v[2:3], v8, {s(S_WS,4)}, s43 offen")
        a("s_mov_b64 exec, -1")
    a(f"{fin}:")
    kernel_tail(a, name, (5 if mlp2 else 3) + 5 * layer)
    return name


def gen_att(a, layer):
    name = f"att{layer}_kernel"
    kernel_head(a, name, 256, [])
    SX, SY, NM, O_, VB, K16, K4, Q16, Q4, IDX = 32, 64, 96, 128, 144, 176, 184, 188, 192, 194
    a("s_and_b32 s21, s2, 7")
    a("s_lshr_b32 s25, s2, 3")
    a("s_mul_i32 s26, s25, 163840")
    a(f"s_add_u32 s26, s26, {KVB[layer]}")
    a("s_lshl_b32 s27, s21, 3")
    a(f"s_add_u32 s27, s27, {s(S_W)}")
    a("s_mul_i32 s28, s25, 81920")
    a("s_mul_i32 s29, s27, 1280")
    a("s_add_u32 s28, s28, s29")
    a(f"s_add_u32 s28, s28, {QB[layer]}")
    a("v_lshlrev_b32 v2, 4, v0")
    a("v_lshlrev_b32 v3, 3, v0")
    a("v_and_b32 v5, 31, v0")
    a("v_lshrrev_b32 v6, 5, v0")
    a("v_lshlrev_b32 v7, 3, v5")
    a(f"buffer_load_dwordx4 {v(Q16,4)}, v2, {s(S_WS,4)}, s28 offen")
    a(f"buffer_load_dwordx2 {v(Q4,2)}, v7, {s(S_WS,4)}, s28 offen offset:1024")
    a("v_mul_u32_u24 v4, 320, v6")
    a("v_lshl_add_u32 v4, v5, 4, v4")
    a(f"v_mov_b32 {v(IDX)}, 0xdddddddd")
    for j in range(32):
        a(f"v_mov_b32 {v(VB+j)}, 0x3f803f80")
        a(f"v_mov_b32 {v(NM+j)}, 0")
    a("s_mov_b32 s40, 0x000fffff")
    a("s_mov_b32 s41, 0x000fffff")
    a(f"s_and_b32 s30, {s(S_W)}, 3")
    a("s_mul_i32 s30, s30, 5120")
    a("s_add_u32 s31, s26, s30")
    a("s_mov_b32 s34, 0")
    main = a.label("main")
    a(f"{main}:")

    def issue(c):
        for j in range(5):
            a(f"s_add_u32 m0, s30, {(c % 3)*20480 + j*1024}")
            a(f"s_add_u32 s24, s31, {c*20480 + j*1024}")
            a(f"buffer_load_dwordx4 v2, {s(S_WS,4)}, s24 offen lds")

    def loader(fn):
        lab = a.label("nl")
        a(f"s_cmp_lt_u32 {s(S_W)}, 4")
        a(f"s_cbranch_scc1 {lab}")
        fn()
        a(f"{lab}:")

    def sbase(j):
        return ((j // 4) % 3) * 20480 + (j % 4) * 5120

    def readK(j):
        a(f"ds_read_b64 {v(K4,2)}, v3 offset:{sbase(j)+2048}")
        a(f"ds_read_b128 {v(K16,4)}, v2 offset:{sbase(j)}")
        a(f"ds_read_b128 {v(K16+4,4)}, v2 offset:{sbase(j)+1024}")

    def readV(j):
        a("s_mov_b64 exec, s[40:41]")
        for u in range(4):
            a(f"ds_read_b128 {v(VB+16*(j & 1)+4*u,4)}, v4 offset:{sbase(j)+2560+640*u}")
        a("s_mov_b64 exec, -1")

    def chunk_barrier(c):
        nafter = min(c + 1, 7) - c
        loader(lambda: a(f"s_waitcnt vmcnt({5*nafter})"))
        a("s_waitcnt lgkmcnt(0)")
        a("s_barrier")
        if c >= 1 and c + 2 <= 7 or c == 0:
            loader(lambda: issue(c + 2))

    def qk2b(Y):
        a(f"v_mfma_f32_32x32x4_2b_bf16 {v(Y,32)}, {v(K4,2)}, {v(Q4,2)}, {v(NM,32)}")

    def qk16(Y, t):
        a(f"v_mfma_f32_32x32x16_bf16 {v(Y+16*t,16)}, {v(K16+4*t,4)}, {v(Q16,4)}, {v(Y+16*t,16)}")

    def pv(j, X, u):
        a(f"v_smfmac_f32_32x32x32_bf16 {v(O_,16)}, {v(VB+16*(j & 1)+4*u,4)}, {v(X+8*u,8)}, {v(IDX)}")

    loader(lambda: (issue(0), issue(1)))
    for j in range(16):
        a(f"v_mov_b32 {v(O_+j)}, 0")
    a("s_waitcnt vmcnt(10)")
    lab = a.label("qw")
    a(f"s_cmp_ge_u32 {s(S_W)}, 4")
    a(f"s_cbranch_scc1 {lab}")
    a("s_waitcnt vmcnt(0)")
    a(f"{lab}:")
    chunk_barrier(0)
    readK(0)
    readV(0)
    a("s_waitcnt lgkmcnt(4)")
    qk2b(SX)
    a.nop(18)
    qk16(SX, 0)
    qk16(SX, 1)
    readK(1)
    a.nop(10)
    for j in range(32):
        X, Y = (SX, SY) if j % 2 == 0 else (SY, SX)
        e = [0]

        def E(n):
            for _ in range(n):
                a(f"v_exp_f32 {v(X+e[0])}, {v(X+e[0])}")
                e[0] += 1

        a(f"s_setprio {3 - ((j+1) % 4)}")
        nxt = j < 31
        E(2)
        if j > 0:
            pv(j - 1, Y, 3)
        E(1)
        if nxt:
            readV(j + 1)
        E(2)
        if nxt:
            a("s_waitcnt lgkmcnt(4)")
            qk2b(Y)
        E(8)
        if not nxt:
            a("s_waitcnt lgkmcnt(0)")
        pv(j, X, 0)
        E(5)
        pv(j, X, 1)
        E(3)
        if nxt:
            qk16(Y, 0)
        E(3)
        if nxt:
            qk16(Y, 1)
        E(1)
        if j + 2 < 32:
            if (j + 2) % 4 == 0:
                chunk_barrier((j + 2) // 4)
            readK(j + 2)
        E(2)
        pv(j, X, 2)
        E(5)
        assert e[0] == 32
    a.nop(2)
    pv(31, SY, 3)
    a("s_setprio 0")
    a.nop(12)
    epi = a.label("epi")
    a("s_cmp_lg_u32 s34, 0")
    a(f"s_cbranch_scc1 {epi}")
    a(f"v_cmp_nle_f32 vcc, {fhex(2.0**-64)}, {v(O_+12)}")
    a(f"v_mov_b32 v8, {fhex(2.0**64)}")
    a(f"v_cmp_nle_f32 s[36:37], {v(O_+12)}, v8")
    a("s_or_b64 vcc, vcc, s[36:37]")
    a("s_cmp_lg_u64 vcc, 0")
    a("s_cselect_b32 s35, 1, 0")
    a("v_mov_b32 v8, s35")
    a(f"s_lshl_b32 s36, {s(S_W)}, 2")
    a("s_add_u32 s36, s36, 61440")
    a("v_mov_b32 v9, s36")
    a("ds_write_b32 v9, v8")
    a("s_waitcnt lgkmcnt(0)")
    a("s_barrier")
    a("v_and_b32 v9, 7, v0")
    a("v_lshlrev_b32 v9, 2, v9")
    a("ds_read_b32 v8, v9 offset:61440")
    a("s_waitcnt lgkmcnt(0)")
    a("v_cmp_ne_u32 vcc, 0, v8")
    a("s_cbranch_vccz " + epi)
    a("s_mov_b32 s34, 1")
    a("v_mov_b32 v10, 0xff800000")
    a("s_mov_b32 s36, s26")
    a("s_mov_b32 s37, 32")
    lp = a.label("maxloop")
    a(f"{lp}:")
    a(f"buffer_load_dwordx2 {v(K4,2)}, v3, {s(S_WS,4)}, s36 offen offset:2048")
    a(f"buffer_load_dwordx4 {v(K16,4)}, v2, {s(S_WS,4)}, s36 offen")
    a(f"buffer_load_dwordx4 {v(K16+4,4)}, v2, {s(S_WS,4)}, s36 offen offset:1024")
    a("s_waitcnt vmcnt(0)")
    a(f"v_mfma_f32_32x32x4_2b_bf16 {v(SX,32)}, {v(K4,2)}, {v(Q4,2)}, 0")
    a.nop(18)
    qk16(SX, 0)
    qk16(SX, 1)
    a.nop(12)
    for j in range(16):
        a(f"v_max3_f32 v10, {v(SX+2*j)}, {v(SX+2*j+1)}, v10")
    a("s_add_u32 s36, s36, 5120")
    a("s_sub_u32 s37, s37, 1")
    a("s_cmp_lg_u32 s37, 0")
    a(f"s_cbranch_scc1 {lp}")
    a("v_mov_b32 v11, v10")
    a.nop(2)
    a("v_permlane32_swap_b32 v10, v11")
    a("v_max_f32 v10, v10, v11")
    for j in range(32):
        a(f"v_sub_f32 {v(NM+j)}, 0, v10")
    a("s_barrier")
    a(f"s_branch {main}")
    a(f"{epi}:")
    a(f"v_rcp_f32 v8, {v(O_+12)}")
    a("v_lshrrev_b32 v9, 4, v5")
    a(f"v_mul_u32_u24 v9, {20*1024}, v9")
    a("v_and_b32 v10, 15, v5")
    a("v_lshl_add_u32 v9, v10, 4, v9")
    a("s_mul_i32 s36, s25, 5")
    for i in range(3):
        a(f"s_add_u32 s37, s36, {2*i}")
        a("v_add_u32 v11, s37, v6")
        a("v_lshrrev_b32 v12, 1, v11")
        a(f"v_lshl_add_u32 {v(13+i)}, v12, 8, v9")
        a("v_and_b32 v11, 1, v11")
        a(f"v_lshl_add_u32 {v(13+i)}, v11, 3, {v(13+i)}")
    a(f"s_mul_i32 s38, s27, {2*20*1024}")
    a(f"s_add_u32 s38, s38, {OB[layer]}")
    for j in range(12):
        a(f"v_mul_f32 {v(O_+j)}, {v(O_+j)}, v8")
    for i in range(3):
        a(f"v_cvt_pk_bf16_f32 {v(O_+4*i)}, {v(O_+4*i)}, {v(O_+4*i+1)}")
        a(f"v_cvt_pk_bf16_f32 {v(O_+4*i+1)}, {v(O_+4*i+2)}, {v(O_+4*i+3)}")
        if i == 2:
            a("s_mov_b32 exec_hi, 0")
        a(f"buffer_store_dwordx2 {v(O_+4*i,2)}, {v(13+i)}, {s(S_WS,4)}, s38 offen")
    a("s_mov_b64 exec, -1")
    kernel_tail(a, name, 2 + 5 * layer)
    return name


def generate(profile=False):
    global PROFILE
    PROFILE = profile
    a = Asm()
    names = [gen_prep(a)]
    for layer in range(2):
        names.append(gen_qkv(a, layer))
        names.append(gen_att(a, layer))
        names.append(gen_g16(a, layer, False))
        names.append(gen_mlp1(a, layer))
        names.append(gen_g16(a, layer, True))
    body = a.text()
    probs = check_hazards(body)
    hdr = open("cdna_kernels/" + NAME + ".s.ref").read().split("; Override launch")[0]
    out = hdr
    for n in names:
        lds = {"pre": 32768, "att": 65536}.get(n[:3], 163840)
        out += f"; @launch kernel={n} grid=(256,1,1) block=(512,1,1) lds={lds}\n"
    out += '.amdgcn_target "amdgcn-amd-amdhsa--gfx950"\n.text\n' + body
    out += '.section .rodata,"a"\n'
    for n in names:
        out += ".p2align 6\n" + descriptor(n)
    return out, probs


if __name__ == "__main__":
    prof = "--profile" in sys.argv
    out, probs = generate(prof)
    for p in probs[:50]:
        print("HAZARD", p)
    print("hazards:", len(probs))
    path = sys.argv[1]
    open(path, "w").write(out)
    print("wrote", path, len(out), "bytes")
```

```python
import math
import struct
import sys
from asmlib import Asm, v, s, check_hazards

NAME = "interleave_layers__softmax_full_mha__mixer_channel_mlp__prompt"

WOT = 0x000000
W1T = 0x100000
W2T = 0x300000
WQT = 0x500000
CSQ = 0x780000
CS1 = CSQ + 0x2000
B1F = CSQ + 0x4000
XB = [0x800000, 0xB00000, 0xE00000, 0x1100000]
STB = [0x1400000 + i * 0x20000 for i in range(4)]
KVB = [0x1500000, 0x1A00000]
QB = [0x1F00000, 0x2180000]
OB = [0x2400000, 0x2680000]
HB = [0x2900000, 0x2F00000]
PROF = 0x3500000
WS_END = 0x3900000

EPS = 1e-5
QSCALE = (20 ** -0.5) * math.log2(math.e)


def fhex(x):
    return "0x%08x" % struct.unpack("<I", struct.pack("<f", x))[0]


def magic(d):
    return (2 ** 32 + d - 1) // d


S_WS = 4
S_A = 8
S_B = 12
S_C = 16
S_W = 20
S_DBG = 92

PROFILE = False


def load_srd(a, dst, slot, nbytes):
    a(f"s_load_dwordx2 {s(dst,2)}, s[0:1], {slot*8}")
    a(f"s_mov_b32 {s(dst+2)}, {nbytes}")
    a(f"s_mov_b32 {s(dst+3)}, 0x00020000")


def kernel_head(a, name, nwg, srds):
    a(f".globl {name}")
    a(".p2align 8")
    a(f".type {name},@function")
    a(f"{name}:")
    end = f"L_end_{name}"
    if PROFILE:
        a("s_memrealtime s[96:97]")
        a("s_memtime s[94:95]")
        for i in range(16):
            a(f"s_mov_b32 s{60+2*i}, 0")
    a(f"s_cmp_ge_u32 s2, {nwg}")
    a(f"s_cbranch_scc1 {end}")
    load_srd(a, S_WS, 10, WS_END)
    for dst, slot, nbytes in srds:
        load_srd(a, dst, slot, nbytes)
    a("v_lshrrev_b32 v1, 6, v0")
    a("v_and_b32 v0, 63, v0")
    a(f"v_readfirstlane_b32 {s(S_W)}, v1")
    a("s_waitcnt lgkmcnt(0)")
    return end


NSTAMP = [0]


def stamp(a, i=None):
    if PROFILE:
        if i is None:
            i = NSTAMP[0]
        NSTAMP[0] = i + 1
        assert i < 16
        a(f"s_memtime s[{60+2*i}:{61+2*i}]")


def kernel_tail(a, name, kidx=0):
    if PROFILE:
        a("s_waitcnt vmcnt(0) lgkmcnt(0)")
        a("s_memrealtime s[98:99]")
        a("s_memtime s[92:93]")
        a("s_waitcnt lgkmcnt(0)")
        a("s_mov_b64 exec, -1")
        a("v_mov_b32 v2, 0")
        for i in range(16):
            a(f"v_writelane_b32 v2, s{60+2*i}, {i}")
        a("v_writelane_b32 v2, s92, 16")
        a("v_writelane_b32 v2, s96, 17")
        a("v_writelane_b32 v2, s98, 18")
        a("v_writelane_b32 v2, s94, 19")
        a("s_lshl_b32 s21, s2, 3")
        a(f"s_add_u32 s21, s21, {s(S_W)}")
        a("s_lshl_b32 s21, s21, 7")
        a(f"s_add_u32 s21, s21, {PROF + kidx*256*8*128}")
        a("v_lshlrev_b32 v1, 2, v0")
        a("s_mov_b64 exec, 0xffffffff")
        a("s_mov_b32 exec_hi, 0")
        a(f"buffer_store_dword v2, v1, {s(S_WS,4)}, s21 offen")
    a(f"L_end_{name}:")
    a("s_endpgm")


def descriptor(name, vgpr=256, sgpr=102):
    return f""".amdhsa_kernel {name}
  .amdhsa_next_free_vgpr {vgpr}
  .amdhsa_next_free_sgpr {sgpr}
  .amdhsa_accum_offset {vgpr}
  .amdhsa_group_segment_fixed_size 0
  .amdhsa_kernarg_size 88
  .amdhsa_user_sgpr_count 2
  .amdhsa_user_sgpr_kernarg_segment_ptr 1
  .amdhsa_system_sgpr_workgroup_id_x 1
  .amdhsa_float_denorm_mode_32 3
  .amdhsa_float_denorm_mode_16_64 3
.end_amdhsa_kernel
"""


def sum_xor32(a, r, t):
    a(f"v_mov_b32 {v(t)}, {v(r)}")
    a.nop(2)
    a(f"v_permlane32_swap_b32 {v(r)}, {v(t)}")
    a(f"v_add_f32 {v(r)}, {v(r)}, {v(t)}")


def sum_xor16(a, r, t):
    a(f"v_mov_b32 {v(t)}, {v(r)}")
    a.nop(2)
    a(f"v_permlane16_swap_b32 {v(r)}, {v(t)}")
    a(f"v_add_f32 {v(r)}, {v(r)}, {v(t)}")


def gen_prep(a):
    name = "prep_kernel"
    kernel_head(a, name, 256, [(8, 0, 2621440), (12, 1, 2457600), (16, 2, 819200), (24, 4, 1966080),
                               (28, 6, 1966080), (32, 5, 3072)])
    a(f"s_lshl_b32 s21, s2, 3")
    a(f"s_add_u32 s21, s21, {s(S_W)}")
    a(f"s_lshl_b32 s22, {s(S_W)}, 12")
    done = f"L_done_{name}"

    def piece(srd, RS, nfb, typ, perm, outbase, nks, ntile):
        a(f"s_mov_b32 s36, {magic(nfb)}")
        a("s_mul_hi_u32 s37, s23, s36")
        a(f"s_mul_i32 s38, s37, {nfb}")
        a("s_sub_u32 s38, s23, s38")
        a(f"s_mul_i32 s39, s37, {32*RS}")
        a("s_lshl_b32 s40, s38, 7")
        a("s_add_u32 s39, s39, s40")
        a("v_lshrrev_b32 v2, 3, v0")
        a(f"s_mov_b32 s41, {RS}")
        a("v_mul_lo_u32 v2, v2, s41")
        a("v_and_b32 v3, 7, v0")
        a("v_lshl_add_u32 v2, v3, 4, v2")
        for j in range(4):
            a(f"s_add_u32 m0, s22, {j*1024}")
            a(f"s_add_u32 s42, s39, {8*j*RS}")
            a(f"buffer_load_dwordx4 v2, {s(srd,4)}, s42 offen lds")
        a("v_lshrrev_b32 v4, 4, v0")
        a("v_bfe_u32 v5, v0, 2, 2")
        a("v_and_b32 v6, 3, v0")
        if typ == 16:
            if perm:
                a("v_lshrrev_b32 v7, 1, v4")
                a("v_lshlrev_b32 v7, 4, v7")
                a("v_and_b32 v8, 1, v4")
                a("v_lshl_add_u32 v7, v8, 2, v7")
                second = 8
            else:
                a("v_lshlrev_b32 v7, 3, v4")
                second = 4
            a("v_add_u32 v7, v7, v5")
            a("v_lshlrev_b32 v7, 7, v7")
            a("v_lshl_add_u32 v7, v6, 3, v7")
            frs = [(ft * 32, ft, 0) for ft in range(4)]
        else:
            a("v_lshrrev_b32 v7, 1, v4")
            a("v_lshlrev_b32 v7, 3, v7")
            a("v_add_u32 v7, v7, v5")
            a("v_lshlrev_b32 v7, 7, v7")
            a("v_lshl_add_u32 v7, v6, 3, v7")
            a("v_and_b32 v8, 1, v4")
            a("v_lshl_add_u32 v7, v8, 5, v7")
            second = 4
            frs = [(ks * 16 * 128 + ft * 64, ft, ks) for ft in range(2) for ks in range(2)]
        a("v_add_u32 v7, s22, v7")
        a("v_lshlrev_b32 v9, 4, v0")
        a("s_waitcnt vmcnt(0)")
        for i, (off, ft, ks) in enumerate(frs):
            a(f"ds_read_b64_tr_b16 {v(12+4*i,2)}, v7 offset:{off}")
            a(f"ds_read_b64_tr_b16 {v(14+4*i,2)}, v7 offset:{off+second*128}")
        a(f"s_mov_b32 s36, {magic(ntile)}")
        for i, (off, ft, ks) in enumerate(frs):
            if typ == 16:
                a(f"s_lshl_b32 s43, s38, 2")
                a(f"s_add_u32 s43, s43, {ft}")
                a(f"s_mov_b32 s45, s37")
            else:
                a(f"s_lshl_b32 s43, s38, 1")
                a(f"s_add_u32 s43, s43, {ft}")
                a(f"s_lshl_b32 s45, s37, 1")
                a(f"s_add_u32 s45, s45, {ks}")
            a("s_mul_hi_u32 s44, s43, s36")
            a(f"s_mul_i32 s46, s44, {ntile}")
            a("s_sub_u32 s46, s43, s46")
            a(f"s_mul_i32 s44, s44, {nks}")
            a("s_add_u32 s44, s44, s45")
            a(f"s_mul_i32 s44, s44, {ntile}")
            a("s_add_u32 s44, s44, s46")
            a("s_lshl_b32 s44, s44, 10")
            a(f"s_add_u32 s44, s44, {outbase}")
            a(f"s_waitcnt lgkmcnt({2*(3-i)})")
            a(f"buffer_store_dwordx4 {v(12+4*i,4)}, v9, {s(S_WS,4)}, s44 offen")
        a(f"s_branch {done}")

    bounds = [(200, 16, 1280, 10, 16, False, WOT, 20, 5), (480, 28, 1280, 10, 16, True, W2T, 48, 5),
              (480, 24, 3072, 24, 32, False, W1T, 40, 3), (600, 12, 3840, 30, 32, False, WQT, 40, 4)]
    lo = 0
    for cnt, srd, RS, nfb, typ, perm, outbase, nks, ntile in bounds:
        nxt = a.label("nextjob")
        a(f"s_cmp_ge_u32 s21, {lo+cnt}")
        a(f"s_cbranch_scc1 {nxt}")
        a(f"s_sub_u32 s23, s21, {lo}")
        piece(srd, RS, nfb, typ, perm, outbase, nks, ntile)
        a(f"{nxt}:")
        lo += cnt
    nxt = a.label("nextjob")
    a(f"s_cmp_ge_u32 s21, {lo+64}")
    a(f"s_cbranch_scc1 {nxt}")
    a(f"s_sub_u32 s23, s21, {lo}")
    a("v_and_b32 v2, 31, v0")
    a("s_movk_i32 s41, 1280")
    a("v_mul_lo_u32 v3, v2, s41")
    a("v_lshrrev_b32 v4, 5, v0")
    a("v_lshl_add_u32 v3, v4, 4, v3")
    a(f"s_mul_i32 s39, s23, {32*1280}")
    for k in range(40):
        a(f"buffer_load_dwordx4 {v(16+4*k,4)}, v3, s[8:11], s39 offen offset:{32*k}")
    a("v_mov_b32 v8, 0")
    a("v_mov_b32 v9, 0")
    a("v_mov_b32 v10, 0")
    a("v_mov_b32 v11, 0")
    a("v_mov_b32 v12, 0x3f803f80")
    a("v_lshlrev_b32 v5, 4, v0")
    a(f"s_add_u32 s40, s39, {XB[0]}")
    for k in range(40):
        a("s_waitcnt vmcnt(39)")
        for j in range(4):
            a(f"v_dot2_f32_bf16 v8, {v(16+4*k+j)}, v12, v8")
            a(f"v_dot2_f32_bf16 v9, {v(16+4*k+j)}, {v(16+4*k+j)}, v9")
        a(f"s_add_u32 s42, s40, {k*1024}")
        a(f"buffer_store_dwordx4 {v(16+4*k,4)}, v5, {s(S_WS,4)}, s42 offen")
    a.nop(3)
    sum_xor32(a, 8, 13)
    sum_xor32(a, 9, 13)
    a("v_cmp_gt_u32 vcc, 32, v0")
    a.nop(2)
    a("v_cndmask_b32 v8, 0, v8, vcc")
    a("v_cndmask_b32 v9, 0, v9, vcc")
    a("v_lshlrev_b32 v6, 6, v2")
    a("v_lshl_add_u32 v6, v4, 5, v6")
    a("s_lshl_b32 s42, s23, 11")
    a(f"s_add_u32 s42, s42, {STB[0]}")
    a(f"buffer_store_dwordx4 v[8:11], v6, {s(S_WS,4)}, s42 offen")
    a("v_mov_b32 v16, 0")
    a("v_mov_b32 v17, 0")
    a("v_mov_b32 v18, 0")
    a("v_mov_b32 v19, 0")
    a(f"buffer_store_dwordx4 v[16:19], v6, {s(S_WS,4)}, s42 offen offset:16")
    a(f"s_branch {done}")
    a(f"{nxt}:")
    lo += 64

    def colsum(srd, RS, outbase, bias):
        a("v_lshrrev_b32 v2, 3, v0")
        a(f"s_mov_b32 s41, {RS}")
        a("v_mul_lo_u32 v2, v2, s41")
        a("v_and_b32 v3, 7, v0")
        a("v_lshl_add_u32 v2, v3, 4, v2")
        a("s_lshl_b32 s39, s23, 7")
        for j in range(8):
            a(f"v_mov_b32 {v(4+j)}, 0")
        a("v_mov_b32 v12, 0x00003f80")
        a("v_mov_b32 v13, 0x3f800000")
        for b in range(2):
            for i in range(40):
                a(f"s_add_u32 s42, s39, {(b*40+i)*8*RS}")
                a(f"buffer_load_dwordx4 {v(16+4*i,4)}, v2, {s(srd,4)}, s42 offen")
            for i in range(40):
                a(f"s_waitcnt vmcnt({39-i})")
                for j in range(4):
                    a(f"v_dot2_f32_bf16 {v(4+2*j)}, {v(16+4*i+j)}, v12, {v(4+2*j)}")
                    a(f"v_dot2_f32_bf16 {v(5+2*j)}, {v(16+4*i+j)}, v13, {v(5+2*j)}")
        a.nop(3)
        for j in range(8):
            a(f"v_add_f32_dpp {v(4+j)}, {v(4+j)}, {v(4+j)} row_ror:8 row_mask:0xf bank_mask:0xf")
        for j in range(8):
            sum_xor16(a, 4 + j, 14)
            sum_xor32(a, 4 + j, 14)
        a("v_lshlrev_b32 v15, 5, v3")
        a("s_lshl_b32 s42, s23, 8")
        a(f"s_add_u32 s42, s42, {outbase}")
        a("s_mov_b64 exec, 0xff")
        a(f"buffer_store_dwordx4 v[4:7], v15, {s(S_WS,4)}, s42 offen")
        a(f"buffer_store_dwordx4 v[8:11], v15, {s(S_WS,4)}, s42 offen offset:16")
        a("s_mov_b64 exec, -1")
        if bias:
            a("v_lshlrev_b32 v16, 1, v0")
            a(f"buffer_load_ushort v17, v16, s[32:35], s39 offen")
            a("v_lshlrev_b32 v16, 2, v0")
            a(f"s_add_u32 s42, s42, {B1F-CS1}")
            a("s_waitcnt vmcnt(0)")
            a("v_lshlrev_b32 v17, 16, v17")
            a(f"buffer_store_dword v17, v16, {s(S_WS,4)}, s42 offen")
        a(f"s_branch {done}")

    for cnt, srd, RS, outbase, bias in ((30, 12, 3840, CSQ, False), (24, 24, 3072, CS1, True)):
        nxt = a.label("nextjob")
        a(f"s_cmp_ge_u32 s21, {lo+cnt}")
        a(f"s_cbranch_scc1 {nxt}")
        a(f"s_sub_u32 s23, s21, {lo}")
        colsum(srd, RS, outbase, bias)
        a(f"{nxt}:")
        lo += cnt
    a(f"{done}:")
    kernel_tail(a, name, 0)
    return name


def helper_stream(a, s_src, nchunk, per_wave, nslot, lead, extra_barriers=0):
    CB = 4 * per_wave * 1024
    a("v_lshlrev_b32 v2, 4, v0")
    a(f"s_sub_u32 s22, {s(S_W)}, 4")
    a(f"s_mul_i32 s22, s22, {per_wave*1024}")
    a(f"s_add_u32 s23, {s(s_src)}, s22")
    issued = []

    def issue(c):
        for j in range(per_wave):
            a(f"s_add_u32 m0, s22, {(c % nslot)*CB + j*1024}")
            a(f"s_add_u32 s24, s23, {c*CB + j*1024}")
            a(f"buffer_load_dwordx4 v2, {s(S_WS,4)}, s24 offen lds")
        issued.append(c)

    for c in range(min(nslot, nchunk)):
        issue(c)
    for c in range(nchunk):
        after = len(issued) - 1 - issued.index(c)
        a(f"s_waitcnt vmcnt({after*per_wave})")
        a("s_barrier")
        cn = c + nslot - lead
        if cn >= nslot and cn < nchunk:
            issue(cn)
    for _ in range(extra_barriers):
        a("s_barrier")


def ln_stats(a, r, double, qs=None):
    a(f"v_add_f32 {v(r)}, {v(r)}, {v(r+2)}")
    a(f"v_add_f32 {v(r+1)}, {v(r+1)}, {v(r+3)}")
    a(f"v_add_f32 {v(r+4)}, {v(r+4)}, {v(r+6)}")
    a(f"v_add_f32 {v(r+5)}, {v(r+5)}, {v(r+7)}")
    a(f"v_add_f32 {v(r)}, {v(r)}, {v(r+4)}")
    a(f"v_add_f32 {v(r+1)}, {v(r+1)}, {v(r+5)}")
    sum_xor32(a, r, r + 2)
    sum_xor32(a, r + 1, r + 3)
    a(f"v_mul_f32 {v(r)}, {fhex(1/640)}, {v(r)}")
    a(f"v_mul_f32 {v(r+1)}, {fhex(1/640)}, {v(r+1)}")
    a(f"v_fma_f32 {v(r+1)}, -{v(r)}, {v(r)}, {v(r+1)}")
    a(f"v_max_f32 {v(r+1)}, 0, {v(r+1)}")
    a(f"v_add_f32 {v(r+2)}, {fhex(EPS)}, {v(r+1)}")
    a(f"v_rsq_f32 {v(r+2)}, {v(r+2)}")
    a.nop(1)
    if double:
        a(f"v_mul_f32 {v(r+3)}, {v(r+2)}, {v(r+2)}")
        a(f"v_mul_f32 {v(r+3)}, {v(r+3)}, {v(r+1)}")
        a(f"v_add_f32 {v(r+3)}, {fhex(EPS)}, {v(r+3)}")
        a(f"v_rsq_f32 {v(r+3)}, {v(r+3)}")
        a.nop(1)
        a(f"v_mul_f32 {v(r+1)}, {v(r+2)}, {v(r+3)}")
    else:
        a(f"v_mov_b32 {v(r+1)}, {v(r+2)}")


G_ACC = 64
G_WB = 128
G_AW = 160
G_NW = 24


def gemm32_main(a, NT, nslot, swap, s_act, extra_loads):
    CB = 4 * NT * 1024
    loads = ["st0", "st1"]

    def act_load(k):
        a(f"s_add_u32 s24, {s(s_act)}, {k*1024}")
        a(f"buffer_load_dwordx4 {v(G_AW + 4*(k % G_NW), 4)}, v2, {s(S_WS,4)}, s24 offen")
        loads.append(("a", k))

    def wread(k, t):
        c = k // 4
        off = (c % nslot) * CB + ((k % 4) * NT + t) * 1024
        base = 2 if off < 65536 else (3 if off < 131072 else 4)
        a(f"ds_read_b128 {v(G_WB + 16*(k & 1) + 4*t, 4)}, {v(base)} offset:{off % 65536}")

    for k in range(G_NW):
        act_load(k)
    yield "prologue"
    a("v_add_u32 v3, 0x10000, v2")
    a("v_add_u32 v4, 0x20000, v2")
    stamp(a, 0)
    a("s_barrier")
    stamp(a, 1)
    for t in range(NT):
        wread(0, t)
    ex = list(extra_loads)
    for k in range(40):
        after = len(loads) - 1 - loads.index(("a", k))
        last = (k == 39)
        bar = (k % 4 == 3) and not last
        for t in range(NT):
            if t == 0:
                a(f"s_waitcnt vmcnt({after}) lgkmcnt({NT-1})")
            else:
                a(f"s_waitcnt lgkmcnt({NT-1 if not last else NT-1-t})")
            A_ = v(G_WB + 16 * (k & 1) + 4 * t, 4)
            B_ = v(G_AW + 4 * (k % G_NW), 4)
            if swap:
                A_, B_ = B_, A_
            D_ = v(G_ACC + 16 * t, 16)
            a(f"v_mfma_f32_32x32x16_bf16 {D_}, {A_}, {B_}, {D_ if k else 0}")
            if not last:
                if bar and t == 0:
                    a("s_barrier")
                    stamp(a, 1 + (k+1)//4)
                wread(k + 1, t)
        if k + G_NW < 40:
            act_load(k + G_NW)
        elif ex:
            f = ex.pop(0)
            f(G_AW + 4 * (k % G_NW))
            loads.append(("x", k))
    assert not ex
    stamp(a, 11)
    yield "done"


def gen_qkv(a, layer):
    name = f"qkv{layer}_kernel"
    kernel_head(a, name, 256, [])
    X = XB[2 * layer]
    ST = STB[2 * layer]
    a("s_and_b32 s21, s2, 7")
    a("s_lshr_b32 s25, s2, 3")
    a(f"s_cmp_ge_u32 s25, 30")
    a(f"s_cbranch_scc1 L_end_{name}")
    a("s_cmp_ge_u32 s25, 15")
    a("s_cselect_b32 s26, 1, 0")
    a("s_mul_i32 s27, s26, 15")
    a("s_sub_u32 s27, s25, s27")
    a(f"s_mul_i32 s28, s27, {160*1024}")
    a(f"s_add_u32 s28, s28, {WQT}")
    comp = a.label("comp")
    fin = a.label("fin")
    a(f"s_cmp_lt_u32 {s(S_W)}, 4")
    a(f"s_cbranch_scc1 {comp}")
    helper_stream(a, 28, 10, 4, 9, 2)
    a(f"s_branch {fin}")
    a(f"{comp}:")
    a("s_lshl_b32 s29, s21, 3")
    a("s_lshl_b32 s30, s26, 2")
    a("s_add_u32 s29, s29, s30")
    a(f"s_add_u32 s29, s29, {s(S_W)}")
    a(f"s_mul_i32 s30, s29, {40*1024}")
    a(f"s_add_u32 s30, s30, {X}")
    a("v_lshlrev_b32 v2, 4, v0")
    a("v_and_b32 v5, 31, v0")
    a("v_lshrrev_b32 v6, 5, v0")
    a("v_lshlrev_b32 v7, 6, v5")
    a("v_lshl_add_u32 v7, v6, 5, v7")
    a("s_lshl_b32 s31, s29, 11")
    a(f"s_add_u32 s31, s31, {ST}")
    a(f"buffer_load_dwordx4 v[8:11], v7, {s(S_WS,4)}, s31 offen")
    a(f"buffer_load_dwordx4 v[12:15], v7, {s(S_WS,4)}, s31 offen offset:16")
    a("s_lshl_b32 s32, s27, 9")
    a(f"s_add_u32 s32, s32, {CSQ}")
    a("s_lshr_b32 s33, s29, 1")
    a("s_and_b32 s34, s29, 1")
    vpath = a.label("vpath")
    a("s_cmp_ge_u32 s27, 10")
    a(f"s_cbranch_scc1 {vpath}")

    cs = {}

    def mk_cs(i):
        def f(reg):
            cs[i] = reg
            a(f"buffer_load_dwordx4 {v(reg,4)}, v16, {s(S_WS,4)}, s32 offen offset:{(i//4)*128 + (i%4)*32}")
        return f

    g = gemm32_main(a, 4, 9, False, 30, [mk_cs(i) for i in range(16)])
    next(g)
    a("v_lshlrev_b32 v16, 4, v6")
    a("s_cmp_ge_u32 s27, 5")
    a("s_cselect_b32 s35, 5, 0")
    a("s_sub_u32 s35, s27, s35")
    a("s_mov_b32 s36, 81920")
    a("s_cmp_ge_u32 s27, 5")
    a(f"s_cselect_b32 s36, 163840, s36")
    a(f"s_mov_b32 s37, {KVB[layer]}")
    a(f"s_mov_b32 s38, {QB[layer]}")
    a("s_cselect_b32 s37, s37, s38")
    a(f"s_cselect_b32 s39, 1.0, {fhex(QSCALE)}")
    a("v_and_b32 v17, 0x13, v5")
    a("v_and_b32 v18, 4, v5")
    a("v_lshl_or_b32 v17, v18, 1, v17")
    a("v_and_b32 v18, 8, v5")
    a("v_lshrrev_b32 v18, 1, v18")
    a("v_or_b32 v17, v17, v18")
    a("s_cselect_b32 s40, -1, 0")
    a("s_cselect_b32 s41, -1, 0")
    a("v_cndmask_b32 v17, v5, v17, s[40:41]")
    a("s_mul_i32 s42, s33, 5120")
    a("s_lshl_b32 s43, s34, 10")
    a("s_add_u32 s43, s43, s42")
    a("s_lshl_b32 s44, s34, 8")
    a("s_add_u32 s44, s44, s42")
    a("s_add_u32 s44, s44, 1024")
    a("s_mul_i32 s45, s29, 1280")
    a("s_cmp_ge_u32 s27, 5")
    a("s_cselect_b32 s43, s43, s45")
    a("s_cselect_b32 s44, s44, s45")
    a("v_lshlrev_b32 v18, 4, v17")
    a("v_add_u32 v18, s43, v18")
    a("v_lshlrev_b32 v19, 3, v17")
    a("v_add_u32 v19, s44, v19")
    a("s_lshl_b32 s46, s35, 5")
    a("s_mov_b32 s47, 52429")
    for i in range(16):
        a(f"s_add_u32 s48, s46, {2*i}")
        a("v_add_u32 v20, s48, v6")
        a("v_mul_u32_u24 v21, s47, v20")
        a("v_lshrrev_b32 v21, 18, v21")
        a("v_mul_u32_u24 v22, 5, v21")
        a("v_sub_u32 v22, v20, v22")
        a("v_cmp_eq_u32 vcc, 4, v22")
        a("v_mul_lo_u32 v21, v21, s36")
        a("v_lshrrev_b32 v23, 1, v22")
        a("v_cndmask_b32 v20, v18, v19, vcc")
        a("v_lshl_add_u32 v21, v23, 9, v21")
        a("v_and_b32 v22, 1, v22")
        a("v_lshl_add_u32 v21, v22, 3, v21")
        a(f"v_add_u32 {v(32+i)}, v21, v20")
    next(g)
    ln_stats(a, 8, False)
    a("v_mul_f32 v9, s39, v9")
    a("v_sub_f32 v10, 0, v8")
    a("v_mov_b32 v11, v10")
    a("v_mov_b32 v8, v9")
    a("s_waitcnt vmcnt(0)")
    for i in range(16):
        r = G_ACC + 4 * i
        for p in range(2):
            a(f"v_pk_fma_f32 {v(r+2*p,2)}, {v(cs[i]+2*p,2)}, v[10:11], {v(r+2*p,2)}")
        for p in range(2):
            a(f"v_pk_mul_f32 {v(r+2*p,2)}, {v(r+2*p,2)}, v[8:9]")
        a(f"v_cvt_pk_bf16_f32 {v(r)}, {v(r)}, {v(r+1)}")
        a(f"v_cvt_pk_bf16_f32 {v(r+1)}, {v(r+2)}, {v(r+3)}")
        a(f"buffer_store_dwordx2 {v(r,2)}, {v(32+i)}, {s(S_WS,4)}, s37 offen")
    a(f"s_branch {fin}")

    a(f"{vpath}:")
    csv = {}

    def mk_csv(i):
        def f(reg):
            csv[i] = reg
            a(f"buffer_load_dword {v(reg)}, v16, {s(S_WS,4)}, s32 offen offset:{i*128}")
        return f

    g = gemm32_main(a, 4, 9, True, 30, [mk_csv(i) for i in range(4)])
    next(g)
    a("v_lshlrev_b32 v16, 2, v5")
    a("s_sub_u32 s35, s27, 10")
    a("s_lshl_b32 s46, s35, 7")
    a("s_mul_i32 s42, s33, 5120")
    a("s_mul_i32 s43, s34, 1280")
    a("s_add_u32 s42, s42, s43")
    a(f"s_add_u32 s42, s42, {2560 + KVB[layer]}")
    a("s_mov_b32 s47, 52429")
    a("s_mov_b32 s36, 163840")
    a("v_mul_u32_u24 v17, 320, v6")
    for t in range(4):
        a(f"s_add_u32 s48, s46, {32*t}")
        a("v_add_u32 v20, s48, v5")
        a("v_mul_u32_u24 v21, s47, v20")
        a("v_lshrrev_b32 v21, 20, v21")
        a("v_mul_u32_u24 v22, 20, v21")
        a("v_sub_u32 v22, v20, v22")
        a("v_mul_lo_u32 v21, v21, s36")
        a("v_lshl_add_u32 v21, v22, 4, v21")
        a(f"v_add_u32 {v(32+t)}, v21, v17")
    next(g)
    ln_stats(a, 8, False)
    a("v_mul_f32 v8, v8, v9")
    a("v_sub_f32 v8, 0, v8")
    a(f"s_lshl_b32 s49, {s(S_W)}, 8")
    a(f"s_add_u32 s49, s49, {144*1024}")
    a("v_lshlrev_b32 v10, 2, v5")
    a("v_add_u32 v10, s49, v10")
    a("ds_write_b32 v10, v9")
    a("ds_write_b32 v10, v8 offset:128")
    a("v_lshlrev_b32 v11, 4, v6")
    a("v_add_u32 v11, s49, v11")
    a("s_waitcnt lgkmcnt(0)")
    RR = G_WB
    for gq in range(4):
        a(f"ds_read_b128 {v(RR+4*gq,4)}, v11 offset:{32*gq}")
        a(f"ds_read_b128 {v(RR+16+4*gq,4)}, v11 offset:{128+32*gq}")
    a("s_waitcnt vmcnt(0) lgkmcnt(0)")
    for t in range(4):
        a(f"v_mov_b32 {v(csv[t]+1)}, {v(csv[t])}")
        r = G_ACC + 16 * t
        for p in range(8):
            a(f"v_pk_mul_f32 {v(r+2*p,2)}, {v(r+2*p,2)}, {v(RR+2*p,2)}")
        for p in range(8):
            a(f"v_pk_fma_f32 {v(r+2*p,2)}, {v(RR+16+2*p,2)}, {v(csv[t],2)}, {v(r+2*p,2)}")
        for p in range(8):
            a(f"v_cvt_pk_bf16_f32 {v(r+p)}, {v(r+2*p)}, {v(r+2*p+1)}")
        a(f"buffer_store_dwordx4 {v(r,4)}, {v(32+t)}, {s(S_WS,4)}, s42 offen")
        a(f"buffer_store_dwordx4 {v(r+4,4)}, {v(32+t)}, {s(S_WS,4)}, s42 offen offset:640")
    a(f"{fin}:")
    kernel_tail(a, name, 1 + 5 * layer)
    return name


def gen_mlp1(a, layer):
    name = f"mlpa{layer}_kernel"
    kernel_head(a, name, 256, [])
    X = XB[2 * layer + 1]
    ST = STB[2 * layer + 1]
    a("s_and_b32 s21, s2, 7")
    a("s_lshr_b32 s25, s2, 3")
    a("s_lshr_b32 s26, s25, 4")
    a("s_and_b32 s27, s25, 15")
    a(f"s_mul_i32 s28, s27, {120*1024}")
    a(f"s_add_u32 s28, s28, {W1T}")
    comp = a.label("comp")
    fin = a.label("fin")
    a(f"s_cmp_lt_u32 {s(S_W)}, 4")
    a(f"s_cbranch_scc1 {comp}")
    helper_stream(a, 28, 10, 3, 10, 2)
    a(f"s_branch {fin}")
    a(f"{comp}:")
    a("s_lshl_b32 s29, s21, 3")
    a("s_lshl_b32 s30, s26, 2")
    a("s_add_u32 s29, s29, s30")
    a(f"s_add_u32 s29, s29, {s(S_W)}")
    a(f"s_mul_i32 s30, s29, {40*1024}")
    a(f"s_add_u32 s30, s30, {X}")
    a("v_lshlrev_b32 v2, 4, v0")
    a("v_and_b32 v5, 31, v0")
    a("v_lshrrev_b32 v6, 5, v0")
    a("v_lshlrev_b32 v7, 6, v5")
    a("v_lshl_add_u32 v7, v6, 5, v7")
    a("s_lshl_b32 s31, s29, 11")
    a(f"s_add_u32 s31, s31, {ST}")
    a(f"buffer_load_dwordx4 v[8:11], v7, {s(S_WS,4)}, s31 offen")
    a(f"buffer_load_dwordx4 v[12:15], v7, {s(S_WS,4)}, s31 offen offset:16")
    a("s_mul_i32 s32, s27, 384")
    a(f"s_add_u32 s33, s32, {B1F}")
    a(f"s_add_u32 s32, s32, {CS1}")
    cs = {}

    def mk(i):
        def f(reg):
            cs[i] = reg
            j = i % 12
            a(f"buffer_load_dwordx4 {v(reg,4)}, v16, {s(S_WS,4)}, {'s32' if i < 12 else 's33'} offen offset:{(j//4)*128 + (j%4)*32}")
        return f

    g = gemm32_main(a, 3, 10, False, 30, [mk(i) for i in range(24)])
    next(g)
    a("v_lshlrev_b32 v16, 4, v6")
    a("v_lshrrev_b32 v17, 4, v5")
    a(f"v_mul_u32_u24 v17, {48*1024}, v17")
    a("v_and_b32 v18, 15, v5")
    a("v_lshl_add_u32 v17, v18, 4, v17")
    a("v_lshl_add_u32 v17, v6, 8, v17")
    a(f"s_mul_i32 s34, s29, {2*48*1024}")
    a(f"s_mul_i32 s35, s27, {3*1024}")
    a("s_add_u32 s34, s34, s35")
    a(f"s_add_u32 s34, s34, {HB[layer]}")
    next(g)
    ln_stats(a, 8, True)
    a("v_sub_f32 v10, 0, v8")
    a("v_mov_b32 v11, v10")
    a("v_mov_b32 v8, v9")
    k0 = -2.0 * math.sqrt(2.0 / math.pi) * math.log2(math.e)
    a(f"v_mov_b32 v12, {fhex(k0)}")
    a(f"v_mov_b32 v13, {fhex(k0)}")
    a(f"v_mov_b32 v14, {fhex(k0*0.044715)}")
    a(f"v_mov_b32 v15, {fhex(k0*0.044715)}")
    a(f"v_mov_b32 v18, 1.0")
    a(f"v_mov_b32 v19, 1.0")
    a("s_waitcnt vmcnt(0)")
    T0 = 20
    for t in range(3):
        for gp in range(2):
            r = G_ACC + 16 * t + 8 * gp
            for p in range(4):
                c = cs[4 * t + 2 * gp + p // 2] + 2 * (p % 2)
                a(f"v_pk_fma_f32 {v(r+2*p,2)}, {v(c,2)}, v[10:11], {v(r+2*p,2)}")
            for p in range(4):
                b = cs[12 + 4 * t + 2 * gp + p // 2] + 2 * (p % 2)
                a(f"v_pk_fma_f32 {v(r+2*p,2)}, {v(r+2*p,2)}, v[8:9], {v(b,2)}")
            for p in range(4):
                a(f"v_pk_mul_f32 {v(T0+2*p,2)}, {v(r+2*p,2)}, {v(r+2*p,2)}")
            for p in range(4):
                a(f"v_pk_fma_f32 {v(T0+2*p,2)}, {v(T0+2*p,2)}, v[14:15], v[12:13]")
            for p in range(4):
                a(f"v_pk_mul_f32 {v(T0+2*p,2)}, {v(T0+2*p,2)}, {v(r+2*p,2)}")
            for e in range(8):
                a(f"v_exp_f32 {v(T0+e)}, {v(T0+e)}")
            for p in range(4):
                a(f"v_pk_add_f32 {v(T0+2*p,2)}, {v(T0+2*p,2)}, v[18:19]")
            for e in range(8):
                a(f"v_rcp_f32 {v(T0+e)}, {v(T0+e)}")
            for p in range(4):
                a(f"v_pk_mul_f32 {v(r+2*p,2)}, {v(r+2*p,2)}, {v(T0+2*p,2)}")
            for p in range(4):
                a(f"v_cvt_pk_bf16_f32 {v(r+p)}, {v(r+2*p)}, {v(r+2*p+1)}")
            a(f"buffer_store_dwordx4 {v(r,4)}, v17, {s(S_WS,4)}, s34 offen offset:{t*1024 + gp*512}")
    a(f"{fin}:")
    kernel_tail(a, name, 4 + 5 * layer)
    return name


def gen_g16(a, layer, mlp2):
    name = f"{'mlpb' if mlp2 else 'wo'}{layer}_kernel"
    final = mlp2 and layer == 1
    srds = []
    if mlp2:
        srds.append((8, 7, 1280))
    if final:
        srds.append((12, 8, 2621440))
    kernel_head(a, name, 256, srds)
    KS = 48 if mlp2 else 20
    ACT = HB[layer] if mlp2 else OB[layer]
    WT = W2T if mlp2 else WOT
    XIN = XB[2 * layer + 1] if mlp2 else XB[2 * layer]
    XOUT = None if final else (XB[2 * layer + 2] if mlp2 else XB[2 * layer + 1])
    STO = None if final else (STB[2 * layer + 2] if mlp2 else STB[2 * layer + 1])
    nchunk = KS // 4
    nslot = 7
    CB = 20 * 1024
    RED = 140 * 1024
    a("s_and_b32 s21, s2, 7")
    a("s_lshr_b32 s25, s2, 3")
    a("s_lshr_b32 s26, s25, 3")
    a("s_and_b32 s27, s25, 7")
    a(f"s_mul_i32 s28, s27, {KS*5*1024}")
    a(f"s_add_u32 s28, s28, {WT}")
    comp = a.label("comp")
    fin = a.label("fin")
    a(f"s_cmp_lt_u32 {s(S_W)}, 4")
    a(f"s_cbranch_scc1 {comp}")
    helper_stream(a, 28, nchunk, 5, nslot, 2, extra_barriers=1)
    a(f"s_branch {fin}")
    a(f"{comp}:")
    ACC = 16
    WB = 56
    AW = 96
    NW = 16
    RES = 224
    a(f"s_and_b32 s29, {s(S_W)}, 1")
    a(f"s_lshr_b32 s30, {s(S_W)}, 1")
    a("s_lshl_b32 s31, s21, 4")
    a("s_lshl_b32 s32, s26, 2")
    a("s_add_u32 s31, s31, s32")
    a("s_lshl_b32 s32, s29, 1")
    a("s_add_u32 s31, s31, s32")
    a(f"s_mul_i32 s32, s31, {KS*1024}")
    a("s_lshl_b32 s33, s30, 10")
    a("s_add_u32 s32, s32, s33")
    a(f"s_add_u32 s32, s32, {ACT}")
    a("v_lshlrev_b32 v2, 4, v0")
    nk = KS // 2
    loads = []

    def act_load(i):
        for tt in range(2):
            a(f"s_add_u32 s24, s32, {tt*KS*1024 + i*2048}")
            a(f"buffer_load_dwordx4 {v(AW + 8*(i % NW) + 4*tt, 4)}, v2, {s(S_WS,4)}, s24 offen")
            loads.append((i, tt))

    for i in range(min(NW, nk)):
        act_load(i)
    a("s_add_u32 s34, s31, s30")
    a("v_and_b32 v5, 15, v0")
    a("v_lshrrev_b32 v6, 4, v0")
    a("v_lshrrev_b32 v7, 1, v6")
    a("v_lshlrev_b32 v7, 9, v7")
    a("v_lshl_add_u32 v7, v5, 4, v7")
    a("v_and_b32 v8, 1, v6")
    a("v_lshl_add_u32 v7, v8, 3, v7")
    a("s_lshr_b32 s35, s34, 1")
    a(f"s_mul_i32 s35, s35, {40*1024}")
    a("s_and_b32 s36, s34, 1")
    a("s_lshl_b32 s36, s36, 8")
    a("s_add_u32 s35, s35, s36")
    a(f"s_mul_i32 s36, s27, {5*1024}")
    a("s_add_u32 s35, s35, s36")
    a(f"s_add_u32 s36, s35, {XIN}")
    for t in range(5):
        if t == 4:
            a(f"s_add_u32 s36, s36, 4096")
        a(f"buffer_load_dwordx2 {v(RES+2*t,2)}, v7, {s(S_WS,4)}, s36 offen offset:{(t*1024) % 4096}")
        loads.append(("r", t))
    if mlp2:
        a("v_lshlrev_b32 v9, 3, v6")
        a("s_mul_i32 s37, s27, 160")
        for t in range(5):
            a(f"buffer_load_dwordx2 {v(RES+10+2*t,2)}, v9, s[8:11], s37 offen offset:{t*32}")
            loads.append(("b", t))
    a(f"s_mul_i32 s38, s30, {5*1024}")
    a("v_add_u32 v10, s38, v2")
    a("v_add_u32 v11, 0x10000, v10")
    a("v_add_u32 v12, 0x20000, v10")

    def wread(i, t):
        c = i // 2
        off = (c % nslot) * CB + (i % 2) * 10240 + t * 1024
        base = 10 + off // 65536
        a(f"ds_read_b128 {v(WB + 20*(i & 1) + 4*t, 4)}, {v(base)} offset:{off % 65536}")

    stamp(a, 0)
    a("s_barrier")
    stamp(a, 1)
    for t in range(5):
        wread(0, t)
    for i in range(nk):
        last = (i == nk - 1)
        bar = (i % 2 == 1) and not last
        for t in range(5):
            for tt in range(2):
                w = []
                if t == 0:
                    after = len(loads) - 1 - loads.index((i, tt))
                    w.append(f"vmcnt({min(after,63)})")
                if tt == 0:
                    w.append(f"lgkmcnt({4 if not last else 4-t})")
                if w:
                    a("s_waitcnt " + " ".join(w))
                D_ = v(ACC + 20 * tt + 4 * t, 4)
                a(f"v_mfma_f32_16x16x32_bf16 {D_}, {v(WB + 20*(i & 1) + 4*t, 4)}, {v(AW + 8*(i % NW) + 4*tt, 4)}, {D_ if i else 0}")
            if not last:
                if bar and t == 0:
                    a("s_barrier")
                    stamp(a, 1 + (i+1)//2)
                wread(i + 1, t)
        if i + NW < nk:
            act_load(i + NW)
    stamp(a, 13)
    a(f"s_mul_i32 s39, {s(S_W)}, 5120")
    a(f"s_add_u32 s39, s39, {RED}")
    a("v_add_u32 v13, s39, v2")
    a(f"s_xor_b32 s40, {s(S_W)}, 2")
    a("s_mul_i32 s40, s40, 5120")
    a(f"s_add_u32 s40, s40, {RED}")
    a("v_add_u32 v14, s40, v2")
    k1 = a.label("kh1")
    kj = a.label("khj")
    a("s_cmp_eq_u32 s30, 1")
    a(f"s_cbranch_scc1 {k1}")
    a.nop(4)
    for t in range(5):
        a(f"ds_write_b128 v13, {v(ACC+20+4*t,4)} offset:{t*1024}")
    a(f"s_branch {kj}")
    a(f"{k1}:")
    a.nop(4)
    for t in range(5):
        a(f"ds_write_b128 v13, {v(ACC+4*t,4)} offset:{t*1024}")
    a("s_waitcnt lgkmcnt(0)")
    for j in range(20):
        a(f"v_mov_b32 {v(ACC+j)}, {v(ACC+20+j)}")
    a(f"{kj}:")
    a("s_waitcnt lgkmcnt(0)")
    a("s_barrier")
    stamp(a, 14)
    for t in range(5):
        a(f"ds_read_b128 {v(WB+4*t,4)}, v14 offset:{t*1024}")
    a("s_waitcnt vmcnt(0)")
    a("v_mov_b32 v3, 0")
    a("v_mov_b32 v4, 0")
    if final:
        a("s_movk_i32 s41, 1280")
        a("v_mul_lo_u32 v15, v5, s41")
        a("v_lshl_add_u32 v15, v6, 3, v15")
        a(f"s_mul_i32 s42, s34, {16*1280}")
        a("s_mul_i32 s43, s27, 160")
        a("s_add_u32 s42, s42, s43")
    else:
        a(f"s_add_u32 s42, s35, {XOUT}")
    for t in range(5):
        r = ACC + 4 * t
        T = AW
        a(f"v_lshlrev_b32 {v(T)}, 16, {v(RES+2*t)}")
        a(f"v_and_b32 {v(T+1)}, 0xffff0000, {v(RES+2*t)}")
        a(f"v_lshlrev_b32 {v(T+2)}, 16, {v(RES+2*t+1)}")
        a(f"v_and_b32 {v(T+3)}, 0xffff0000, {v(RES+2*t+1)}")
        for p in range(2):
            a(f"v_pk_add_f32 {v(r+2*p,2)}, {v(r+2*p,2)}, {v(T+2*p,2)}")
        if mlp2:
            a(f"v_lshlrev_b32 {v(T)}, 16, {v(RES+10+2*t)}")
            a(f"v_and_b32 {v(T+1)}, 0xffff0000, {v(RES+10+2*t)}")
            a(f"v_lshlrev_b32 {v(T+2)}, 16, {v(RES+10+2*t+1)}")
            a(f"v_and_b32 {v(T+3)}, 0xffff0000, {v(RES+10+2*t+1)}")
            for p in range(2):
                a(f"v_pk_add_f32 {v(r+2*p,2)}, {v(r+2*p,2)}, {v(T+2*p,2)}")
        a(f"s_waitcnt lgkmcnt({4-t})")
        for p in range(2):
            a(f"v_pk_add_f32 {v(r+2*p,2)}, {v(r+2*p,2)}, {v(WB+4*t+2*p,2)}")
        a(f"v_cvt_pk_bf16_f32 {v(r)}, {v(r)}, {v(r+1)}")
        a(f"v_cvt_pk_bf16_f32 {v(r+1)}, {v(r+2)}, {v(r+3)}")
        if final:
            a(f"buffer_store_dwordx2 {v(r,2)}, v15, s[12:15], s42 offen offset:{t*32}")
        else:
            if t == 4:
                a("s_add_u32 s42, s42, 4096")
            a(f"buffer_store_dwordx2 {v(r,2)}, v7, {s(S_WS,4)}, s42 offen offset:{(t*1024) % 4096}")
            if t == 0:
                a("v_mov_b32 v9, 0x3f803f80")
            for p in range(2):
                a(f"v_dot2_f32_bf16 v3, {v(r+p)}, v9, v3")
                a(f"v_dot2_f32_bf16 v4, {v(r+p)}, {v(r+p)}, v4")
    if not final:
        a.nop(3)
        a("v_mov_b32 v2, v3")
        a("v_mov_b32 v3, v4")
        sum_xor16(a, 2, 8)
        sum_xor16(a, 3, 9)
        sum_xor32(a, 2, 8)
        sum_xor32(a, 3, 9)
        a("v_lshlrev_b32 v8, 6, v5")
        a("s_lshl_b32 s43, s34, 10")
        a("s_lshl_b32 s44, s27, 3")
        a("s_add_u32 s43, s43, s44")
        a(f"s_add_u32 s43, s43, {STO}")
        a("s_mov_b64 exec, 0xffff")
        a(f"buffer_store_dwordx2 v[2:3], v8, {s(S_WS,4)}, s43 offen")
        a("s_mov_b64 exec, -1")
    a(f"{fin}:")
    kernel_tail(a, name, (5 if mlp2 else 3) + 5 * layer)
    return name


def gen_att(a, layer):
    name = f"att{layer}_kernel"
    kernel_head(a, name, 256, [])
    SX, SY, NM, O_, VB, K16, K4, Q16, Q4, IDX = 32, 64, 96, 128, 144, 176, 184, 188, 192, 194
    a("s_and_b32 s21, s2, 7")
    a("s_lshr_b32 s25, s2, 3")
    a("s_mul_i32 s26, s25, 163840")
    a(f"s_add_u32 s26, s26, {KVB[layer]}")
    a("s_lshl_b32 s27, s21, 3")
    a(f"s_add_u32 s27, s27, {s(S_W)}")
    a("s_mul_i32 s28, s25, 81920")
    a("s_mul_i32 s29, s27, 1280")
    a("s_add_u32 s28, s28, s29")
    a(f"s_add_u32 s28, s28, {QB[layer]}")
    a("v_lshlrev_b32 v2, 4, v0")
    a("v_lshlrev_b32 v3, 3, v0")
    a("v_and_b32 v5, 31, v0")
    a("v_lshrrev_b32 v6, 5, v0")
    a("v_lshlrev_b32 v7, 3, v5")
    a(f"buffer_load_dwordx4 {v(Q16,4)}, v2, {s(S_WS,4)}, s28 offen")
    a(f"buffer_load_dwordx2 {v(Q4,2)}, v7, {s(S_WS,4)}, s28 offen offset:1024")
    a("v_mul_u32_u24 v4, 320, v6")
    a("v_lshl_add_u32 v4, v5, 4, v4")
    a(f"v_mov_b32 {v(IDX)}, 0xdddddddd")
    for j in range(32):
        a(f"v_mov_b32 {v(VB+j)}, 0x3f803f80")
        a(f"v_mov_b32 {v(NM+j)}, 0")
    a("s_mov_b32 s40, 0x000fffff")
    a("s_mov_b32 s41, 0x000fffff")
    a(f"s_and_b32 s30, {s(S_W)}, 3")
    a("s_mul_i32 s30, s30, 5120")
    a("s_add_u32 s31, s26, s30")
    a("s_mov_b32 s34, 0")
    main = a.label("main")
    a(f"{main}:")

    def issue(c):
        for j in range(5):
            a(f"s_add_u32 m0, s30, {(c % 3)*20480 + j*1024}")
            a(f"s_add_u32 s24, s31, {c*20480 + j*1024}")
            a(f"buffer_load_dwordx4 v2, {s(S_WS,4)}, s24 offen lds")

    def loader(fn):
        lab = a.label("nl")
        a(f"s_cmp_lt_u32 {s(S_W)}, 4")
        a(f"s_cbranch_scc1 {lab}")
        fn()
        a(f"{lab}:")

    def sbase(j):
        return ((j // 4) % 3) * 20480 + (j % 4) * 5120

    def readK(j):
        a(f"ds_read_b64 {v(K4,2)}, v3 offset:{sbase(j)+2048}")
        a(f"ds_read_b128 {v(K16,4)}, v2 offset:{sbase(j)}")
        a(f"ds_read_b128 {v(K16+4,4)}, v2 offset:{sbase(j)+1024}")

    def readV(j):
        a("s_mov_b64 exec, s[40:41]")
        for u in range(4):
            a(f"ds_read_b128 {v(VB+16*(j & 1)+4*u,4)}, v4 offset:{sbase(j)+2560+640*u}")
        a("s_mov_b64 exec, -1")

    def chunk_barrier(c):
        nafter = min(c + 1, 7) - c
        loader(lambda: a(f"s_waitcnt vmcnt({5*nafter})"))
        a("s_waitcnt lgkmcnt(0)")
        stamp(a, 2*c)
        a("s_barrier")
        stamp(a, 2*c+1)
        if c >= 1 and c + 2 <= 7 or c == 0:
            loader(lambda: issue(c + 2))

    def qk2b(Y):
        a(f"v_mfma_f32_32x32x4_2b_bf16 {v(Y,32)}, {v(K4,2)}, {v(Q4,2)}, {v(NM,32)}")

    def qk16(Y, t):
        a(f"v_mfma_f32_32x32x16_bf16 {v(Y+16*t,16)}, {v(K16+4*t,4)}, {v(Q16,4)}, {v(Y+16*t,16)}")

    def pv(j, X, u):
        a(f"v_smfmac_f32_32x32x32_bf16 {v(O_,16)}, {v(VB+16*(j & 1)+4*u,4)}, {v(X+8*u,8)}, {v(IDX)}")

    loader(lambda: (issue(0), issue(1)))
    for j in range(16):
        a(f"v_mov_b32 {v(O_+j)}, 0")
    a("s_waitcnt vmcnt(10)")
    lab = a.label("qw")
    a(f"s_cmp_ge_u32 {s(S_W)}, 4")
    a(f"s_cbranch_scc1 {lab}")
    a("s_waitcnt vmcnt(0)")
    a(f"{lab}:")
    chunk_barrier(0)
    readK(0)
    readV(0)
    a("s_waitcnt lgkmcnt(4)")
    qk2b(SX)
    a.nop(18)
    qk16(SX, 0)
    qk16(SX, 1)
    readK(1)
    a.nop(10)
    for j in range(32):
        X, Y = (SX, SY) if j % 2 == 0 else (SY, SX)
        e = [0]

        def E(n):
            for _ in range(n):
                a(f"v_exp_f32 {v(X+e[0])}, {v(X+e[0])}")
                e[0] += 1

        a(f"s_setprio {3 - ((j+1) % 4)}")
        nxt = j < 31
        E(2)
        if j > 0:
            pv(j - 1, Y, 3)
        E(1)
        if nxt:
            readV(j + 1)
        E(2)
        if nxt:
            a("s_waitcnt lgkmcnt(4)")
            qk2b(Y)
        E(8)
        if not nxt:
            a("s_waitcnt lgkmcnt(0)")
        pv(j, X, 0)
        E(5)
        pv(j, X, 1)
        E(3)
        if nxt:
            qk16(Y, 0)
        E(3)
        if nxt:
            qk16(Y, 1)
        E(1)
        if j + 2 < 32:
            if (j + 2) % 4 == 0:
                chunk_barrier((j + 2) // 4)
            readK(j + 2)
        E(2)
        pv(j, X, 2)
        E(5)
        assert e[0] == 32
    a.nop(2)
    pv(31, SY, 3)
    a("s_setprio 0")
    a.nop(12)
    epi = a.label("epi")
    a("s_cmp_lg_u32 s34, 0")
    a(f"s_cbranch_scc1 {epi}")
    a(f"v_cmp_nle_f32 vcc, {fhex(2.0**-64)}, {v(O_+12)}")
    a(f"v_mov_b32 v8, {fhex(2.0**64)}")
    a(f"v_cmp_nle_f32 s[36:37], {v(O_+12)}, v8")
    a("s_or_b64 vcc, vcc, s[36:37]")
    a("s_cmp_lg_u64 vcc, 0")
    a("s_cselect_b32 s35, 1, 0")
    a("v_mov_b32 v8, s35")
    a(f"s_lshl_b32 s36, {s(S_W)}, 2")
    a("s_add_u32 s36, s36, 61440")
    a("v_mov_b32 v9, s36")
    a("ds_write_b32 v9, v8")
    a("s_waitcnt lgkmcnt(0)")
    a("s_barrier")
    a("v_and_b32 v9, 7, v0")
    a("v_lshlrev_b32 v9, 2, v9")
    a("ds_read_b32 v8, v9 offset:61440")
    a("s_waitcnt lgkmcnt(0)")
    a("v_cmp_ne_u32 vcc, 0, v8")
    a("s_cbranch_vccz " + epi)
    a("s_mov_b32 s34, 1")
    a("v_mov_b32 v10, 0xff800000")
    a("s_mov_b32 s36, s26")
    a("s_mov_b32 s37, 32")
    lp = a.label("maxloop")
    a(f"{lp}:")
    a(f"buffer_load_dwordx2 {v(K4,2)}, v3, {s(S_WS,4)}, s36 offen offset:2048")
    a(f"buffer_load_dwordx4 {v(K16,4)}, v2, {s(S_WS,4)}, s36 offen")
    a(f"buffer_load_dwordx4 {v(K16+4,4)}, v2, {s(S_WS,4)}, s36 offen offset:1024")
    a("s_waitcnt vmcnt(0)")
    a(f"v_mfma_f32_32x32x4_2b_bf16 {v(SX,32)}, {v(K4,2)}, {v(Q4,2)}, 0")
    a.nop(18)
    qk16(SX, 0)
    qk16(SX, 1)
    a.nop(12)
    for j in range(16):
        a(f"v_max3_f32 v10, {v(SX+2*j)}, {v(SX+2*j+1)}, v10")
    a("s_add_u32 s36, s36, 5120")
    a("s_sub_u32 s37, s37, 1")
    a("s_cmp_lg_u32 s37, 0")
    a(f"s_cbranch_scc1 {lp}")
    a("v_mov_b32 v11, v10")
    a.nop(2)
    a("v_permlane32_swap_b32 v10, v11")
    a("v_max_f32 v10, v10, v11")
    for j in range(32):
        a(f"v_sub_f32 {v(NM+j)}, 0, v10")
    a("s_barrier")
    a(f"s_branch {main}")
    a(f"{epi}:")
    a(f"v_rcp_f32 v8, {v(O_+12)}")
    a("v_lshrrev_b32 v9, 4, v5")
    a(f"v_mul_u32_u24 v9, {20*1024}, v9")
    a("v_and_b32 v10, 15, v5")
    a("v_lshl_add_u32 v9, v10, 4, v9")
    a("s_mul_i32 s36, s25, 5")
    for i in range(3):
        a(f"s_add_u32 s37, s36, {2*i}")
        a("v_add_u32 v11, s37, v6")
        a("v_lshrrev_b32 v12, 1, v11")
        a(f"v_lshl_add_u32 {v(13+i)}, v12, 8, v9")
        a("v_and_b32 v11, 1, v11")
        a(f"v_lshl_add_u32 {v(13+i)}, v11, 3, {v(13+i)}")
    a(f"s_mul_i32 s38, s27, {2*20*1024}")
    a(f"s_add_u32 s38, s38, {OB[layer]}")
    for j in range(12):
        a(f"v_mul_f32 {v(O_+j)}, {v(O_+j)}, v8")
    for i in range(3):
        a(f"v_cvt_pk_bf16_f32 {v(O_+4*i)}, {v(O_+4*i)}, {v(O_+4*i+1)}")
        a(f"v_cvt_pk_bf16_f32 {v(O_+4*i+1)}, {v(O_+4*i+2)}, {v(O_+4*i+3)}")
        if i == 2:
            a("s_mov_b32 exec_hi, 0")
        a(f"buffer_store_dwordx2 {v(O_+4*i,2)}, {v(13+i)}, {s(S_WS,4)}, s38 offen")
    a("s_mov_b64 exec, -1")
    kernel_tail(a, name, 2 + 5 * layer)
    return name


def generate(profile=False):
    global PROFILE
    PROFILE = profile
    a = Asm()
    names = [gen_prep(a)]
    for layer in range(2):
        names.append(gen_qkv(a, layer))
        names.append(gen_att(a, layer))
        names.append(gen_g16(a, layer, False))
        names.append(gen_mlp1(a, layer))
        names.append(gen_g16(a, layer, True))
    body = a.text()
    probs = check_hazards(body)
    hdr = open("cdna_kernels/" + NAME + ".s.ref").read().split("; Override launch")[0]
    out = hdr
    for n in names:
        lds = {"pre": 32768, "att": 65536}.get(n[:3], 163840)
        out += f"; @launch kernel={n} grid=(256,1,1) block=(512,1,1) lds={lds}\n"
    out += '.amdgcn_target "amdgcn-amd-amdhsa--gfx950"\n.text\n' + body
    out += '.section .rodata,"a"\n'
    for n in names:
        out += ".p2align 6\n" + descriptor(n)
    return out, probs


if __name__ == "__main__":
    prof = "--profile" in sys.argv
    out, probs = generate(prof)
    for p in probs[:50]:
        print("HAZARD", p)
    print("hazards:", len(probs))
    path = sys.argv[1]
    open(path, "w").write(out)
    print("wrote", path, len(out), "bytes")
```

```python
import math
import struct
import sys
from asmlib import Asm, v, s, check_hazards
import gen1
from gen1 import fhex, magic, sum_xor16, sum_xor32, ln_stats, EPS, QSCALE, NAME

K = 1024
WOT = gen1.WOT
W1T = gen1.W1T
W2T = gen1.W2T
WQT = gen1.WQT
CSQ = gen1.CSQ
CS1 = gen1.CS1
B1F = gen1.B1F
CNT = 0x788000
XB = gen1.XB
STB = gen1.STB
KVB = gen1.KVB
QB = gen1.QB
OB = gen1.OB
HB = gen1.HB
PROF = gen1.PROF
WS_END = gen1.WS_END

S_WS = 4
S_W = 20
S_X = 21
S_L = 50
S_I = 51
S_CNT = 52
S_DOM = 53
S_PURE = 54
S_XCC = 55
S_DBG = 56
FORCE_IMPURE = False
WSR = s(S_WS, 4)

SYNC_LDS = 159 * K
ST = ""
LD = "sc1"
OPT = {}


ACTIVE = []


def stamp(a, name):
    if name in ACTIVE:
        gen1.stamp(a, ACTIVE.index(name))


class Loader:
    def __init__(self, a):
        self.a = a
        self.ops = []

    def dma(self, tag, n, lds, s_src, src_off, s_ldsw, fl=""):
        a = self.a
        for j in range(n):
            a(f"s_add_u32 m0, {s(s_ldsw)}, {lds + j*K}")
            a(f"s_add_u32 s24, {s(s_src)}, {src_off + j*K}")
            a(f"buffer_load_dwordx4 v2, {WSR}, s24 offen {fl} lds")
            self.ops.append(tag)

    def other(self, tag):
        self.ops.append(tag)

    def wait(self, tag):
        last = max(i for i, t in enumerate(self.ops) if t == tag)
        n = len(self.ops) - 1 - last
        self.a(f"s_waitcnt vmcnt({min(n, 63)})")


def l2_prefetch(a, L, base, nbytes, per_xcd=False, flags=""):
    sl = nbytes // 32
    pw = sl // 4
    assert pw % 128 == 0
    a("v_lshlrev_b32 v9, 7, v0")
    a(f"s_mul_i32 s25, {s(S_I)}, {sl}")
    a(f"s_and_b32 s24, {s(S_W)}, 3")
    a(f"s_mul_i32 s24, s24, {pw}")
    a("s_add_u32 s25, s25, s24")
    if per_xcd:
        a(f"s_mul_i32 s24, {s(S_X)}, {nbytes}")
        a("s_add_u32 s25, s25, s24")
    off = 0
    while off < pw:
        n = min(64, (pw - off) // 128)
        if n < 64:
            a(f"s_mov_b64 exec, {hex((1 << n) - 1)}" if n <= 31 else f"s_mov_b32 exec_hi, {hex((1 << (n-32)) - 1)}")
        a(f"s_add_u32 s24, s25, {base + off}")
        a(f"buffer_load_dword v28, v9, {WSR}, s24 offen {flags}")
        L.other("pf")
        if n < 64:
            a("s_mov_b64 exec, -1")
        off += 8192


def signal(a, phase, last_count, dom_sgpr, mem_mask):
    skip = a.label("nosig")
    imp = a.label("sigimp")
    a(f"v_mov_b32 v8, {SYNC_LDS}")
    a("v_mov_b32 v9, 1")
    a(f"s_lshl_b32 s22, {s(dom_sgpr)}, 8")
    a(f"s_add_u32 s22, s22, {s(S_CNT)}")
    a(f"s_add_u32 s22, s22, {phase*4096}")
    a("s_mov_b64 exec, 1")
    a("s_waitcnt vmcnt(0)")
    a("ds_add_rtn_u32 v10, v8, v9")
    a(f"s_and_b32 s23, {s(S_I)}, {mem_mask}")
    a("s_lshl_b32 s23, s23, 2")
    a("v_mov_b32 v8, s23")
    a("s_waitcnt lgkmcnt(0)")
    a(f"v_cmp_ne_u32 vcc, {last_count}, v10")
    a(f"s_cbranch_vccnz {skip}")
    a(f"s_cmp_eq_u32 {s(S_PURE)}, 0")
    a(f"s_cbranch_scc1 {imp}")
    a(f"buffer_store_dword v9, v8, {WSR}, s22 offen")
    a(f"s_branch {skip}")
    a(f"{imp}:")
    a("buffer_wbl2 sc1")
    a("s_waitcnt vmcnt(0)")
    a("v_mov_b32 v8, 128")
    a(f"buffer_atomic_add v9, v8, {WSR}, s22 offen sc1")
    a(f"{skip}:")
    a("s_mov_b64 exec, -1")


def wait_sync(a, phase, n, dom_sgpr):
    oth = a.label("spin")
    done = a.label("go")
    poll = a.label("poll")
    out = a.label("polled")
    imp = a.label("pollimp")
    poll2 = a.label("poll2")
    out2 = a.label("polled2")
    a(f"v_mov_b32 v8, {SYNC_LDS+4}")
    a(f"s_cmp_lg_u32 {s(S_W)}, 0")
    a(f"s_cbranch_scc1 {oth}")
    a(f"s_lshl_b32 s22, {s(dom_sgpr)}, 8")
    a(f"s_add_u32 s22, s22, {s(S_CNT)}")
    a(f"s_add_u32 s22, s22, {phase*4096}")
    a("s_mov_b32 s23, 200000")
    a(f"s_cmp_eq_u32 {s(S_PURE)}, 0")
    a(f"s_cbranch_scc1 {imp}")
    a("v_lshlrev_b32 v9, 2, v0")
    a(f"s_mov_b32 exec_lo, {hex((1 << n) - 1)}")
    a("s_mov_b32 exec_hi, 0")
    a(f"{poll}:")
    a(f"buffer_load_dword v10, v9, {WSR}, s22 offen sc1")
    a("s_sub_u32 s23, s23, 1")
    a(f"s_cbranch_scc1 {out}")
    a("s_waitcnt vmcnt(0)")
    a("v_cmp_ne_u32 vcc, 1, v10")
    a(f"s_cbranch_vccnz {poll}")
    a(f"{out}:")
    a(f"v_mov_b32 v9, {phase+1}")
    a("ds_write_b32 v8, v9")
    a(f"s_branch {done}")
    a(f"{imp}:")
    a("s_mov_b64 exec, 1")
    a("v_mov_b32 v9, 128")
    a(f"{poll2}:")
    a(f"buffer_load_dword v10, v9, {WSR}, s22 offen sc1")
    a("s_sub_u32 s23, s23, 1")
    a(f"s_cbranch_scc1 {out2}")
    a("s_waitcnt vmcnt(0)")
    a(f"v_cmp_gt_u32 vcc, {n}, v10")
    a(f"s_cbranch_vccnz {poll2}")
    a(f"{out2}:")
    a("s_waitcnt vmcnt(0)")
    a("buffer_inv sc1")
    a("s_waitcnt vmcnt(0)")
    a(f"s_branch {out}")
    a(f"{oth}:")
    a("s_mov_b64 exec, 1")
    a("s_mov_b32 s23, 8000000")
    sp = a.label("sp")
    a(f"{sp}:")
    a("ds_read_b32 v9, v8")
    a("s_sub_u32 s23, s23, 1")
    a(f"s_cbranch_scc1 {done}")
    a("s_waitcnt lgkmcnt(0)")
    a(f"v_cmp_gt_u32 vcc, {phase+1}, v9")
    a(f"s_cbranch_vccnz {sp}")
    a(f"{done}:")
    a("s_waitcnt lgkmcnt(0)")
    a("s_mov_b64 exec, -1")


def publish_xcc(a):
    lab = a.label("nopub")
    a(f"s_getreg_b32 {s(S_XCC)}, hwreg(HW_REG_XCC_ID)")
    a(f"s_and_b32 {s(S_XCC)}, {s(S_XCC)}, 7")
    a(f"s_mul_i32 s22, {s(S_XCC)}, {s(S_XCC)}")
    a("s_lshl_b32 s22, s22, 8")
    a(f"s_add_u32 s22, s22, {s(S_XCC)}")
    a("s_lshl_b32 s22, s22, 8")
    a(f"s_add_u32 {s(S_XCC)}, s22, 1")
    a(f"s_or_b32 s22, {s(S_W)}, s34")
    a(f"s_cbranch_scc1 {lab}")
    a(f"v_mov_b32 v8, {s(S_XCC)}")
    a(f"s_lshl_b32 s22, {s(S_X)}, 5")
    a("v_mov_b32 v9, s22")
    a("s_mov_b64 exec, 1")
    a(f"buffer_atomic_add v8, v9, {s(S_DBG,4)}, 0 offen sc1")
    a("s_mov_b64 exec, -1")
    a(f"{lab}:")


def purity_load(a):
    a(f"s_lshl_b32 s22, {s(S_X)}, 5")
    a("v_mov_b32 v26, s22")
    a(f"buffer_load_dword v27, v26, {s(S_DBG,4)}, 0 offen sc1")


def purity_check(a):
    lp = a.label("pur")
    ok = a.label("purok")
    a("s_mov_b32 s23, 200000")
    a(f"{lp}:")
    a("v_readfirstlane_b32 s22, v27")
    a("s_and_b32 s24, s22, 0xff")
    a("s_cmp_eq_u32 s24, 32")
    a(f"s_cbranch_scc1 {ok}")
    a(f"buffer_load_dword v27, v26, {s(S_DBG,4)}, 0 offen sc1")
    a("s_waitcnt vmcnt(0)")
    a("s_sub_u32 s23, s23, 1")
    a(f"s_cbranch_scc0 {lp}")
    a(f"{ok}:")
    a(f"s_lshl_b32 s24, {s(S_XCC)}, 5")
    a("s_cmp_eq_u32 s24, s22")
    a(f"s_cselect_b32 {s(S_PURE)}, {0 if FORCE_IMPURE else 1}, 0")


RB = 100 * K


STG = 160
W1_ADDR = [120 * K, 146 * K] + [(c - 2) * 12 * K for c in range(2, 10)]


def att_phase(a, L):
    SX, SY, O0, O1, VB, K16, K4, Q4, QA, IDX = 32, 64, 96, 112, 128, 144, 148, 150, 152, 30
    a(f"s_mul_i32 s26, {s(S_I)}, 163840")
    a(f"s_mul_i32 s22, {s(S_L)}, {KVB[1]-KVB[0]}")
    a("s_add_u32 s26, s26, s22")
    a(f"s_add_u32 s26, s26, {KVB[0]}")
    a("v_lshlrev_b32 v2, 4, v0")
    a(f"s_and_b32 s29, {s(S_W)}, 3")
    a(f"s_lshr_b32 s33, {s(S_W)}, 2")
    a("s_mov_b32 s34, 0")

    def loader(fn):
        lab = a.label("nl")
        a(f"s_cmp_lt_u32 {s(S_W)}, 4")
        a(f"s_cbranch_scc1 {lab}")
        fn()
        a(f"{lab}:")

    def lin(tag, n, off):
        a(f"s_mul_i32 s30, s29, {n*K}")
        a("s_add_u32 s31, s26, s30")
        L.dma(tag, n, RB + off, 31, off, 30)

    loader(lambda: lin("p0", 3, 0))
    a(f"s_lshl_b32 s27, {s(S_X)}, 3")
    a("s_lshl_b32 s22, s29, 1")
    a("s_add_u32 s27, s27, s22")
    a(f"s_mul_i32 s28, {s(S_I)}, 81920")
    a("s_mul_i32 s22, s27, 1280")
    a("s_add_u32 s28, s28, s22")
    a(f"s_mul_i32 s22, {s(S_L)}, {QB[1]-QB[0]}")
    a("s_add_u32 s28, s28, s22")
    a(f"s_add_u32 s28, s28, {QB[0]}")
    a("v_and_b32 v5, 31, v0")
    a("v_lshrrev_b32 v6, 5, v0")
    a("v_mul_u32_u24 v7, 1280, v6")
    a("v_lshl_add_u32 v7, v5, 3, v7")
    a(f"buffer_load_dwordx4 {v(QA,4)}, v2, {WSR}, s28 offen")
    a(f"buffer_load_dwordx4 {v(QA+4,4)}, v2, {WSR}, s28 offen offset:1280")
    a(f"buffer_load_dwordx2 {v(Q4,2)}, v7, {WSR}, s28 offen offset:1024")
    for _ in range(3):
        L.other("q")
    loader(lambda: lin("p1", 2, 12 * K))
    a("s_lshl_b32 s22, s33, 10")
    a(f"s_add_u32 s22, s22, {RB}")
    a("v_add_u32 v11, s22, v2")
    a("s_lshl_b32 s22, s33, 8")
    a(f"s_add_u32 s22, s22, {RB+2048}")
    a("v_mul_u32_u24 v3, 5120, v6")
    a("v_lshl_add_u32 v3, v5, 3, v3")
    a("v_add_u32 v3, s22, v3")
    a("s_mul_i32 s22, s33, 1280")
    a(f"s_add_u32 s22, s22, {RB+2560}")
    a("v_mul_u32_u24 v4, 320, v6")
    a("v_lshl_add_u32 v4, v5, 4, v4")
    a("v_add_u32 v4, s22, v4")
    a(f"v_mov_b32 {v(IDX)}, 0xdddddddd")
    a("v_mov_b32 v8, 0x3f803f80")
    a("v_cmp_eq_u32 vcc, 20, v5")
    a("s_mov_b32 s40, 0x000fffff")
    a("s_mov_b32 s41, 0x000fffff")
    for j in range(16):
        a(f"v_cndmask_b32 {v(VB+j)}, 0, v8, vcc")
    for j in range(32):
        a(f"v_mov_b32 {v(O0+j)}, 0")
    a(f"s_and_b32 s39, {s(S_I)}, 15")
    a(f"s_mul_i32 s39, s39, {120*K}")
    a("s_mul_i32 s22, s29, 3072")
    a("s_add_u32 s39, s39, s22")

    def sbase(j):
        return ((j // 4) % 3) * 20480 + (j % 4) * 5120

    def readK(j):
        if j % 2 == 0:
            a(f"ds_read_b64 {v(K4,2)}, v3 offset:{sbase(j)}")
        a(f"ds_read_b128 {v(K16,4)}, v11 offset:{sbase(j)}")

    def readV(j):
        a("s_mov_b64 exec, s[40:41]")
        for u in range(2):
            a(f"ds_read_b128 {v(VB+8*(j & 1)+4*u,4)}, v4 offset:{sbase(j)+640*u}")
        a("s_mov_b64 exec, -1")

    def qk2b(Y, j, C="0"):
        a(f"v_mfma_f32_32x32x4_2b_bf16 {v(Y,32)}, {v(K4,2)}, {v(Q4,2)}, {C} cbsz:1 abid:{j & 1}")

    def qk16(Y, t):
        a(f"v_mfma_f32_32x32x16_bf16 {v(Y+16*t,16)}, {v(K16,4)}, {v(QA+4*t,4)}, {v(Y+16*t,16)}")

    def pv(j, X, u):
        a(f"v_smfmac_f32_32x32x32_bf16 {v(O0+16*(u >> 1),16)}, {v(VB+8*(j & 1)+4*(u & 1),4)}, {v(X+8*u,8)}, {v(IDX)}")

    def w1_stage(chunks, slot0, track):
        n = slot0
        for c in chunks:
            for jj in range(3):
                a(f"s_add_u32 s24, s39, {W1T + c*12*K + jj*K}")
                a(f"buffer_load_dwordx4 {v(STG+4*n,4)}, v2, {WSR}, s24 offen")
                if track:
                    L.other("w1")
                n += 1

    def wo(cs):
        for c in cs:
            L.dma("wo", 5, c * 20480, 32, WOT + c * 20480, 30)

    def after_barrier(c):
        if c + 2 <= 7:
            L.dma(("c", c + 2), 5, RB + ((c + 2) % 3) * 20480, 31, (c + 2) * 20480, 30)
        if c == 2:
            wo([2, 3, 4])
        if c == 3:
            w1_stage([2, 3, 4], 0, True)
        if c == 4:
            w1_stage([5, 6, 7], 9, True)
        if c == 5:
            w1_stage([8, 9], 18, True)
        if c == 6:
            l2_prefetch(a, L, W2T, 1966080)
        if c == OPT.get("warmc", 1) and OPT.get("warm", 1):
            nl = a.label("nowarm")
            a(f"s_cmp_lg_u32 {s(S_L)}, 0")
            a(f"s_cbranch_scc1 {nl}")
            L3 = Loader(a)
            for b, n in ((OB[0], 327680), (XB[1], 327680), (HB[0], 786432), (XB[2], 327680), (STB[1], 16384), (STB[2], 16384)):
                l2_prefetch(a, L3, b, n, True)
            a(f"{nl}:")

    lab = a.label("qw")
    a(f"s_cmp_ge_u32 {s(S_W)}, 4")
    a(f"s_cbranch_scc1 {lab}")
    a("s_waitcnt vmcnt(0)")
    a(f"{lab}:")
    L.wait("q")
    stamp(a, "P0")
    a("s_barrier")
    stamp(a, "P0b")
    readK(0)
    readV(0)
    publish_xcc(a)
    loader(lambda: lin("p2", 3, 20 * K))
    a("s_waitcnt lgkmcnt(2)")
    qk2b(SX, 0)
    a.nop(18)
    qk16(SX, 0)
    qk16(SX, 1)
    readK(1)
    a.nop(11)
    for j in range(32):
        X, Y = (SX, SY) if j % 2 == 0 else (SY, SX)
        e = [0]

        def E(n):
            for _ in range(n):
                a(f"v_exp_f32 {v(X+e[0])}, {v(X+e[0])}")
                e[0] += 1

        if j >= 7:
            a(f"s_setprio {3 - ((j+1) % 4)}")
        else:
            a(f"s_setprio {j % 2}")
        nxt = j < 31
        E(2)
        if j > 0:
            pv(j - 1, Y, 3)
        E(1)
        if nxt:
            readV(j + 1)
        E(2)
        if nxt:
            a("s_waitcnt lgkmcnt(2)")
            qk2b(Y, j + 1)
        E(8)
        if not nxt:
            a("s_waitcnt lgkmcnt(0)")
        pv(j, X, 0)
        E(5)
        pv(j, X, 1)
        E(3)
        if nxt:
            qk16(Y, 0)
        E(3)
        if nxt:
            qk16(Y, 1)
        E(1)
        if j + 2 < 32:
            if j == 0:
                stamp(a, "p1w")
                L.wait("p1")
                a("s_barrier")
                stamp(a, "p1b")

                def f0():
                    lin("p3", 2, 32 * K)
                    lin(("c", 2), 5, 40 * K)
                loader(f0)
            elif j == 2:
                stamp(a, "p2w")
                L.wait("p2")
                a("s_waitcnt lgkmcnt(0)")
                a("s_barrier")
                stamp(a, "B1")
                loader(lambda: after_barrier(1))
            elif j == 4:
                stamp(a, "p3w")
                L.wait("p3")
                a("s_barrier")
                stamp(a, "p3b")

                def f1():
                    a(f"s_and_b32 s32, {s(S_I)}, 7")
                    a(f"s_mul_i32 s32, s32, {100*K}")
                    a("s_add_u32 s32, s32, s30")
                    wo([0, 1])
                loader(f1)
            elif (j + 2) % 4 == 0:
                c = (j + 2) // 4
                loader(lambda: L.wait(("c", c)))
                a("s_waitcnt lgkmcnt(0)")
                a("s_barrier")
                stamp(a, f"B{c}")
                loader(lambda: after_barrier(c))
                if c == 5:
                    lab = a.label("cw1")
                    a(f"s_cmp_ge_u32 {s(S_W)}, 4")
                    a(f"s_cbranch_scc1 {lab}")
                    w1_stage([0, 1], 0, False)
                    a(f"{lab}:")
                if c == 7:
                    purity_load(a)
                    a(f"v_mov_b32 v8, {SYNC_LDS}")
                    a("v_mov_b32 v9, 0")
                    a("ds_write_b32 v8, v9")
                    a("ds_write_b32 v8, v9 offset:4")
                    a("s_waitcnt lgkmcnt(0)")
            readK(j + 2)
        E(2)
        pv(j, X, 2)
        E(5)
        assert e[0] == 32
    a.nop(2)
    pv(31, SY, 3)
    a("s_setprio 0")
    stamp(a, "attend")
    red = a.label("red")
    a(f"{red}:")
    for reg, src in ((22, None), (23, 4)):
        if src is None:
            a(f"s_mov_b32 s24, {s(S_W)}")
        else:
            a(f"s_xor_b32 s24, {s(S_W)}, 4")
        a(f"s_mul_i32 {s(reg)}, s24, 3072")
        a("s_cmp_ge_u32 s24, 6")
        a(f"s_cselect_b32 s24, {22*K}, 0")
        a(f"s_add_u32 {s(reg)}, {s(reg)}, s24")
        a(f"s_add_u32 {s(reg)}, {s(reg)}, {RB}")
    a("v_add_u32 v12, s22, v2")
    a("v_add_u32 v13, s23, v2")
    a(f"v_mov_b32 v8, {fhex(2.0**64)}")
    a(f"v_cmp_nle_f32 vcc, {fhex(2.0**-64)}, {v(O0+8)}")
    a(f"v_cmp_nle_f32 s[36:37], {v(O0+8)}, v8")
    a("s_or_b32 s35, vcc_hi, s37")
    a(f"v_cmp_nle_f32 vcc, {fhex(2.0**-64)}, {v(O1+8)}")
    a(f"v_cmp_nle_f32 s[36:37], {v(O1+8)}, v8")
    a("s_or_b32 s35, s35, vcc_hi")
    a("s_or_b32 s35, s35, s37")
    a("v_mov_b32 v8, s35")
    a(f"s_lshl_b32 s36, {s(S_W)}, 2")
    a(f"s_add_u32 s36, s36, {SYNC_LDS+64}")
    a("v_mov_b32 v9, s36")
    a("ds_write_b32 v9, v8")
    k1 = a.label("kh1")
    kj = a.label("khj")
    a("s_cmp_eq_u32 s33, 1")
    a(f"s_cbranch_scc1 {k1}")
    for t in range(3):
        a(f"ds_write_b128 v12, {v(O1+4*t,4)} offset:{t*K}")
    a(f"s_branch {kj}")
    a(f"{k1}:")
    for t in range(3):
        a(f"ds_write_b128 v12, {v(O0+4*t,4)} offset:{t*K}")
    a("s_waitcnt lgkmcnt(0)")
    for j in range(6):
        a(f"v_pk_mov_b32 {v(O0+2*j,2)}, {v(O1+2*j,2)}, {v(O1+2*j,2)} op_sel:[0,1]")
    a(f"{kj}:")
    a("v_lshrrev_b32 v9, 4, v5")
    a(f"v_mul_u32_u24 v9, {20*K}, v9")
    a("v_and_b32 v10, 15, v5")
    a("v_lshl_add_u32 v9, v10, 4, v9")
    a(f"s_mul_i32 s36, {s(S_I)}, 5")
    for i in range(3):
        a(f"s_add_u32 s37, s36, {2*i}")
        a("v_add_u32 v17, s37, v6")
        a("v_lshrrev_b32 v18, 1, v17")
        a(f"v_lshl_add_u32 {v(20+i)}, v18, 8, v9")
        a("v_and_b32 v17, 1, v17")
        a(f"v_lshl_add_u32 {v(20+i)}, v17, 3, {v(20+i)}")
    a("s_add_u32 s38, s27, s33")
    a(f"s_mul_i32 s38, s38, {2*20*K}")
    a(f"s_add_u32 s38, s38, {OB[0]}")
    a("v_and_b32 v9, 7, v0")
    a("v_lshlrev_b32 v9, 2, v9")
    a(f"v_add_u32 v9, {SYNC_LDS+64}, v9")
    a("s_waitcnt vmcnt(0) lgkmcnt(0)")
    purity_check(a)
    stamp(a, "preRa")
    a("s_barrier")
    stamp(a, "Ra")
    a("ds_read_b32 v8, v9")
    for t in range(3):
        a(f"ds_read_b128 {v(O1+4*t,4)}, v13 offset:{t*K}")
    epi = a.label("epi")
    a("s_cmp_lg_u32 s34, 0")
    a(f"s_cbranch_scc1 {epi}")
    a("s_waitcnt lgkmcnt(3)")
    a("v_cmp_ne_u32 vcc, 0, v8")
    a("s_cbranch_vccz " + epi)
    a("s_mov_b32 s34, 1")
    a("v_mov_b32 v14, 0xff800000")
    a("v_mov_b32 v15, 0xff800000")
    a("v_lshlrev_b32 v16, 3, v0")
    a("s_mov_b32 s36, s26")
    a("s_mov_b32 s37, 32")
    lp = a.label("maxloop")
    a(f"{lp}:")
    a(f"buffer_load_dwordx2 {v(K4,2)}, v16, {WSR}, s36 offen offset:2048")
    for kt in range(2):
        a(f"buffer_load_dwordx4 {v(K16,4)}, v2, {WSR}, s36 offen offset:{kt*K}")
        a("s_waitcnt vmcnt(0)")
        qk2b(SX, kt)
        a.nop(18)
        qk16(SX, 0)
        qk16(SX, 1)
        a.nop(12)
        for j in range(8):
            a(f"v_max3_f32 v14, {v(SX+2*j)}, {v(SX+2*j+1)}, v14")
            a(f"v_max3_f32 v15, {v(SX+16+2*j)}, {v(SX+16+2*j+1)}, v15")
    a("s_add_u32 s36, s36, 5120")
    a("s_sub_u32 s37, s37, 1")
    a("s_cmp_lg_u32 s37, 0")
    a(f"s_cbranch_scc1 {lp}")
    for r in (14, 15):
        a(f"v_mov_b32 v16, {v(r)}")
        a.nop(2)
        a(f"v_permlane32_swap_b32 {v(r)}, v16")
        a(f"v_max_f32 {v(r)}, {v(r)}, v16")
    a("s_waitcnt lgkmcnt(0)")
    for j in range(32):
        a(f"v_sub_f32 {v(SY+j)}, 0, {v(14 + j//16)}")
        a(f"v_mov_b32 {v(O0+j)}, 0")
    a(f"v_subrev_u32 v14, {RB}, v11")
    a(f"v_subrev_u32 v15, {RB}, v4")
    a("s_lshl_b32 s22, s33, 8")
    a("v_lshlrev_b32 v16, 3, v5")
    a("v_add_u32 v16, s22, v16")
    a("s_mov_b32 s36, s26")
    a("s_mov_b32 s37, 32")
    lp = a.label("pass2")
    a(f"{lp}:")
    a(f"buffer_load_dwordx2 {v(K4,2)}, v16, {WSR}, s36 offen offset:2048")
    a(f"buffer_load_dwordx4 {v(K16,4)}, v14, {WSR}, s36 offen")
    a("s_mov_b64 exec, s[40:41]")
    a(f"buffer_load_dwordx4 {v(VB,4)}, v15, {WSR}, s36 offen")
    a(f"buffer_load_dwordx4 {v(VB+4,4)}, v15, {WSR}, s36 offen offset:640")
    a("s_mov_b64 exec, -1")
    a("s_waitcnt vmcnt(0)")
    qk2b(SX, 0, v(SY, 32))
    a.nop(18)
    qk16(SX, 0)
    qk16(SX, 1)
    a.nop(12)
    for j in range(32):
        a(f"v_exp_f32 {v(SX+j)}, {v(SX+j)}")
    a.nop(2)
    for u in range(4):
        pv(0, SX, u)
    a("s_add_u32 s36, s36, 5120")
    a("s_sub_u32 s37, s37, 1")
    a("s_cmp_lg_u32 s37, 0")
    a(f"s_cbranch_scc1 {lp}")
    a.nop(12)
    a("s_barrier")
    a(f"s_branch {red}")
    a(f"{epi}:")
    a("s_waitcnt lgkmcnt(0)")
    for p in range(6):
        a(f"v_pk_add_f32 {v(O0+2*p,2)}, {v(O0+2*p,2)}, {v(O1+2*p,2)}")
    a(f"v_mov_b32 v8, {v(O0+8)}")
    a(f"v_mov_b32 v10, {v(O0+8)}")
    a.nop(2)
    a("v_permlane32_swap_b32 v8, v10")
    a("v_rcp_f32 v10, v10")
    a.nop(1)
    a("v_mov_b32 v11, v10")
    for i in range(3):
        for p in range(2):
            a(f"v_pk_mul_f32 {v(O0+4*i+2*p,2)}, {v(O0+4*i+2*p,2)}, v[10:11]")
        a(f"v_cvt_pk_bf16_f32 {v(O0+4*i)}, {v(O0+4*i)}, {v(O0+4*i+1)}")
        a(f"v_cvt_pk_bf16_f32 {v(O0+4*i+1)}, {v(O0+4*i+2)}, {v(O0+4*i+3)}")
        if i == 2:
            a("s_mov_b32 exec_hi, 0")
        a(f"buffer_store_dwordx2 {v(O0+4*i,2)}, {v(20+i)}, {WSR}, s38 offen {ST}")
    a("s_mov_b64 exec, -1")


def lds_dump(a, reg, addr):
    a(f"ds_write_b128 {v(12 + addr // 65536)}, {v(reg,4)} offset:{addr % 65536}")


def dump_bases(a, s_part):
    a(f"v_add_u32 v12, {s(s_part)}, v2")
    a("v_add_u32 v13, 0x10000, v12")
    a("v_add_u32 v14, 0x20000, v12")


G_ACC = 64
G_WB = 128
G_AW = 160
G_NW = 14
G_CR = 216
RES = 112
WQ_ADDR = [c * 16 * K for c in range(6)] + [120 * K, 136 * K, 100 * K, 0]
QKV_SCR = 152 * K


def gemm32_main(a, NT, addr, bars, swap, s_act, s_st, tail_loads, ld):
    loads = []
    a(f"buffer_load_dwordx4 v[8:11], v7, {WSR}, {s(s_st)} offen {ld}")
    a(f"buffer_load_dwordx4 v[12:15], v7, {WSR}, {s(s_st)} offen offset:16 {ld}")

    def act_load(k):
        a(f"s_add_u32 s24, {s(s_act)}, {k*K}")
        a(f"buffer_load_dwordx4 {v(G_AW + 4*(k % G_NW), 4)}, v2, {WSR}, s24 offen {ld}")
        loads.append(("a", k))

    def wread(k, t):
        off = addr[k // 4] + ((k % 4) * NT + t) * K
        a(f"ds_read_b128 {v(G_WB + 16*(k & 1) + 4*t, 4)}, {v(2 + off // 65536)} offset:{off % 65536}")

    for k in range(G_NW):
        act_load(k)
    assert 0 in bars
    a("s_barrier")
    for t in range(NT):
        wread(0, t)
    ex = list(tail_loads)
    for k in range(40):
        after = len(loads) - 1 - loads.index(("a", k))
        last = (k == 39)
        bar = (k % 4 == 3) and not last and ((k + 1) // 4 in bars)
        for t in range(NT):
            if t == 0:
                a(f"s_waitcnt vmcnt({after}) lgkmcnt({NT-1})")
            else:
                a(f"s_waitcnt lgkmcnt({NT-1 if not last else NT-1-t})")
            A_ = v(G_WB + 16 * (k & 1) + 4 * t, 4)
            B_ = v(G_AW + 4 * (k % G_NW), 4)
            if swap:
                A_, B_ = B_, A_
            D_ = v(G_ACC + 16 * t, 16)
            a(f"v_mfma_f32_32x32x16_bf16 {D_}, {A_}, {B_}, {D_ if k else 0}")
            if not last:
                if bar and t == 0:
                    a("s_barrier")
                wread(k + 1, t)
        if k + G_NW < 40:
            act_load(k + G_NW)
        elif ex:
            f = ex.pop(0)
            f(G_AW + 4 * (k % G_NW))
            loads.append(("x", k))
    assert not ex


def g32_common(a, X, STAT):
    a(f"s_lshl_b32 s29, {s(S_DOM)}, 2")
    a(f"s_add_u32 s29, s29, {s(S_W)}")
    a(f"s_mul_i32 s30, s29, {40*K}")
    a(f"s_add_u32 s30, s30, {X}")
    a("v_lshlrev_b32 v2, 4, v0")
    a("v_add_u32 v3, 0x10000, v2")
    a("v_add_u32 v4, 0x20000, v2")
    a("v_and_b32 v5, 31, v0")
    a("v_lshrrev_b32 v6, 5, v0")
    a("v_lshlrev_b32 v7, 6, v5")
    a("v_lshl_add_u32 v7, v6, 5, v7")
    a("s_lshl_b32 s31, s29, 11")
    a(f"s_add_u32 s31, s31, {STAT}")


MLP1_BARS = {0}
QKV_BARS = {0, 2, 6, 9}
QKV0_BARS = {0, 2, 4, 6, 8, 9}
MLP2_BARS = {0, 3, 5, 7, 9}


def mlp1_compute(a):
    g32_common(a, XB[1], STB[1])
    a(f"s_and_b32 s27, {s(S_I)}, 15")
    a("s_mul_i32 s32, s27, 384")
    a(f"s_add_u32 s33, s32, {B1F}")
    a(f"s_add_u32 s32, s32, {CS1}")
    a("v_lshlrev_b32 v16, 4, v6")
    cs = {}

    def mk(i):
        def f(reg):
            cs[i] = reg
            j = i % 12
            a(f"buffer_load_dwordx4 {v(reg,4)}, v16, {WSR}, {'s32' if i < 12 else 's33'} offen offset:{(j//4)*128 + (j%4)*32}")
        return f

    fs = [mk(i) for i in range(24)]
    for i in range(10):
        fs[i](G_CR + 4 * i)
    a("v_lshrrev_b32 v17, 4, v5")
    a(f"v_mul_u32_u24 v17, {48*K}, v17")
    a("v_and_b32 v18, 15, v5")
    a("v_lshl_add_u32 v17, v18, 4, v17")
    a("v_lshl_add_u32 v17, v6, 8, v17")
    a(f"s_mul_i32 s34, s29, {2*48*K}")
    a(f"s_mul_i32 s35, s27, {3*K}")
    a("s_add_u32 s34, s34, s35")
    a(f"s_add_u32 s34, s34, {HB[0]}")
    stamp(a, "preS3")
    wait_sync(a, 1, 16, S_DOM)
    stamp(a, "S3")
    gemm32_main(a, 3, W1_ADDR, MLP1_BARS, False, 30, 31, fs[10:], LD)
    stamp(a, "preE1")
    a("s_barrier")
    stamp(a, "E1")
    ln_stats(a, 8, True)
    a("v_sub_f32 v10, 0, v8")
    a("v_mov_b32 v11, v10")
    a("v_mov_b32 v8, v9")
    k0 = -2.0 * math.sqrt(2.0 / math.pi) * math.log2(math.e)
    a(f"v_mov_b32 v12, {fhex(k0)}")
    a(f"v_mov_b32 v13, {fhex(k0)}")
    a(f"v_mov_b32 v14, {fhex(k0*0.044715)}")
    a(f"v_mov_b32 v15, {fhex(k0*0.044715)}")
    a("v_mov_b32 v18, 1.0")
    a("v_mov_b32 v19, 1.0")
    a("s_waitcnt vmcnt(0)")
    T0 = 20
    for t in range(3):
        for gp in range(2):
            r = G_ACC + 16 * t + 8 * gp
            for p in range(4):
                c = cs[4 * t + 2 * gp + p // 2] + 2 * (p % 2)
                a(f"v_pk_fma_f32 {v(r+2*p,2)}, {v(c,2)}, v[10:11], {v(r+2*p,2)}")
            for p in range(4):
                b = cs[12 + 4 * t + 2 * gp + p // 2] + 2 * (p % 2)
                a(f"v_pk_fma_f32 {v(r+2*p,2)}, {v(r+2*p,2)}, v[8:9], {v(b,2)}")
            for p in range(4):
                a(f"v_pk_mul_f32 {v(T0+2*p,2)}, {v(r+2*p,2)}, {v(r+2*p,2)}")
            for p in range(4):
                a(f"v_pk_fma_f32 {v(T0+2*p,2)}, {v(T0+2*p,2)}, v[14:15], v[12:13]")
            for p in range(4):
                a(f"v_pk_mul_f32 {v(T0+2*p,2)}, {v(T0+2*p,2)}, {v(r+2*p,2)}")
            for e in range(8):
                a(f"v_exp_f32 {v(T0+e)}, {v(T0+e)}")
            for p in range(4):
                a(f"v_pk_add_f32 {v(T0+2*p,2)}, {v(T0+2*p,2)}, v[18:19]")
            for e in range(8):
                a(f"v_rcp_f32 {v(T0+e)}, {v(T0+e)}")
            for p in range(4):
                a(f"v_pk_mul_f32 {v(r+2*p,2)}, {v(r+2*p,2)}, {v(T0+2*p,2)}")
            for p in range(4):
                a(f"v_cvt_pk_bf16_f32 {v(r+p)}, {v(r+2*p)}, {v(r+2*p+1)}")
            a(f"buffer_store_dwordx4 {v(r,4)}, v17, {WSR}, s34 offen offset:{t*K + gp*512} {ST}")


def qkv_compute(a, X, STAT, KVO, QO, addr, bars, sync, ld, fin, first=False):
    g32_common(a, X, STAT)
    if first:
        k1_prologue(a)
    a("s_lshl_b32 s32, s27, 9")
    a(f"s_add_u32 s32, s32, {CSQ}")
    a("s_lshr_b32 s33, s29, 1")
    a("s_and_b32 s34, s29, 1")
    vpath = a.label("vpath")
    a("s_cmp_ge_u32 s27, 10")
    a(f"s_cbranch_scc1 {vpath}")
    cs = {}

    def mk_cs(i):
        def f(reg):
            cs[i] = reg
            a(f"buffer_load_dwordx4 {v(reg,4)}, v16, {WSR}, s32 offen offset:{(i//4)*128 + (i%4)*32}")
        return f

    a("v_lshlrev_b32 v16, 4, v6")
    fs = [mk_cs(i) for i in range(16)]
    if not first:
        for i in range(10):
            fs[i](G_CR + 4 * i)
    a("s_cmp_ge_u32 s27, 5")
    a("s_cselect_b32 s35, 5, 0")
    a("s_sub_u32 s35, s27, s35")
    a("s_mov_b32 s36, 81920")
    a("s_cmp_ge_u32 s27, 5")
    a("s_cselect_b32 s36, 163840, s36")
    a(f"s_mov_b32 s37, {KVO}")
    a(f"s_mov_b32 s38, {QO}")
    a("s_cselect_b32 s37, s37, s38")
    a(f"s_cselect_b32 s39, 1.0, {fhex(QSCALE)}")
    a("v_and_b32 v17, 0x13, v5")
    a("v_and_b32 v18, 4, v5")
    a("v_lshl_or_b32 v17, v18, 1, v17")
    a("v_and_b32 v18, 8, v5")
    a("v_lshrrev_b32 v18, 1, v18")
    a("v_or_b32 v17, v17, v18")
    a("s_cselect_b32 s40, -1, 0")
    a("s_cselect_b32 s41, -1, 0")
    a("v_cndmask_b32 v17, v5, v17, s[40:41]")
    a("s_mul_i32 s42, s33, 5120")
    a("s_lshl_b32 s43, s34, 10")
    a("s_add_u32 s43, s43, s42")
    a("s_lshl_b32 s44, s34, 8")
    a("s_add_u32 s44, s44, s42")
    a("s_add_u32 s44, s44, 1024")
    a("s_mul_i32 s45, s29, 1280")
    a("s_cmp_ge_u32 s27, 5")
    a("s_cselect_b32 s43, s43, s45")
    a("s_cselect_b32 s44, s44, s45")
    a("v_lshlrev_b32 v18, 4, v17")
    a("v_add_u32 v18, s43, v18")
    a("v_lshlrev_b32 v19, 3, v17")
    a("v_add_u32 v19, s44, v19")
    a("s_lshl_b32 s46, s35, 5")
    a("s_mov_b32 s47, 52429")
    for i in range(16):
        a(f"s_add_u32 s48, s46, {2*i}")
        a("v_add_u32 v20, s48, v6")
        a("v_mul_u32_u24 v21, s47, v20")
        a("v_lshrrev_b32 v21, 18, v21")
        a("v_mul_u32_u24 v22, 5, v21")
        a("v_sub_u32 v22, v20, v22")
        a("v_cmp_eq_u32 vcc, 4, v22")
        a("v_mul_lo_u32 v21, v21, s36")
        a("v_lshrrev_b32 v23, 1, v22")
        a("v_cndmask_b32 v20, v18, v19, vcc")
        a("v_lshl_add_u32 v21, v23, 9, v21")
        a("v_and_b32 v22, 1, v22")
        a("v_lshl_add_u32 v21, v22, 3, v21")
        a(f"v_add_u32 {v(32+i)}, v21, v20")
    sync()
    if first:
        k1_main(a, False)
        a(f"v_add_u32 v16, {K1_CS}, v16")
        for i in range(16):
            cs[i] = G_AW + 4 * i
            a(f"ds_read_b128 {v(cs[i],4)}, v16 offset:{(i//4)*128 + (i%4)*32}")
    else:
        gemm32_main(a, 4, addr, bars, False, 30, 31, fs[10:], ld)
    stamp(a, "qkvmain")
    ln_stats(a, 8, False)
    a("v_mul_f32 v9, s39, v9")
    a("v_sub_f32 v10, 0, v8")
    a("v_mov_b32 v11, v10")
    a("v_mov_b32 v8, v9")
    a("s_waitcnt vmcnt(0) lgkmcnt(0)")
    for i in range(16):
        r = G_ACC + 4 * i
        for p in range(2):
            a(f"v_pk_fma_f32 {v(r+2*p,2)}, {v(cs[i]+2*p,2)}, v[10:11], {v(r+2*p,2)}")
        for p in range(2):
            a(f"v_pk_mul_f32 {v(r+2*p,2)}, {v(r+2*p,2)}, v[8:9]")
        a(f"v_cvt_pk_bf16_f32 {v(r)}, {v(r)}, {v(r+1)}")
        a(f"v_cvt_pk_bf16_f32 {v(r+1)}, {v(r+2)}, {v(r+3)}")
        a(f"buffer_store_dwordx2 {v(r,2)}, {v(32+i)}, {WSR}, s37 offen")
    a(f"s_branch {fin}")
    a(f"{vpath}:")
    a("v_lshlrev_b32 v16, 2, v5")
    if not first:
        for i in range(4):
            a(f"buffer_load_dword {v(G_CR+2*i)}, v16, {WSR}, s32 offen offset:{i*128}")
    a("s_sub_u32 s35, s27, 10")
    a("s_lshl_b32 s46, s35, 7")
    a("s_mul_i32 s42, s33, 5120")
    a("s_mul_i32 s43, s34, 1280")
    a("s_add_u32 s42, s42, s43")
    a(f"s_add_u32 s42, s42, {2560 + KVO}")
    a("s_mov_b32 s47, 52429")
    a("s_mov_b32 s36, 163840")
    a("v_mul_u32_u24 v17, 320, v6")
    for t in range(4):
        a(f"s_add_u32 s48, s46, {32*t}")
        a("v_add_u32 v20, s48, v5")
        a("v_mul_u32_u24 v21, s47, v20")
        a("v_lshrrev_b32 v21, 20, v21")
        a("v_mul_u32_u24 v22, 20, v21")
        a("v_sub_u32 v22, v20, v22")
        a("v_mul_lo_u32 v21, v21, s36")
        a("v_lshl_add_u32 v21, v22, 4, v21")
        a(f"v_add_u32 {v(32+t)}, v21, v17")
    sync()
    if first:
        k1_main(a, True)
        a(f"v_add_u32 v16, {K1_CS}, v16")
        for i in range(4):
            a(f"ds_read_b32 {v(G_CR+2*i)}, v16 offset:{i*128}")
    else:
        gemm32_main(a, 4, addr, bars, True, 30, 31, [], ld)
    stamp(a, "qkvmain")
    ln_stats(a, 8, False)
    a("v_mul_f32 v8, v8, v9")
    a("v_sub_f32 v8, 0, v8")
    a(f"s_lshl_b32 s49, {s(S_W)}, 8")
    a(f"s_add_u32 s49, s49, {QKV_SCR}")
    a("v_lshlrev_b32 v10, 2, v5")
    a("v_add_u32 v10, s49, v10")
    a("ds_write_b32 v10, v9")
    a("ds_write_b32 v10, v8 offset:128")
    a("v_lshlrev_b32 v11, 4, v6")
    a("v_add_u32 v11, s49, v11")
    a("s_waitcnt lgkmcnt(0)")
    RR = G_WB
    for gq in range(4):
        a(f"ds_read_b128 {v(RR+4*gq,4)}, v11 offset:{32*gq}")
        a(f"ds_read_b128 {v(RR+16+4*gq,4)}, v11 offset:{128+32*gq}")
    a("s_waitcnt vmcnt(0) lgkmcnt(0)")
    for t in range(4):
        a(f"v_mov_b32 {v(G_CR+2*t+1)}, {v(G_CR+2*t)}")
        r = G_ACC + 16 * t
        for p in range(8):
            a(f"v_pk_mul_f32 {v(r+2*p,2)}, {v(r+2*p,2)}, {v(RR+2*p,2)}")
        for p in range(8):
            a(f"v_pk_fma_f32 {v(r+2*p,2)}, {v(RR+16+2*p,2)}, {v(G_CR+2*t,2)}, {v(r+2*p,2)}")
        for p in range(8):
            a(f"v_cvt_pk_bf16_f32 {v(r+p)}, {v(r+2*p)}, {v(r+2*p+1)}")
        a(f"buffer_store_dwordx4 {v(r,4)}, {v(32+t)}, {WSR}, s42 offen")
        a(f"buffer_store_dwordx4 {v(r+4,4)}, {v(32+t)}, {WSR}, s42 offen offset:640")


def g16_compute(a, mlp2, fin):
    KS = 48 if mlp2 else 20
    ACT = HB[0] if mlp2 else OB[0]
    XOUT = XB[2] if mlp2 else XB[1]
    STO = STB[2] if mlp2 else STB[1]
    CB = 20 * K
    RED = 100 * K
    ACC, WB, BIAS, AW, NW, UP = 16, 56, 96, 128, 16, 6
    a(f"s_lshr_b32 s26, {s(S_I)}, 3")
    a(f"s_and_b32 s27, {s(S_I)}, 7")
    a(f"s_and_b32 s29, {s(S_W)}, 1")
    a(f"s_lshr_b32 s30, {s(S_W)}, 1")
    a(f"s_lshl_b32 s31, {s(S_X)}, 4")
    a("s_lshl_b32 s32, s26, 2")
    a("s_add_u32 s31, s31, s32")
    a("s_lshl_b32 s32, s29, 1")
    a("s_add_u32 s31, s31, s32")
    a(f"s_mul_i32 s32, s31, {KS*K}")
    a("s_lshl_b32 s33, s30, 10")
    a("s_add_u32 s32, s32, s33")
    a(f"s_add_u32 s32, s32, {ACT}")
    a("v_lshlrev_b32 v2, 4, v0")
    a("s_add_u32 s34, s31, s30")
    a("v_and_b32 v5, 15, v0")
    a("v_lshrrev_b32 v6, 4, v0")
    a("v_lshrrev_b32 v7, 1, v6")
    a("v_lshlrev_b32 v7, 9, v7")
    a("v_lshl_add_u32 v7, v5, 4, v7")
    a("v_and_b32 v11, 1, v6")
    a("v_lshl_add_u32 v7, v11, 3, v7")
    a("s_lshr_b32 s35, s34, 1")
    a(f"s_mul_i32 s35, s35, {40*K}")
    a("s_and_b32 s36, s34, 1")
    a("s_lshl_b32 s36, s36, 8")
    a("s_add_u32 s35, s35, s36")
    a(f"s_mul_i32 s36, s27, {5*K}")
    a("s_add_u32 s35, s35, s36")
    a("s_movk_i32 s41, 1280")
    a("v_mul_lo_u32 v15, v5, s41")
    a("v_lshl_add_u32 v15, v6, 3, v15")
    a(f"s_mul_i32 s42, s34, {16*1280}")
    a("s_mul_i32 s43, s27, 160")
    a("s_add_u32 s42, s42, s43")
    if mlp2:
        a("v_lshlrev_b32 v11, 3, v6")
        for t in range(5):
            a(f"buffer_load_dwordx2 {v(BIAS+2*t,2)}, v11, s[16:19], s43 offen offset:{t*32}")
    else:
        l1 = a.label("res1")
        lj = a.label("resj")
        a(f"s_cmp_lg_u32 {s(S_L)}, 0")
        a(f"s_cbranch_scc1 {l1}")
        for t in range(5):
            a(f"buffer_load_dwordx2 {v(RES+2*t,2)}, v15, s[8:11], s42 offen offset:{t*32}")
        a(f"s_branch {lj}")
        a(f"{l1}:")
        for t in range(5):
            a(f"s_add_u32 s36, s35, {XB[2] + t*K}")
            a(f"buffer_load_dwordx2 {v(RES+2*t,2)}, v7, {WSR}, s36 offen")
        a(f"{lj}:")
    a(f"s_mul_i32 s38, s30, {5*K}")
    a("v_add_u32 v12, s38, v2")
    a("v_add_u32 v13, 0x10000, v12")
    a("v_add_u32 v14, 0x20000, v12")
    a(f"s_mul_i32 s39, {s(S_W)}, 5120")
    a(f"s_add_u32 s39, s39, {RED}")
    a("v_add_u32 v3, s39, v2")
    a(f"s_xor_b32 s40, {s(S_W)}, 2")
    a("s_mul_i32 s40, s40, 5120")
    a(f"s_add_u32 s40, s40, {RED}")
    a("v_add_u32 v4, s40, v2")
    if mlp2:
        wait_sync(a, 2, 16, S_DOM)
        stamp(a, "S4")
    else:
        stamp(a, "preS2")
        wait_sync(a, 0, 32, S_X)
        stamp(a, "S2")
    nk = KS // 2
    loads = []

    def act_load(i):
        for tt in range(2):
            a(f"s_add_u32 s24, s32, {tt*KS*K + i*2048}")
            a(f"buffer_load_dwordx4 {v(AW + 8*(i % NW) + 4*tt, 4)}, v2, {WSR}, s24 offen {LD}")
            loads.append((i, tt))

    def wread(i, t):
        c = i // 2
        off = (c % 7) * CB + (i % 2) * 10240 + t * K
        a(f"ds_read_b128 {v(WB + 20*(i & 1) + 4*t, 4)}, {v(12 + off // 65536)} offset:{off % 65536}")

    for i in range(UP):
        act_load(i)
    nxt_load = UP
    if mlp2:
        a("s_barrier")
    for t in range(5):
        wread(0, t)
    for i in range(nk):
        last = (i == nk - 1)
        bar = mlp2 and (i % 2 == 1) and not last and ((i + 1) // 2 in MLP2_BARS)
        for t in range(5):
            for tt in range(2):
                w = []
                if t == 0:
                    after = len(loads) - 1 - loads.index((i, tt))
                    w.append(f"vmcnt({min(after,63)})")
                if tt == 0:
                    w.append(f"lgkmcnt({4 if not last else 4-t})")
                if w:
                    a("s_waitcnt " + " ".join(w))
                D_ = v(ACC + 20 * tt + 4 * t, 4)
                a(f"v_mfma_f32_16x16x32_bf16 {D_}, {v(WB + 20*(i & 1) + 4*t, 4)}, {v(AW + 8*(i % NW) + 4*tt, 4)}, {D_ if i else 0}")
            if not last:
                if bar and t == 0:
                    stamp(a, f"m2p{(i+1)//2}")
                    a("s_barrier")
                    stamp(a, f"m2b{(i+1)//2}")
                wread(i + 1, t)
            if t == 1 and nxt_load < nk and nxt_load - i < NW:
                act_load(nxt_load)
                nxt_load += 1
    stamp(a, "m2main" if mlp2 else "womain")
    k1 = a.label("kh1")
    kj = a.label("khj")
    a("s_cmp_eq_u32 s30, 1")
    a(f"s_cbranch_scc1 {k1}")
    a.nop(6)
    for t in range(5):
        a(f"ds_write_b128 v3, {v(ACC+20+4*t,4)} offset:{t*K}")
    a(f"s_branch {kj}")
    a(f"{k1}:")
    a.nop(6)
    for t in range(5):
        a(f"ds_write_b128 v3, {v(ACC+4*t,4)} offset:{t*K}")
    a("s_waitcnt lgkmcnt(0)")
    for j in range(10):
        a(f"v_pk_mov_b32 {v(ACC+2*j,2)}, {v(ACC+20+2*j,2)}, {v(ACC+20+2*j,2)} op_sel:[0,1]")
    a(f"{kj}:")
    T = AW
    for t in range(5):
        r = ACC + 4 * t
        for src in ([RES, BIAS] if mlp2 else [RES]):
            a(f"v_lshlrev_b32 {v(T)}, 16, {v(src+2*t)}")
            a(f"v_and_b32 {v(T+1)}, 0xffff0000, {v(src+2*t)}")
            a(f"v_lshlrev_b32 {v(T+2)}, 16, {v(src+2*t+1)}")
            a(f"v_and_b32 {v(T+3)}, 0xffff0000, {v(src+2*t+1)}")
            for p in range(2):
                a(f"v_pk_add_f32 {v(r+2*p,2)}, {v(r+2*p,2)}, {v(T+2*p,2)}")
    a("s_waitcnt lgkmcnt(0)")
    stamp(a, "preRm" if mlp2 else "preRw")
    a("s_barrier")
    stamp(a, "Rm" if mlp2 else "Rw")
    for t in range(5):
        a(f"ds_read_b128 {v(WB+4*t,4)}, v4 offset:{t*K}")
    a("v_mov_b32 v8, 0")
    a("v_mov_b32 v9, 0")
    a("v_mov_b32 v11, 0x3f803f80")
    a(f"s_add_u32 s36, s35, {XOUT}")
    a(f"s_add_u32 s37, s36, 4096")
    for t in range(5):
        r = ACC + 4 * t
        a(f"s_waitcnt lgkmcnt({4-t})")
        for p in range(2):
            a(f"v_pk_add_f32 {v(r+2*p,2)}, {v(r+2*p,2)}, {v(WB+4*t+2*p,2)}")
        a(f"v_cvt_pk_bf16_f32 {v(RES+2*t)}, {v(r)}, {v(r+1)}")
        a(f"v_cvt_pk_bf16_f32 {v(RES+2*t+1)}, {v(r+2)}, {v(r+3)}")
    if mlp2:
        nl = a.label("notlast")
        a(f"s_cmp_eq_u32 {s(S_L)}, 0")
        a(f"s_cbranch_scc1 {nl}")
        for t in range(5):
            a(f"buffer_store_dwordx2 {v(RES+2*t,2)}, v15, s[12:15], s42 offen offset:{t*32}")
        a(f"s_branch {fin}")
        a(f"{nl}:")
    for t in range(5):
        a(f"buffer_store_dwordx2 {v(RES+2*t,2)}, v7, {WSR}, {'s36' if t < 4 else 's37'} offen offset:{(t*K) % 4096} {ST}")
    for j in range(10):
        a(f"v_dot2_f32_bf16 v8, {v(RES+j)}, v11, v8")
        a(f"v_dot2_f32_bf16 v9, {v(RES+j)}, {v(RES+j)}, v9")
    a("v_lshlrev_b32 v12, 6, v5")
    a("s_lshl_b32 s43, s34, 10")
    a("s_lshl_b32 s44, s27, 3")
    a("s_add_u32 s43, s43, s44")
    a(f"s_add_u32 s43, s43, {STO}")
    sum_xor16(a, 8, 10)
    sum_xor16(a, 9, 11)
    sum_xor32(a, 8, 10)
    sum_xor32(a, 9, 11)
    a("s_mov_b64 exec, 0xffff")
    a(f"buffer_store_dwordx2 v[8:9], v12, {WSR}, s43 offen {ST}")
    a("s_mov_b64 exec, -1")


def helper_chain(a, fin):
    W2R = 20
    a("v_lshlrev_b32 v2, 4, v0")
    a(f"s_and_b32 s29, {s(S_W)}, 3")
    a("s_mul_i32 s30, s29, 5120")
    a(f"s_and_b32 s31, {s(S_I)}, 7")
    a(f"s_mul_i32 s31, s31, {240*K}")
    a("s_add_u32 s31, s31, s30")
    a("s_mul_i32 s32, s29, 3072")
    a("s_lshl_b32 s33, s29, 12")
    a(f"s_and_b32 s34, {s(S_I)}, 15")
    a("s_cmp_eq_u32 s34, 15")
    a("s_cselect_b32 s35, 1, 0")
    a(f"s_or_b32 s35, s35, {s(S_L)}")
    a(f"s_mul_i32 s34, s34, {160*K}")
    a("s_add_u32 s34, s34, s33")
    n2 = [0]
    nq = [0]
    D2 = OPT.get("d2", 2)

    def w2(n, depth):
        for _ in range(n):
            k = n2[0]
            a(f"s_add_u32 s24, s31, {W2T + (5 + k//5)*20*K + (k % 5)*K}")
            a(f"buffer_load_dwordx4 {v(W2R+4*k,4)}, v2, {WSR}, s24 offen")
            if depth:
                a(f"s_waitcnt vmcnt({depth-1})")
            n2[0] += 1

    def wq(n, depth):
        lab = a.label("noq")
        a("s_cmp_lg_u32 s35, 0")
        a(f"s_cbranch_scc1 {lab}")
        for _ in range(n):
            k = nq[0]
            a(f"s_add_u32 s24, s34, {WQT + (k//4)*16*K + (k % 4)*K}")
            a(f"buffer_load_dwordx4 {v(STG+4*k,4)}, v2, {WSR}, s24 offen")
            if depth:
                a(f"s_waitcnt vmcnt({depth-1})")
            nq[0] += 1
        a(f"{lab}:")

    NA, NB = OPT.get("na", 16), OPT.get("nb", 5)
    w2(NA, D2)
    dump_bases(a, 32)
    stamp(a, "preRw")
    a("s_barrier")
    stamp(a, "Rw")
    for k in range(24):
        lds_dump(a, STG + 4 * k, W1_ADDR[2 + k // 3] + (k % 3) * K)
    w2(NB, D2)
    a("s_waitcnt lgkmcnt(0)")
    stamp(a, "preS3")
    a("s_barrier")
    stamp(a, "S3")
    w2(35 - NA - NB, 3)
    wq(OPT.get("q1", 6), 2)
    dump_bases(a, 30)
    a("s_waitcnt vmcnt(0)")
    stamp(a, "preE1")
    a("s_barrier")
    stamp(a, "E1")
    L = Loader(a)
    for c in range(5):
        L.dma(("w2", c), 5, c * 20 * K, 31, W2T + c * 20 * K, 30)

    def dump2(c):
        for jj in range(5):
            lds_dump(a, W2R + 4 * ((c - 5) * 5 + jj), (c % 7) * 20 * K + jj * K)

    dump2(5)
    dump2(6)
    a("s_waitcnt vmcnt(0) lgkmcnt(0)")
    stamp(a, "sig4")
    a("s_barrier")
    stamp(a, "S4")
    rest = 24 - nq[0]
    q = [rest // 4 + (1 if x < rest % 4 else 0) for x in range(4)]
    wq(q[0], 0)
    stamp(a, "m2p3")
    a("s_barrier")
    stamp(a, "m2b3")
    dump2(7)
    dump2(8)
    wq(q[1], 0)
    a("s_waitcnt lgkmcnt(0)")
    stamp(a, "m2p5")
    a("s_barrier")
    stamp(a, "m2b5")
    dump2(9)
    dump2(10)
    wq(q[2], 0)
    a("s_waitcnt lgkmcnt(0)")
    stamp(a, "m2p7")
    a("s_barrier")
    stamp(a, "m2b7")
    dump2(11)
    wq(q[3], 0)
    a("s_waitcnt lgkmcnt(0)")
    stamp(a, "m2p9")
    a("s_barrier")
    stamp(a, "m2b9")
    dump_bases(a, 33)
    a("s_barrier")
    a("s_cmp_lg_u32 s35, 0")
    a(f"s_cbranch_scc1 {fin}")
    a("s_waitcnt vmcnt(0)")
    for k in range(24):
        lds_dump(a, STG + 4 * k, WQ_ADDR[k // 4] + (k % 4) * K)
    a("s_waitcnt lgkmcnt(0)")
    a("s_barrier")
    L = Loader(a)
    for c in (6, 7, 8):
        L.dma(("wq", c), 4, WQ_ADDR[c], 34, WQT + c * 16 * K, 33)
    a("s_barrier")
    L.dma(("wq", 9), 4, WQ_ADDR[9], 34, WQT + 9 * 16 * K, 33)
    L.wait(("wq", 8))
    a("s_barrier")
    L.wait(("wq", 9))
    a("s_barrier")


def roles(a):
    a(f"s_and_b32 {s(S_X)}, s2, 7")
    a(f"s_lshr_b32 {s(S_I)}, s2, 3")
    a(f"s_lshr_b32 s22, {s(S_I)}, 4")
    a(f"s_lshl_b32 {s(S_DOM)}, {s(S_X)}, 1")
    a(f"s_add_u32 {s(S_DOM)}, {s(S_DOM)}, s22")


def gen_chain(a):
    a(".globl chainb_kernel")
    a(".p2align 8")
    a(".type chainb_kernel,@function")
    a("chainb_kernel:")
    a(f"s_mov_b32 {s(S_L)}, 1")
    a("s_branch L_chain_body")
    a(".globl chaina_kernel")
    a(".p2align 8")
    a(".type chaina_kernel,@function")
    a("chaina_kernel:")
    a(f"s_mov_b32 {s(S_L)}, 0")
    a("L_chain_body:")
    name = "chain"
    if gen1.PROFILE:
        a("s_memrealtime s[96:97]")
        a("s_memtime s[94:95]")
        for i in range(16):
            a(f"s_mov_b32 s{60+2*i}, 0")
    a("s_cmp_ge_u32 s2, 256")
    a(f"s_cbranch_scc1 L_end_{name}")
    gen1.load_srd(a, S_WS, 10, WS_END)
    gen1.load_srd(a, 8, 0, 2621440)
    gen1.load_srd(a, 12, 8, 2621440)
    gen1.load_srd(a, 16, 7, 1280)
    gen1.load_srd(a, S_DBG, 9, 256)
    a("v_lshrrev_b32 v1, 6, v0")
    a("v_and_b32 v0, 63, v0")
    a(f"v_readfirstlane_b32 {s(S_W)}, v1")
    roles(a)
    a(f"s_lshl_b32 {s(S_CNT)}, {s(S_L)}, 14")
    a(f"s_add_u32 {s(S_CNT)}, {s(S_CNT)}, {CNT}")
    a("s_waitcnt lgkmcnt(0)")
    L = Loader(a)
    att_phase(a, L)
    stamp(a, "ostored")
    signal(a, 0, 7, S_X, 31)
    stamp(a, "sig2")
    fin = a.label("fin")
    comp = a.label("comp")
    a(f"s_cmp_lt_u32 {s(S_W)}, 4")
    a(f"s_cbranch_scc1 {comp}")
    helper_chain(a, fin)
    a(f"s_branch {fin}")
    a(f"{comp}:")
    a(f"s_mul_i32 s32, {s(S_W)}, 3072")
    dump_bases(a, 32)
    for k in range(6):
        lds_dump(a, STG + 4 * k, W1_ADDR[k // 3] + (k % 3) * K)
    g16_compute(a, False, fin)
    stamp(a, "xstored")
    signal(a, 1, 11, S_DOM, 15)
    stamp(a, "sig3")
    mlp1_compute(a)
    stamp(a, "hstored")
    signal(a, 2, 15, S_DOM, 15)
    stamp(a, "sig4")
    g16_compute(a, True, fin)
    signal(a, 3, 19, S_DOM, 15)
    stamp(a, "sig5")
    a(f"s_and_b32 s27, {s(S_I)}, 15")
    a("s_cmp_eq_u32 s27, 15")
    a(f"s_cbranch_scc1 {fin}")

    def sync():
        wait_sync(a, 3, 16, S_DOM)
        stamp(a, "S5")
    qkv_compute(a, XB[2], STB[2], KVB[1], QB[1], WQ_ADDR, QKV_BARS, sync, LD, fin)
    a(f"{fin}:")
    if gen1.PROFILE:
        a(f"s_lshl_b32 s22, {s(S_L)}, 8")
        a("s_add_u32 s2, s2, s22")
    gen1.kernel_tail(a, name, 1)


K1_NW = 20
K1_PC = 128 * K
K1_CS = 144 * K
K1_TA = 48


def tr_addr32(a, dst, t_imm=None, t_sgpr=None):
    a("v_bfe_u32 v24, v0, 2, 2")
    a("v_lshrrev_b32 v25, 5, v0")
    a("v_lshl_add_u32 v25, v25, 3, v24")
    a("v_lshlrev_b32 v25, 8, v25")
    a("v_bfe_u32 v26, v0, 4, 1")
    a("v_lshl_add_u32 v25, v26, 5, v25")
    a("v_and_b32 v26, 3, v0")
    a("v_lshl_add_u32 v25, v26, 3, v25")
    if t_sgpr is not None:
        a(f"v_xor_b32 v26, {s(t_sgpr)}, v24")
        a(f"v_lshl_add_u32 {v(dst)}, v26, 6, v25")
        a(f"v_add_u32 {v(dst+1)}, 0x10000, {v(dst)}")
    else:
        for t in range(4):
            a(f"v_xor_b32 v26, {t}, v24")
            a(f"v_lshl_add_u32 {v(dst+2*t)}, v26, 6, v25")
            a(f"v_add_u32 {v(dst+2*t+1)}, 0x10000, {v(dst+2*t)}")


K1_XB = 64 * K
K1_STX = 145 * K


def x_addr(a, dst, s_tile):
    a("v_and_b32 v24, 31, v0")
    a("v_bfe_u32 v25, v0, 1, 3")
    a("v_lshrrev_b32 v26, 5, v0")
    a("v_xor_b32 v25, v25, v26")
    a("v_lshlrev_b32 v24, 7, v24")
    a(f"s_lshl_b32 s22, {s(s_tile)}, 12")
    a(f"s_add_u32 s22, s22, {K1_XB}")
    a("v_add_u32 v24, s22, v24")
    for ks in range(4):
        a(f"v_xor_b32 v26, {2*ks}, v25")
        a(f"v_lshl_add_u32 {v(dst+ks)}, v26, 4, v24")


def k1_dma_setup(a):
    a("v_lshrrev_b32 v3, 4, v0")
    a("v_lshlrev_b32 v4, 2, v3")
    a("v_and_b32 v60, 15, v0")
    a("v_xor_b32 v60, v60, v4")
    a("v_lshlrev_b32 v60, 4, v60")
    a("v_mul_u32_u24 v4, 3840, v3")
    a("v_add_u32 v60, v60, v4")
    a("v_lshrrev_b32 v5, 3, v0")
    a("v_and_b32 v61, 7, v0")
    a("v_xor_b32 v61, v61, v3")
    a("v_mul_u32_u24 v5, 1280, v5")
    a("v_xor_b32 v62, 4, v61")
    a("v_lshl_add_u32 v61, v61, 4, v5")
    a("v_lshl_add_u32 v62, v62, 4, v5")
    a(f"s_mul_i32 s54, {s(S_W)}, {16*3840}")
    a("s_lshl_b32 s22, s27, 8")
    a("s_add_u32 s54, s54, s22")
    a(f"s_lshl_b32 s55, {s(S_DOM)}, 2")
    a(f"s_add_u32 s55, s55, {s(S_W)}")
    a(f"s_mul_i32 s55, s55, {32*1280}")
    a(f"s_lshl_b32 s56, {s(S_W)}, 12")


def k1_dma(a, c, j):
    if j == 0:
        a(f"s_mul_i32 s58, s57, {64*3840}")
        a("s_add_u32 s58, s58, s54")
        a("s_lshl_b32 s59, s57, 7")
        a("s_add_u32 s59, s59, s55")
    a(f"s_add_u32 m0, s56, {(c % 4)*16*K + j*K}")
    a(f"s_add_u32 s24, s58, {4*j*3840}")
    a("buffer_load_dwordx4 v60, s[12:15], s24 offen lds")
    a(f"s_add_u32 m0, s56, {K1_XB + (c % 4)*16*K + j*K}")
    a(f"s_add_u32 s24, s59, {8*j*1280}")
    a(f"buffer_load_dwordx4 {v(61 + (j & 1))}, s[8:11], s24 offen lds")
    if j == 3:
        a("s_add_u32 s57, s57, 1")
        a("s_cmp_eq_u32 s57, 10")
        a("s_cselect_b32 s57, 0, s57")


def k1_prologue(a):
    tr_addr32(a, K1_TA)
    x_addr(a, 56, S_W)
    for r in range(10, 16):
        a(f"v_mov_b32 {v(r)}, 0")


def k1_main(a, swap):
    issued = [24]

    def wread(k, t):
        off = ((k // 4) % 4) * 16 * K + (k % 4) * 4096
        r = G_WB + 16 * (k & 1) + 4 * t
        if t == 0:
            a(f"ds_read_b128 {v(G_AW + 4*(k & 1), 4)}, {v(56 + k % 4)} offset:{((k // 4) % 4) * 16 * K}")
        a(f"ds_read_b64_tr_b16 {v(r,2)}, {v(K1_TA + 2*t)} offset:{off}")
        a(f"ds_read_b64_tr_b16 {v(r+2,2)}, {v(K1_TA + 2*t)} offset:{off + K}")

    stamp(a, "k1p0")
    a("s_waitcnt vmcnt(16)")
    a("s_barrier")
    stamp(a, "k1b0")
    for t in range(4):
        wread(0, t)
    for k in range(40):
        last = (k == 39)
        bar = (k % 4 == 3) and not last
        for t in range(4):
            if last or bar:
                n = 6 - 2 * t
            else:
                n = 6 if t == 0 else 7
            if not (bar and t == 3):
                a(f"s_waitcnt lgkmcnt({n})")
            A_ = v(G_WB + 16 * (k & 1) + 4 * t, 4)
            B_ = v(G_AW + 4 * (k & 1), 4)
            if swap:
                A_, B_ = B_, A_
            D_ = v(G_ACC + 16 * t, 16)
            a(f"v_mfma_f32_32x32x16_bf16 {D_}, {A_}, {B_}, {D_ if k else 0}")
            if bar:
                if t == 2:
                    c1 = (k + 1) // 4
                    a(f"s_waitcnt vmcnt({issued[0] - 8*(c1+1)}) lgkmcnt(0)")
                    a("s_barrier")
                    stamp(a, f"k1b{c1}")
                    wread(k + 1, 0)
                    wread(k + 1, 1)
                if t == 3:
                    wread(k + 1, 2)
                    wread(k + 1, 3)
            elif not last:
                wread(k + 1, t)
            if t == 1 and k // 4 + 3 < 10:
                k1_dma(a, k // 4 + 3, k % 4)
                issued[0] += 2
    a("s_barrier")
    a(f"s_lshl_b32 s22, {s(S_W)}, 8")
    a(f"s_add_u32 s22, s22, {K1_STX}")
    a("v_lshlrev_b32 v24, 3, v5")
    a("v_add_u32 v24, s22, v24")
    a("ds_read_b64 v[8:9], v24")
    a("s_waitcnt lgkmcnt(0)")
    a("v_mul_f32 v8, 0.5, v8")
    a("v_mul_f32 v9, 0.5, v9")


def code_prefetch(a, idx_sgpr):
    here = a.label("pc")
    a("s_getpc_b64 s[22:23]")
    a(f"{here}:")
    a(f"s_sub_u32 s22, s22, {here}-L_text_begin")
    a("s_subb_u32 s23, s23, 0")
    a(f"s_mul_i32 s24, {s(idx_sgpr)}, 128*((L_text_end-L_text_begin+4095)/4096)")
    a("v_lshlrev_b32 v24, 7, v0")
    a("v_add_u32 v24, s24, v24")
    a("v_min_u32 v24, L_text_end-L_text_begin-4, v24")
    a("v_cmp_gt_u32 vcc, (L_text_end-L_text_begin+4095)/4096, v0")
    a("s_and_saveexec_b64 s[24:25], vcc")
    a("global_load_dword v130, v24, s[22:23]")
    a("s_mov_b64 exec, -1")


PIECES = [(0, 200, 16, 1280, 10, 16, False, WOT, 20, 5), (200, 480, 40, 1280, 10, 16, True, W2T, 48, 5),
          (680, 480, 36, 3072, 24, 32, False, W1T, 40, 3)]


def piece_dispatch(a, s_pid, fn):
    end = a.label("pend")
    for P in PIECES:
        nxt = a.label("pnext")
        a(f"s_cmp_ge_u32 {s(s_pid)}, {P[0]+P[1]}")
        a(f"s_cbranch_scc1 {nxt}")
        a(f"s_sub_u32 s23, {s(s_pid)}, {P[0]}")
        a(f"s_mov_b32 s24, {magic(P[4])}")
        a("s_mul_hi_u32 s25, s23, s24")
        a(f"s_mul_i32 s26, s25, {P[4]}")
        a("s_sub_u32 s26, s23, s26")
        fn(P)
        a(f"s_branch {end}")
        a(f"{nxt}:")
    a(f"{end}:")


def piece_load(a, s_pid, s_lds):
    def fn(P):
        RS = P[3]
        a(f"s_mul_i32 s25, s25, {32*RS}")
        a("s_lshl_b32 s26, s26, 7")
        a("s_add_u32 s25, s25, s26")
        a("v_lshrrev_b32 v20, 3, v0")
        a(f"v_mul_u32_u24 v20, {RS}, v20")
        a("v_and_b32 v21, 7, v0")
        a("v_lshl_add_u32 v20, v21, 4, v20")
        for j in range(4):
            a(f"s_add_u32 m0, {s(s_lds)}, {j*K}")
            a(f"s_add_u32 s24, s25, {8*j*RS}")
            a(f"buffer_load_dwordx4 v20, {s(P[2],4)}, s24 offen lds")
    piece_dispatch(a, s_pid, fn)


def piece_finish(a, s_pid, s_lds):
    def fn(P):
        typ, perm, outbase, nks, ntile = P[5:]
        a("v_lshrrev_b32 v21, 4, v0")
        a("v_bfe_u32 v22, v0, 2, 2")
        a("v_and_b32 v23, 3, v0")
        if typ == 16:
            if perm:
                a("v_lshrrev_b32 v24, 1, v21")
                a("v_lshlrev_b32 v24, 4, v24")
                a("v_and_b32 v25, 1, v21")
                a("v_lshl_add_u32 v24, v25, 2, v24")
                second = 8
            else:
                a("v_lshlrev_b32 v24, 3, v21")
                second = 4
            a("v_add_u32 v24, v24, v22")
            a("v_lshlrev_b32 v24, 7, v24")
            a("v_lshl_add_u32 v24, v23, 3, v24")
            frs = [(ft * 32, ft, 0) for ft in range(4)]
        else:
            a("v_lshrrev_b32 v24, 1, v21")
            a("v_lshlrev_b32 v24, 3, v24")
            a("v_add_u32 v24, v24, v22")
            a("v_lshlrev_b32 v24, 7, v24")
            a("v_lshl_add_u32 v24, v23, 3, v24")
            a("v_and_b32 v25, 1, v21")
            a("v_lshl_add_u32 v24, v25, 5, v24")
            second = 4
            frs = [(ks * 16 * 128 + ft * 64, ft, ks) for ft in range(2) for ks in range(2)]
        a(f"v_add_u32 v24, {s(s_lds)}, v24")
        a("v_lshlrev_b32 v20, 4, v0")
        for i, (off, ft, ks) in enumerate(frs):
            a(f"ds_read_b64_tr_b16 {v(28+4*i,2)}, v24 offset:{off}")
            a(f"ds_read_b64_tr_b16 {v(30+4*i,2)}, v24 offset:{off+second*128}")
        for i, (off, ft, ks) in enumerate(frs):
            if typ == 16:
                a("s_lshl_b32 s23, s26, 2")
                a(f"s_add_u32 s23, s23, {ft}")
                a("s_mov_b32 s28, s25")
            else:
                a("s_lshl_b32 s23, s26, 1")
                a(f"s_add_u32 s23, s23, {ft}")
                a("s_lshl_b32 s28, s25, 1")
                a(f"s_add_u32 s28, s28, {ks}")
            a(f"s_mov_b32 s24, {magic(ntile)}")
            a("s_mul_hi_u32 s24, s23, s24")
            a(f"s_mul_i32 s22, s24, {ntile}")
            a("s_sub_u32 s23, s23, s22")
            a(f"s_mul_i32 s24, s24, {nks}")
            a("s_add_u32 s24, s24, s28")
            a(f"s_mul_i32 s24, s24, {ntile}")
            a("s_add_u32 s24, s24, s23")
            a("s_lshl_b32 s24, s24, 10")
            a(f"s_add_u32 s24, s24, {outbase}")
            a(f"s_waitcnt lgkmcnt({2*(3-i)})")
            a(f"buffer_store_dwordx4 {v(28+4*i,4)}, v20, {WSR}, s24 offen")
    piece_dispatch(a, s_pid, fn)


def k1_helper(a):
    a(f"s_and_b32 s29, {s(S_W)}, 3")
    a("s_lshl_b32 s30, s29, 12")
    a("s_mov_b32 s49, s57")
    tr_addr32(a, 8, t_sgpr=29)
    a("v_and_b32 v5, 15, v0")
    a("v_lshrrev_b32 v6, 4, v0")
    a("v_bfe_u32 v16, v0, 1, 3")
    a("v_xor_b32 v16, v16, v6")
    a("v_xor_b32 v17, 4, v16")
    a("v_lshlrev_b32 v18, 7, v5")
    a(f"s_add_u32 s22, s30, {K1_XB}")
    a("v_add_u32 v18, s22, v18")
    a("v_lshl_add_u32 v16, v16, 4, v18")
    a("v_lshl_add_u32 v17, v17, 4, v18")
    a("v_xor_b32 v18, v5, v6")
    a("v_and_b32 v18, 1, v18")
    a("v_cmp_eq_u32 vcc, 0, v18")
    for r in range(4):
        a(f"v_mov_b32 {v(12+r)}, 0x3f803f80")
    for r in range(4):
        a(f"v_cndmask_b32 {v(116+r)}, 0, v12, vcc")
    for r in range(20):
        a(f"v_mov_b32 {v(56+r)}, 0")
    a("v_lshlrev_b32 v10, 4, v0")
    a(f"s_mul_i32 s32, s27, {160*K}")
    a("s_lshl_b32 s22, s29, 10")
    a("s_add_u32 s32, s32, s22")
    a(f"s_add_u32 s32, s32, {WQT}")
    a(f"s_mul_i32 s34, {s(S_DOM)}, 15")
    a("s_add_u32 s34, s34, s27")
    a("s_lshl_b32 s34, s34, 2")
    a("s_add_u32 s34, s34, s29")
    a(f"s_add_u32 s35, s30, {K1_PC}")
    a("s_mov_b32 s31, 0")
    a("s_setprio 1")
    lp = a.label("hloop")
    a(f"{lp}:")
    a("s_barrier")
    for f in range(4):
        a(f"ds_read_b128 {v(96+4*f,4)}, {v(16 + (f >> 1))} offset:{(f & 1)*2048}")
    for ks in range(4):
        a(f"ds_read_b64_tr_b16 {v(80+4*ks,2)}, v8 offset:{ks*4096}")
        a(f"ds_read_b64_tr_b16 {v(82+4*ks,2)}, v8 offset:{ks*4096 + K}")
    a("v_add_u32 v8, 0x4000, v8")
    a("v_and_b32 v8, 0xffff, v8")
    for r in (16, 17):
        a(f"v_add_u32 {v(r)}, 0x4000, {v(r)}")
        a(f"v_and_b32 {v(r)}, 0xffff, {v(r)}")
        a(f"v_or_b32 {v(r)}, 0x10000, {v(r)}")
    a("s_lshl_b32 s22, s49, 2")
    a(f"s_sub_u32 s23, {s(S_DOM)}, s22")
    a("s_and_b32 s23, s23, 15")
    a("s_add_u32 s22, s22, s23")
    a("s_lshl_b32 s22, s22, 12")
    a("s_add_u32 s22, s22, s32")
    a("s_waitcnt lgkmcnt(8)")
    for f in range(4):
        th = f & 1
        a(f"v_mfma_f32_16x16x32_bf16 {v(60+4*th,4)}, v[12:15], {v(96+4*f,4)}, {v(60+4*th,4)}")
        a(f"v_mfma_f32_16x16x32_bf16 {v(68+4*th,4)}, {v(96+4*f,4)}, {v(96+4*f,4)}, {v(68+4*th,4)}")
    a("s_waitcnt lgkmcnt(0)")
    for ks in range(4):
        a(f"v_mfma_f32_16x16x32_bf16 v[56:59], {v(80+4*ks,4)}, v[116:119], v[56:59]")
    nost = a.label("nost")
    a("s_cmp_ge_u32 s23, 4")
    a(f"s_cbranch_scc1 {nost}")
    for ks in range(4):
        lab = a.label("nost")
        a(f"s_cmp_lg_u32 s23, {ks}")
        a(f"s_cbranch_scc1 {lab}")
        a(f"buffer_store_dwordx4 {v(80+4*ks,4)}, v10, {WSR}, s22 offen")
        a(f"{lab}:")
    a(f"{nost}:")
    lab = a.label("nopl")
    a(f"s_cmp_lg_u32 s31, {OPT.get('k1pc', 6)}")
    a(f"s_cbranch_scc1 {lab}")
    piece_load(a, 34, 35)
    a(f"{lab}:")
    a("s_add_u32 s49, s49, 1")
    a("s_cmp_eq_u32 s49, 10")
    a("s_cselect_b32 s49, 0, s49")
    a("s_add_u32 s31, s31, 1")
    a("s_cmp_lt_u32 s31, 10")
    a(f"s_cbranch_scc1 {lp}")
    a("v_and_b32 v18, 3, v0")
    a("v_lshlrev_b32 v19, 3, v5")
    a("s_lshl_b32 s22, s29, 8")
    a(f"s_add_u32 s22, s22, {K1_STX}")
    a("v_add_u32 v19, s22, v19")
    for r in range(1, 4):
        a(f"v_cmp_eq_u32 vcc, {r}, v18")
        a.nop(2)
        a(f"v_cndmask_b32 v68, v68, {v(68+r)}, vcc")
        a(f"v_cndmask_b32 v72, v72, {v(72+r)}, vcc")
    a("v_mov_b32 v61, v68")
    a("v_mov_b32 v65, v72")
    a("s_mov_b32 exec_lo, 0x00f0000f")
    a("s_mov_b32 exec_hi, 0xf0000f00")
    a("ds_write_b64 v19, v[60:61]")
    a("ds_write_b64 v19, v[64:65] offset:128")
    a("s_mov_b64 exec, -1")
    a("v_lshlrev_b32 v3, 6, v5")
    a("v_lshl_add_u32 v3, v6, 4, v3")
    a("s_lshl_b32 s22, s29, 7")
    a("v_add_u32 v3, s22, v3")
    a(f"v_add_u32 v4, {K1_CS}, v3")
    a("s_lshl_b32 s22, s27, 9")
    a(f"s_add_u32 s22, s22, {CSQ}")
    a("s_mov_b32 exec_lo, 0x00030003")
    a("s_mov_b32 exec_hi, 0x00030003")
    a("ds_write_b128 v4, v[56:59]")
    lab = a.label("nocs")
    a(f"s_cmp_lg_u32 {s(S_DOM)}, 0")
    a(f"s_cbranch_scc1 {lab}")
    a(f"buffer_store_dwordx4 v[56:59], v3, {WSR}, s22 offen")
    a(f"{lab}:")
    a("s_mov_b64 exec, -1")
    a("s_waitcnt lgkmcnt(0)")
    a("s_barrier")
    a("s_setprio 0")
    a("s_waitcnt vmcnt(0)")
    piece_finish(a, 34, 35)


def k1_spare(a):
    a(f"s_lshl_b32 s34, {s(S_DOM)}, 3")
    a(f"s_add_u32 s34, s34, {s(S_W)}")
    a("s_lshl_b32 s34, s34, 1")
    a("s_add_u32 s34, s34, 960")
    a("s_add_u32 s33, s34, 1")
    a(f"s_lshl_b32 s35, {s(S_W)}, 13")
    a(f"s_add_u32 s35, s35, {64*K}")
    a("s_add_u32 s32, s35, 4096")
    a("v_mul_u32_u24 v2, 43, v0")
    a("v_lshrrev_b32 v2, 9, v2")
    a("v_mul_u32_u24 v3, 12, v2")
    a("v_sub_u32 v3, v0, v3")
    a("v_mul_u32_u24 v4, 3072, v2")
    a("v_lshl_add_u32 v4, v3, 4, v4")
    a(f"s_mul_i32 s30, {s(S_W)}, {80*3072}")
    a(f"s_mul_i32 s31, {s(S_DOM)}, 192")
    a("s_add_u32 s30, s30, s31")
    a("s_mov_b32 exec_hi, 0x0fffffff")
    for i in range(16):
        a(f"s_add_u32 s24, s30, {5*i*3072}")
        a(f"buffer_load_dwordx4 {v(64+4*i,4)}, v4, s[36:39], s24 offen")
    a("s_mov_b64 exec, -1")
    piece_load(a, 34, 35)
    piece_load(a, 33, 32)
    for j in range(8):
        a(f"v_mov_b32 {v(8+j)}, 0")
    a("v_mov_b32 v16, 0x00003f80")
    a("v_mov_b32 v17, 0x3f800000")
    a(f"s_mul_i32 s22, {s(S_W)}, {5*384}")
    a("v_mul_u32_u24 v5, 384, v2")
    a("v_lshl_add_u32 v5, v3, 5, v5")
    a("v_add_u32 v5, s22, v5")
    a("s_waitcnt vmcnt(0)")
    for i in range(16):
        for j in range(4):
            a(f"v_dot2_f32_bf16 {v(8+2*j)}, {v(64+4*i+j)}, v16, {v(8+2*j)}")
            a(f"v_dot2_f32_bf16 {v(9+2*j)}, {v(64+4*i+j)}, v17, {v(9+2*j)}")
    a("s_mov_b32 exec_hi, 0x0fffffff")
    a.nop(3)
    a("ds_write_b128 v5, v[8:11]")
    a("ds_write_b128 v5, v[12:15] offset:16")
    a("s_mov_b64 exec, -1")
    a("s_waitcnt lgkmcnt(0)")
    a("s_barrier")
    lab = a.label("nored")
    a(f"s_cmp_ge_u32 {s(S_W)}, 2")
    a(f"s_cbranch_scc1 {lab}")
    a(f"s_mul_i32 s22, {s(S_W)}, 48")
    a("v_add_u32 v6, s22, v0")
    a("v_lshlrev_b32 v7, 2, v6")
    a("v_lshlrev_b32 v18, 1, v6")
    a("s_mov_b32 exec_hi, 0xffff")
    a(f"buffer_load_ushort v19, v18, s[44:47], s31 offen")
    for i in range(40):
        a(f"ds_read_b32 {v(64+i)}, v7 offset:{384*i}")
        if i % 10 == 9:
            a("s_waitcnt lgkmcnt(0)")
    for i in range(1, 40):
        a(f"v_add_f32 v64, v64, {v(64+i)}")
    a(f"s_mul_i32 s22, {s(S_DOM)}, 384")
    a(f"s_add_u32 s23, s22, {CS1}")
    a(f"s_add_u32 s22, s22, {B1F}")
    a(f"buffer_store_dword v64, v7, {WSR}, s23 offen")
    a("s_waitcnt vmcnt(1)")
    a("v_lshlrev_b32 v19, 16, v19")
    a(f"buffer_store_dword v19, v7, {WSR}, s22 offen")
    a("s_mov_b64 exec, -1")
    a(f"{lab}:")
    piece_finish(a, 34, 35)
    a.nop(2)
    piece_finish(a, 33, 32)


def gen_k1(a):
    name = "first_kernel"
    gen1.kernel_head(a, name, 256, [(8, 0, 2621440), (12, 1, 2457600), (16, 2, 819200), (36, 4, 1966080),
                                    (40, 6, 1966080), (44, 5, 3072)])
    a.lines.pop()
    lab = a.label("nocp")
    a(f"s_cmp_lg_u32 {s(S_W)}, 7")
    a(f"s_cbranch_scc1 {lab}")
    a("s_lshr_b32 s26, s2, 3")
    if OPT.get("cpf", 1):
        code_prefetch(a, 26)
    a(f"{lab}:")
    a("s_and_b32 s22, s2, 7")
    a("s_lshr_b32 s23, s2, 3")
    a("s_lshr_b32 s24, s22, 1")
    a("s_lshl_b32 s24, s24, 2")
    a("s_lshr_b32 s25, s23, 3")
    a(f"s_add_u32 {s(S_DOM)}, s24, s25")
    a("s_and_b32 s27, s22, 1")
    a("s_lshl_b32 s27, s27, 3")
    a("s_and_b32 s23, s23, 7")
    a("s_add_u32 s27, s27, s23")
    tab = 0
    for x in range(8):
        tab |= (([0, 3, 5, 8][x >> 1] + 5 * (x & 1)) % 10 if OPT.get("rot", 1) else 0) << (4 * x)
    a(f"s_mov_b32 s57, {hex(tab)}")
    a("s_lshl_b32 s24, s22, 2")
    a("s_lshr_b32 s57, s57, s24")
    a("s_and_b32 s57, s57, 15")
    fin = a.label("fin")
    hlp = a.label("hlp")
    spare = a.label("spare")
    a("s_cmp_eq_u32 s27, 15")
    a(f"s_cbranch_scc1 {spare}")
    a(f"s_cmp_ge_u32 {s(S_W)}, 4")
    a(f"s_cbranch_scc1 {hlp}")
    k1_dma_setup(a)
    a("s_waitcnt lgkmcnt(0)")
    for c in range(2):
        for j in range(4):
            k1_dma(a, c, j)

    def third():
        for j in range(4):
            k1_dma(a, 2, j)
    qkv_compute(a, 0, 0, KVB[0], QB[0], None, None, third, "", fin, first=True)
    a(f"s_branch {fin}")
    a(f"{hlp}:")
    a("s_waitcnt lgkmcnt(0)")
    k1_helper(a)
    a(f"s_branch {fin}")
    a(f"{spare}:")
    a("s_waitcnt lgkmcnt(0)")
    k1_spare(a)
    a("v_lshlrev_b32 v2, 2, v0")
    a("v_mov_b32 v3, 0")
    a(f"s_lshl_b32 s22, {s(S_DOM)}, 3")
    a(f"s_add_u32 s22, s22, {s(S_W)}")
    a("s_lshl_b32 s22, s22, 8")
    a(f"s_add_u32 s22, s22, {CNT}")
    a(f"buffer_store_dword v3, v2, {WSR}, s22 offen")
    a(f"{fin}:")
    gen1.kernel_tail(a, name, 0)
    return name


def generate(profile=False):
    gen1.PROFILE = profile
    a = Asm()
    a("L_text_begin:")
    names = [gen_k1(a)]
    gen_chain(a)
    a("L_text_end:")
    names += ["chaina_kernel", "chainb_kernel"]
    body = a.text()
    probs = check_hazards(body)
    hdr = open("cdna_kernels/" + NAME + ".s.ref").read().split("; Override launch")[0]
    out = hdr
    for n in names:
        lds = {"pre": 32768}.get(n[:3], 163840)
        out += f"; @launch kernel={n} grid=(256,1,1) block=(512,1,1) lds={lds}\n"
    out += '.amdgcn_target "amdgcn-amd-amdhsa--gfx950"\n.text\n' + body
    out += '.section .rodata,"a"\n'
    for n in names:
        out += ".p2align 6\n" + gen1.descriptor(n)
    return out, probs


if __name__ == "__main__":
    prof = "--profile" in sys.argv
    for arg in sys.argv[2:]:
        if arg.startswith("st="):
            ACTIVE.extend(arg[3:].split(","))
        elif "=" in arg:
            OPT[arg.split("=")[0]] = int(arg.split("=")[1])
    if not ACTIVE:
        ACTIVE.extend("P0,B1,B4,B7,preRa,S2,womain,sig3,S3,E1,sig4,S4,m2main,sig5,S5,qkvmain".split(","))
    out, probs = generate(prof)
    for p in probs[:50]:
        print("HAZARD", p)
    print("hazards:", len(probs))
    path = sys.argv[1]
    if prof:
        out = "; stamps: " + ",".join(ACTIVE) + "\n" + out
    open(path, "w").write(out)
    print("wrote", path, len(out), "bytes")
```

```python
import math
import struct
import sys
from asmlib import Asm, v, s, check_hazards
import gen1
from gen1 import fhex, magic, sum_xor16, sum_xor32, ln_stats, EPS, QSCALE, NAME

K = 1024
WOT = gen1.WOT
W1T = gen1.W1T
W2T = gen1.W2T
WQT = gen1.WQT
CSQ = gen1.CSQ
CS1 = gen1.CS1
B1F = gen1.B1F
CNT = 0x788000
SCR = 0x800000
SCR_STRIDE = 1792 * K
R_O = 0
R_XA = 320 * K
R_XB = 640 * K
R_H = 960 * K
R_STA = 1728 * K
R_STB = 1744 * K
KVB = [0x1600000, 0x1B00000]
QB = [0x2000000, 0x2280000]
PROF = gen1.PROF
WS_END = gen1.WS_END

S_WS = 4
S_W = 20
S_X = 21
S_L = 50
S_I = 51
S_CNT = 52
S_DOM = 53
S_PURE = 54
S_XCC = 55
S_DBG = 56
S_SCR = 3
FORCE_IMPURE = False
WSR = s(S_WS, 4)

SYNC_LDS = 159 * K
ST = ""
LD = "sc1"
OPT = {}


ACTIVE = []
SCHED = {'a': 'w2*22', 'r': 'w*6', 'b': '', 'c': 'w3*12', 'e': 'www2', 'f': '', 'g0': '', 'g3': '', 'g5': '', 'g7': '', 'g9': ''}


def stamp(a, name):
    if name in ACTIVE:
        gen1.stamp(a, ACTIVE.index(name))


class Loader:
    def __init__(self, a):
        self.a = a
        self.ops = []

    def dma(self, tag, n, lds, s_src, src_off, s_ldsw, j0=0):
        a = self.a
        for j in range(n):
            if j % 4 == 0:
                a(f"s_add_u32 m0, {s(s_ldsw)}, {lds + (j0+j)*K}")
                a(f"s_add_u32 s24, {s(s_src)}, {src_off + (j0+j)*K}")
            a(f"buffer_load_dwordx4 v2, {WSR}, s24 offen offset:{(j % 4)*K} lds")
            self.ops.append(tag)

    def other(self, tag):
        self.ops.append(tag)

    def wait(self, tag):
        last = max(i for i, t in enumerate(self.ops) if t == tag)
        n = len(self.ops) - 1 - last
        self.a(f"s_waitcnt vmcnt({min(n, 63)})")


def touch_items(a, L, base, nbytes, s_base, lines, vaddr, s_tmp, flags="", vd=28):
    pw = nbytes // 128
    assert pw % 128 == 0
    items = []
    off = 0
    while off < pw:
        n = min(lines, (pw - off) // 128)

        def f(off=off, n=n):
            if off == 0:
                a(f"s_lshl_b32 {s(s_tmp)}, {s(S_I)}, 2")
                a(f"s_add_u32 {s(s_tmp)}, {s(s_tmp)}, s29")
                a(f"s_mul_i32 {s(s_tmp)}, {s(s_tmp)}, {pw}")
                if s_base is not None:
                    a(f"s_add_u32 {s(s_tmp)}, {s(s_tmp)}, {s(s_base)}")
            a(f"s_add_u32 s24, {s(s_tmp)}, {base + off}")
            if n < 64:
                a(f"s_mov_b64 exec, {hex((1 << n) - 1)}" if n <= 31 else f"s_mov_b32 exec_hi, {hex((1 << (n-32)) - 1)}")
            a(f"buffer_load_dword {v(vd)}, {v(vaddr)}, {WSR}, s24 offen {flags}")
            L.other("pf")
            if n < 64:
                a("s_mov_b64 exec, -1")
        items.append(f)
        off += n * 128
    return items


def signal(a, phase, last_count, dom_sgpr, mem_mask):
    skip = a.label("nosig")
    imp = a.label("sigimp")
    a(f"v_mov_b32 v8, {SYNC_LDS}")
    a("v_mov_b32 v9, 1")
    a(f"s_lshl_b32 s22, {s(dom_sgpr)}, 8")
    a(f"s_add_u32 s22, s22, {s(S_CNT)}")
    a(f"s_add_u32 s22, s22, {phase*4096}")
    a("s_mov_b64 exec, 1")
    a("s_waitcnt vmcnt(0)")
    a("ds_add_rtn_u32 v10, v8, v9")
    a(f"s_and_b32 s23, {s(S_I)}, {mem_mask}")
    a("s_lshl_b32 s23, s23, 2")
    a("v_mov_b32 v8, s23")
    a("s_waitcnt lgkmcnt(0)")
    a(f"v_cmp_ne_u32 vcc, {last_count}, v10")
    a(f"s_cbranch_vccnz {skip}")
    a(f"s_cmp_eq_u32 {s(S_PURE)}, 0")
    a(f"s_cbranch_scc1 {imp}")
    a(f"buffer_store_dword v9, v8, {WSR}, s22 offen")
    a(f"s_branch {skip}")
    a(f"{imp}:")
    a("buffer_wbl2 sc1")
    a("s_waitcnt vmcnt(0)")
    a("v_mov_b32 v8, 128")
    a(f"buffer_atomic_add v9, v8, {WSR}, s22 offen sc1")
    a(f"{skip}:")
    a("s_mov_b64 exec, -1")


def wait_sync(a, phase, n, dom_sgpr):
    oth = a.label("spin")
    done = a.label("go")
    poll = a.label("poll")
    out = a.label("polled")
    imp = a.label("pollimp")
    poll2 = a.label("poll2")
    out2 = a.label("polled2")
    a(f"v_mov_b32 v8, {SYNC_LDS+4}")
    a(f"s_cmp_lg_u32 {s(S_W)}, 0")
    a(f"s_cbranch_scc1 {oth}")
    a(f"s_lshl_b32 s22, {s(dom_sgpr)}, 8")
    a(f"s_add_u32 s22, s22, {s(S_CNT)}")
    a(f"s_add_u32 s22, s22, {phase*4096}")
    a("s_mov_b32 s23, 200000")
    a(f"s_cmp_eq_u32 {s(S_PURE)}, 0")
    a(f"s_cbranch_scc1 {imp}")
    a("v_lshlrev_b32 v9, 2, v0")
    a(f"s_mov_b32 exec_lo, {hex((1 << n) - 1)}")
    a("s_mov_b32 exec_hi, 0")
    a(f"{poll}:")
    a(f"buffer_load_dword v10, v9, {WSR}, s22 offen sc1")
    a("s_sub_u32 s23, s23, 1")
    a(f"s_cbranch_scc1 {out}")
    a("s_waitcnt vmcnt(0)")
    a("v_cmp_ne_u32 vcc, 1, v10")
    a(f"s_cbranch_vccnz {poll}")
    a(f"{out}:")
    a(f"v_mov_b32 v9, {phase+1}")
    a("ds_write_b32 v8, v9")
    a(f"s_branch {done}")
    a(f"{imp}:")
    a("s_mov_b64 exec, 1")
    a("v_mov_b32 v9, 128")
    a(f"{poll2}:")
    a(f"buffer_load_dword v10, v9, {WSR}, s22 offen sc1")
    a("s_sub_u32 s23, s23, 1")
    a(f"s_cbranch_scc1 {out2}")
    a("s_waitcnt vmcnt(0)")
    a(f"v_cmp_gt_u32 vcc, {n}, v10")
    a(f"s_cbranch_vccnz {poll2}")
    a(f"{out2}:")
    a("s_waitcnt vmcnt(0)")
    a("buffer_inv sc1")
    a("s_waitcnt vmcnt(0)")
    a(f"s_branch {out}")
    a(f"{oth}:")
    a("s_mov_b64 exec, 1")
    a("s_mov_b32 s23, 8000000")
    sp = a.label("sp")
    a(f"{sp}:")
    a("ds_read_b32 v9, v8")
    a("s_sub_u32 s23, s23, 1")
    a(f"s_cbranch_scc1 {done}")
    a("s_waitcnt lgkmcnt(0)")
    a(f"v_cmp_gt_u32 vcc, {phase+1}, v9")
    a(f"s_cbranch_vccnz {sp}")
    a(f"{done}:")
    a("s_waitcnt lgkmcnt(0)")
    a("s_mov_b64 exec, -1")


def xcc_value(a):
    a(f"s_getreg_b32 {s(S_XCC)}, hwreg(HW_REG_XCC_ID)")
    a(f"s_and_b32 {s(S_XCC)}, {s(S_XCC)}, 7")
    a(f"s_mul_i32 s22, {s(S_XCC)}, {s(S_XCC)}")
    a("s_lshl_b32 s22, s22, 8")
    a(f"s_add_u32 s22, s22, {s(S_XCC)}")
    a("s_lshl_b32 s22, s22, 8")
    a(f"s_add_u32 {s(S_XCC)}, s22, 1")
    a(f"s_lshl_b32 s22, {s(S_X)}, 5")
    a("v_mov_b32 v26, s22")


def publish_xcc(a):
    lab = a.label("nopub")
    a(f"s_cmp_lg_u32 {s(S_W)}, 0")
    a(f"s_cbranch_scc1 {lab}")
    a(f"v_mov_b32 v8, {s(S_XCC)}")
    a("s_mov_b64 exec, 1")
    a(f"buffer_atomic_add v8, v26, {s(S_DBG,4)}, 0 offen sc1")
    a("s_mov_b64 exec, -1")
    a(f"{lab}:")


def purity_load(a):
    a(f"buffer_load_dword v27, v26, {s(S_DBG,4)}, 0 offen sc1")


def purity_check(a):
    lp = a.label("pur")
    ok = a.label("purok")
    a("s_mov_b32 s23, 200000")
    a(f"{lp}:")
    a("v_readfirstlane_b32 s22, v27")
    a("s_and_b32 s24, s22, 0xff")
    a("s_cmp_eq_u32 s24, 32")
    a(f"s_cbranch_scc1 {ok}")
    a(f"buffer_load_dword v27, v26, {s(S_DBG,4)}, 0 offen sc1")
    a("s_waitcnt vmcnt(0)")
    a("s_sub_u32 s23, s23, 1")
    a(f"s_cbranch_scc0 {lp}")
    a(f"{ok}:")
    a(f"s_lshl_b32 s24, {s(S_XCC)}, 5")
    a("s_cmp_eq_u32 s24, s22")
    a(f"s_cselect_b32 {s(S_PURE)}, {0 if FORCE_IMPURE else 1}, 0")


RB = 100 * K


STG = 160
W1_ADDR = [c * 12 * K for c in range(10)]
STA = 208
RESL = 240
C1_LDS = 158 * K
CQ_LDS = 153 * K
NQS = 4


def att_phase(a):
    SX, SY, O0, O1, VB, K16, K4, Q4, QA, IDX = 32, 64, 96, 112, 128, 144, 148, 150, 152, 30
    a(f"s_mul_i32 s26, {s(S_I)}, 163840")
    a(f"s_mul_i32 s22, {s(S_L)}, {KVB[1]-KVB[0]}")
    a("s_add_u32 s26, s26, s22")
    a(f"s_add_u32 s26, s26, {KVB[0]}")
    a("v_lshlrev_b32 v2, 4, v0")
    a(f"s_lshl_b32 s30, {s(S_W)}, 10")
    a("s_add_u32 s31, s26, s30")
    a(f"s_add_u32 m0, s30, {RB}")
    a(f"s_and_b32 s29, {s(S_W)}, 3")
    a(f"s_lshr_b32 s33, {s(S_W)}, 2")
    a("s_lshl_b32 s27, s29, 1")
    a(f"s_lshl_b32 s22, {s(S_X)}, 3")
    a("s_add_u32 s22, s22, s27")
    a("s_mul_i32 s22, s22, 1280")
    a(f"s_mul_i32 s28, {s(S_I)}, 81920")
    a("s_add_u32 s28, s28, s22")
    a(f"s_mul_i32 s22, {s(S_L)}, {QB[1]-QB[0]}")
    a("s_add_u32 s28, s28, s22")
    a(f"s_add_u32 s28, s28, {QB[0]}")
    a("s_mul_i32 s22, s33, 1280")
    a("s_add_u32 s23, s28, s22")
    a("s_sub_u32 s22, s28, s22")
    a("v_and_b32 v5, 31, v0")
    a("v_lshrrev_b32 v6, 5, v0")
    a("v_xor_b32 v7, s33, v6")
    a("v_mul_u32_u24 v7, 1280, v7")
    a("v_lshl_add_u32 v7, v5, 3, v7")
    a("s_waitcnt lgkmcnt(0)")
    a(f"buffer_load_dwordx4 v2, {WSR}, s31 offen lds")
    a(f"buffer_load_dwordx4 {v(QA,4)}, v2, {WSR}, s23 offen")
    a(f"buffer_load_dwordx4 {v(QA+4,4)}, v2, {WSR}, s22 offen offset:1280")
    a(f"buffer_load_dwordx2 {v(Q4,2)}, v7, {WSR}, s28 offen offset:1024")
    LA, LB = Loader(a), Loader(a)
    for L in (LA, LB):
        for _ in range(4):
            L.other("q")

    def lin(L, tag, n, off):
        a(f"s_mul_i32 s30, s29, {n*K}")
        a("s_add_u32 s31, s26, s30")
        L.dma(tag, n, RB + off, 31, off, 30)

    lab = a.label("nl")
    a(f"s_cmp_lt_u32 {s(S_W)}, 4")
    a(f"s_cbranch_scc1 {lab}")
    lin(LB, "p0b", 1, 8 * K)
    a(f"{lab}:")
    a("s_add_u32 s27, s27, s33")
    a("s_mov_b32 s34, 0")
    a("s_lshl_b32 s22, s33, 10")
    a(f"s_add_u32 s22, s22, {RB}")
    a("v_add_u32 v11, s22, v2")
    a("s_lshl_b32 s22, s33, 8")
    a(f"s_add_u32 s22, s22, {RB+2048}")
    a("v_mul_u32_u24 v3, 5120, v6")
    a("v_lshl_add_u32 v3, v5, 3, v3")
    a("v_add_u32 v3, s22, v3")
    a("s_mul_i32 s22, s33, 1280")
    a(f"s_add_u32 s22, s22, {RB+2560}")
    a("v_mul_u32_u24 v4, 320, v6")
    a("v_lshl_add_u32 v4, v5, 4, v4")
    a("v_add_u32 v4, s22, v4")
    a(f"v_mov_b32 {v(IDX)}, 0xdddddddd")
    a("v_mov_b32 v8, 0x3f803f80")
    a("v_cmp_eq_u32 vcc, 20, v5")
    a("s_mov_b32 s40, 0x000fffff")
    a("s_mov_b32 s41, 0x000fffff")
    for j in range(16):
        a(f"v_cndmask_b32 {v(VB+j)}, 0, v8, vcc")
    for j in range(32):
        a(f"v_mov_b32 {v(O0+j)}, 0")
    a(f"s_and_b32 s39, {s(S_I)}, 15")
    a(f"s_mul_i32 s39, s39, {120*K}")
    a("s_mul_i32 s22, s29, 3072")
    a("s_add_u32 s39, s39, s22")
    xcc_value(a)
    for reg, x in ((12, 0), (13, 4)):
        a(f"s_xor_b32 s24, {s(S_W)}, {x}")
        a("s_mul_i32 s22, s24, 3072")
        a("s_cmp_ge_u32 s24, 6")
        a(f"s_cselect_b32 s24, {22*K}, 0")
        a("s_add_u32 s22, s22, s24")
        a(f"s_add_u32 s22, s22, {RB}")
        a(f"v_add_u32 {v(reg)}, s22, v2")
    a(f"s_lshl_b32 s22, {s(S_W)}, 2")
    a(f"s_add_u32 s22, s22, {SYNC_LDS+64}")
    a("v_mov_b32 v23, s22")
    a("v_and_b32 v24, 7, v0")
    a("v_lshlrev_b32 v24, 2, v24")
    a(f"v_add_u32 v24, {SYNC_LDS+64}, v24")
    a(f"v_mov_b32 v25, {fhex(2.0**64)}")
    a("v_lshlrev_b32 v29, 7, v0")
    a("v_lshrrev_b32 v9, 4, v5")
    a(f"v_mul_u32_u24 v9, {20*K}, v9")
    a("v_and_b32 v10, 15, v5")
    a("v_lshl_add_u32 v9, v10, 4, v9")
    a(f"s_mul_i32 s36, {s(S_I)}, 5")
    for i in range(3):
        a(f"s_add_u32 s37, s36, {2*i}")
        a("v_add_u32 v17, s37, v6")
        a("v_lshrrev_b32 v18, 1, v17")
        a(f"v_lshl_add_u32 {v(20+i)}, v18, 8, v9")
        a("v_and_b32 v17, 1, v17")
        a(f"v_lshl_add_u32 {v(20+i)}, v17, 3, {v(20+i)}")
    a(f"s_mul_i32 s38, s27, {2*20*K}")
    a(f"s_add_u32 s38, s38, {s(S_SCR)}")
    for r in range(16, 20):
        a(f"v_mov_b32 {v(r)}, 0")

    def sbase(j):
        return ((j // 4) % 3) * 20480 + (j % 4) * 5120

    def readK(j):
        if j % 2 == 0 or j == 1:
            a(f"ds_read_b64 {v(K4,2)}, v3 offset:{sbase(j & ~1)}")
        a(f"ds_read_b128 {v(K16,4)}, v11 offset:{sbase(j)}")

    def readV(j):
        a("s_mov_b64 exec, s[40:41]")
        for u in range(2):
            a(f"ds_read_b128 {v(VB+8*(j & 1)+4*u,4)}, v4 offset:{sbase(j)+640*u}")
        a("s_mov_b64 exec, -1")

    def qk2b(Y, j, C="0"):
        a(f"v_mfma_f32_32x32x4_2b_bf16 {v(Y,32)}, {v(K4,2)}, {v(Q4,2)}, {C} cbsz:1 abid:{j & 1}")

    def qk16(Y, t):
        a(f"v_mfma_f32_32x32x16_bf16 {v(Y+16*t,16)}, {v(K16,4)}, {v(QA+4*t,4)}, {v(Y+16*t,16)}")

    def pv(j, X, u):
        a(f"v_smfmac_f32_32x32x32_bf16 {v(O0+16*(u >> 1),16)}, {v(VB+8*(j & 1)+4*(u & 1),4)}, {v(X+8*u,8)}, {v(IDX)}")

    def w1_item(L, c, reg):
        def f():
            a(f"s_add_u32 s24, s39, {W1T + c*12*K}")
            for jj in range(3):
                a(f"buffer_load_dwordx4 {v(reg+4*jj,4)}, v2, {WSR}, s24 offen offset:{jj*K}")
                L.other("w1")
        return f

    def main(role):
        L = LB if role else LA
        sched = {}

        def at(j, slot, f):
            sched.setdefault((j, slot), []).append(f)

        if role:
            at(-1, 0, lambda: lin(L, "p1", 2, 12 * K))
            at(-1, 1, lambda: lin(L, "p2", 3, 20 * K))
            at(0, 1, lambda: lin(L, "p3", 2, 32 * K))
            at(1, 0, lambda: lin(L, ("c", 2), 5, 40 * K))
            for c in range(3, 8):
                j = 4 * (c - 2) - 2
                at(j, 1, lambda c=c: L.dma(("c", c), 3, RB + (c % 3) * 20480, 31, c * 20480, 30))
                at(j + 1, 0, lambda c=c: L.dma(("c", c), 2, RB + (c % 3) * 20480, 31, c * 20480, 30, 3))
            j0 = OPT.get("w1s", 12)
            steps = [j for j in range(j0, 30) if j % 4 in (0, 1)]
            for n in range(8):
                at(steps[n], 0, w1_item(L, 2 + n, STG + 12 * n))

            def consts():
                a(f"s_and_b32 s22, {s(S_I)}, 15")
                a("s_mul_i32 s24, s22, 768")
                a(f"s_add_u32 s24, s24, {CS1}")
                a(f"s_mov_b32 m0, {C1_LDS}")
                a("s_mov_b32 exec_hi, 0xffff")
                a(f"buffer_load_dwordx4 v2, {WSR}, s24 offen lds")
                a("s_lshl_b32 s24, s22, 9")
                a(f"s_add_u32 s24, s24, {CSQ}")
                a(f"s_mov_b32 m0, {CQ_LDS}")
                a("s_mov_b32 exec_hi, 0")
                a(f"buffer_load_dwordx4 v2, {WSR}, s24 offen lds")
                a("s_mov_b64 exec, -1")
                L.other("k")
                L.other("k")
            at(27, 0, consts)
        else:
            def wo_setup():
                a("s_mul_i32 s30, s29, 5120")
                a(f"s_and_b32 s32, {s(S_I)}, 7")
                a(f"s_mul_i32 s32, s32, {100*K}")
                a("s_add_u32 s32, s32, s30")
                a(f"s_lshl_b32 s42, {s(S_I)}, 2")
                a("s_add_u32 s42, s42, s29")
                a(f"s_mul_i32 s42, s42, {14*K}")
                a(f"s_add_u32 s42, s42, {s(S_SCR)}")
                a(f"s_lshl_b32 s22, {s(S_L)}, 31")
                a("s_or_b32 s42, s42, s22")
            at(0, 0, wo_setup)
            if OPT.get("cpf", 1):
                def cp():
                    lab = a.label("ncp")
                    a(f"s_cmp_lg_u32 {s(S_W)}, 3")
                    a(f"s_cbranch_scc1 {lab}")
                    code_prefetch(a, S_I, 31, 28)
                    a(f"{lab}:")
                at(OPT.get("cpfs", 24), 1, cp)
            j0 = OPT.get("wos", 5)
            for c in range(5):
                at(j0 + c, 0, lambda c=c: L.dma("wo", 3, c * 20480, 32, WOT + c * 20480, 30))
                at(j0 + c, 1, lambda c=c: L.dma("wo", 2, c * 20480, 32, WOT + c * 20480, 30, 3))
            if OPT.get("warm", 1):
                for n in range(14):
                    def z(n=n):
                        a(f"s_add_u32 s24, s42, {n*K}")
                        a(f"buffer_store_dwordx4 v[16:19], v2, {WSR}, s24 offen sc1")
                        L.other("z")
                    at(OPT.get("zs", 2) + n, 1 if n % 2 else 0, z)
            at(10, 1, w1_item(L, 0, STA))
            at(11, 1, w1_item(L, 1, STA + 12))

            def resid():
                g16_addr(a, 232, 233, 45, 46, 47)
                l1 = a.label("res1")
                lj = a.label("resj")
                a(f"s_cmp_lg_u32 {s(S_L)}, 0")
                a(f"s_cbranch_scc1 {l1}")
                for t in range(5):
                    a(f"buffer_load_dwordx2 {v(RESL+2*t,2)}, v233, s[8:11], s47 offen offset:{t*32}")
                a(f"s_branch {lj}")
                a(f"{l1}:")
                for t in range(5):
                    a(f"s_add_u32 s24, s46, {R_XB + t*K}")
                    a(f"buffer_load_dwordx2 {v(RESL+2*t,2)}, v232, {WSR}, s24 offen")
                a(f"{lj}:")
                for t in range(5):
                    L.other("r")
            at(18, 1, resid)
            for n, f in enumerate(touch_items(a, L, W2T, 1966080, None, 30, 29, 43)):
                at(OPT.get("w2s", 22) + n, 0, f)
            if OPT.get("tox", 0):
                for n, f in enumerate(touch_items(a, L, R_O, 640 * K, S_SCR, 20, 29, 44)):
                    at(27 + n, 0, f)

        def run(j, slot):
            for f in sched.pop((j, slot), []):
                f()

        L.wait("q")
        stamp(a, "P0")
        a("s_barrier")
        stamp(a, "P0b")
        readK(0)
        readV(0)
        run(-1, 0)
        a("s_waitcnt lgkmcnt(2)")
        qk2b(SX, 0)
        a.nop(18)
        qk16(SX, 0)
        qk16(SX, 1)
        if role:
            L.wait("p0b")
        a("s_barrier")
        readK(1)
        run(-1, 1)
        a.nop(9)
        for j in range(32):
            X, Y = (SX, SY) if j % 2 == 0 else (SY, SX)
            e = [0]
            flip = 16 if j == 31 else 0

            def E(n):
                for _ in range(n):
                    r = X + (e[0] ^ flip)
                    a(f"v_exp_f32 {v(r)}, {v(r)}")
                    e[0] += 1

            if j >= 7:
                a(f"s_setprio {3 - ((j+1) % 4)}")
            else:
                a(f"s_setprio {j % 2}")
            nxt = j < 31
            E(2)
            if j > 0:
                pv(j - 1, Y, 3)
            E(1)
            if nxt:
                readV(j + 1)
            E(2)
            if nxt:
                a("s_waitcnt lgkmcnt(2)")
                qk2b(Y, j + 1)
            E(8)
            if not nxt:
                a("s_waitcnt lgkmcnt(0)")
            pv(j, X, 0 if nxt else 2)
            E(1)
            run(j, 0)
            E(4)
            pv(j, X, 1 if nxt else 3)
            E(3)
            if nxt:
                qk16(Y, 1 if j == 30 else 0)
            E(3)
            if nxt:
                qk16(Y, 0 if j == 30 else 1)
            E(1)
            if j + 2 < 32:
                tag = {0: "p1", 2: "p2", 4: "p3"}.get(j)
                if tag is None and (j + 2) % 4 == 0:
                    tag = ("c", (j + 2) // 4)
                if tag is not None:
                    if role:
                        L.wait(tag)
                    elif j == 22 and OPT.get("warm", 1):
                        L.wait("z")
                    if (j + 2) % 4 == 0:
                        a("s_waitcnt lgkmcnt(0)")
                    a("s_barrier")
                    stamp(a, f"B{(j+2)//4}" if (j + 2) % 4 == 0 else f"b{j}")
                    if j == 22 and not role:
                        publish_xcc(a)
                    if j == 26 and role:
                        a(f"v_mov_b32 v8, {SYNC_LDS}")
                        a("ds_write_b64 v8, v[16:17]")
                        a("s_waitcnt lgkmcnt(0)")
                readK(j + 2)
            run(j, 1)
            if j == 29:
                purity_load(a)
            E(2)
            pv(j, X, 2 if nxt else 0)
            if nxt:
                E(5)
            else:
                E(3)
                for t in range(3):
                    a(f"ds_write_b128 v12, {v(O1+4*t,4)} offset:{t*K}")
                E(2)
            assert e[0] == 32
        assert not sched, sched.keys()
        a(f"v_cmp_nle_f32 vcc, {fhex(2.0**-64)}, {v(O1+8)}")
        a(f"v_cmp_nle_f32 s[36:37], {v(O1+8)}, v25")
        pv(31, SY, 1)
        a("s_setprio 0")
        stamp(a, "attend")

    red = a.label("red")
    rb = a.label("roleb")
    a(f"s_cmp_ge_u32 {s(S_W)}, 4")
    a(f"s_cbranch_scc1 {rb}")
    main(0)
    a(f"s_branch {red}")
    a(f"{rb}:")
    main(1)
    a(f"{red}:")
    a("s_or_b32 s35, vcc_hi, s37")
    a("s_waitcnt vmcnt(0)")
    purity_check(a)
    a.nop(3)
    a(f"v_cmp_nle_f32 vcc, {fhex(2.0**-64)}, {v(O0+8)}")
    a(f"v_cmp_nle_f32 s[36:37], {v(O0+8)}, v25")
    a("s_or_b32 s35, s35, vcc_hi")
    a("s_or_b32 s35, s35, s37")
    a("v_mov_b32 v8, s35")
    a("ds_write_b32 v23, v8")
    a("s_waitcnt lgkmcnt(0)")
    stamp(a, "preRa")
    a("s_barrier")
    stamp(a, "Ra")
    a("ds_read_b32 v8, v24")
    for t in (2, 0, 1):
        a(f"ds_read_b128 {v(O1+4*t,4)}, v13 offset:{t*K}")
    epi = a.label("epi")
    slow = a.label("slow")
    a("s_waitcnt lgkmcnt(3)")
    a("v_cmp_ne_u32 vcc, 0, v8")
    a(f"s_cbranch_vccnz {slow}")
    a(f"{epi}:")
    a("s_waitcnt lgkmcnt(2)")
    for p in (4, 5):
        a(f"v_pk_add_f32 {v(O0+2*p,2)}, {v(O0+2*p,2)}, {v(O1+2*p,2)}")
    a(f"v_mov_b32 v8, {v(O0+8)}")
    a(f"v_mov_b32 v10, {v(O0+8)}")
    a("s_waitcnt lgkmcnt(0)")
    for p in range(2):
        a(f"v_pk_add_f32 {v(O0+2*p,2)}, {v(O0+2*p,2)}, {v(O1+2*p,2)}")
    a("v_permlane32_swap_b32 v8, v10")
    a("v_rcp_f32 v10, v10")
    for p in range(2, 4):
        a(f"v_pk_add_f32 {v(O0+2*p,2)}, {v(O0+2*p,2)}, {v(O1+2*p,2)}")
    for i in range(3):
        for p in range(2):
            a(f"v_pk_mul_f32 {v(O0+4*i+2*p,2)}, {v(O0+4*i+2*p,2)}, v[10:11] op_sel_hi:[1,0]")
        a(f"v_cvt_pk_bf16_f32 {v(O0+4*i)}, {v(O0+4*i)}, {v(O0+4*i+1)}")
        a(f"v_cvt_pk_bf16_f32 {v(O0+4*i+1)}, {v(O0+4*i+2)}, {v(O0+4*i+3)}")
        if i == 2:
            a("s_mov_b32 exec_hi, 0")
        a(f"buffer_store_dwordx2 {v(O0+4*i,2)}, {v(20+i)}, {WSR}, s38 offen {ST}")
    a("s_mov_b64 exec, -1")

    def slow_path():
        a(f"{slow}:")
        a("s_cmp_lg_u32 s34, 0")
        a(f"s_cbranch_scc1 {epi}")
        a("s_mov_b32 s34, 1")
        a("v_mov_b32 v14, 0xff800000")
        a("v_mov_b32 v15, 0xff800000")
        a("v_lshlrev_b32 v16, 3, v0")
        a("s_mov_b32 s36, s26")
        a("s_mov_b32 s37, 32")
        lp = a.label("maxloop")
        a(f"{lp}:")
        a(f"buffer_load_dwordx2 {v(K4,2)}, v16, {WSR}, s36 offen offset:2048")
        for kt in range(2):
            a(f"buffer_load_dwordx4 {v(K16,4)}, v2, {WSR}, s36 offen offset:{kt*K}")
            a("s_waitcnt vmcnt(0)")
            qk2b(SX, kt)
            a.nop(18)
            qk16(SX, 0)
            qk16(SX, 1)
            a.nop(12)
            for j in range(8):
                a(f"v_max3_f32 v14, {v(SX+2*j)}, {v(SX+2*j+1)}, v14")
                a(f"v_max3_f32 v15, {v(SX+16+2*j)}, {v(SX+16+2*j+1)}, v15")
        a("s_add_u32 s36, s36, 5120")
        a("s_sub_u32 s37, s37, 1")
        a("s_cmp_lg_u32 s37, 0")
        a(f"s_cbranch_scc1 {lp}")
        for r in (14, 15):
            a(f"v_mov_b32 v16, {v(r)}")
            a.nop(2)
            a(f"v_permlane32_swap_b32 {v(r)}, v16")
            a(f"v_max_f32 {v(r)}, {v(r)}, v16")
        a("s_waitcnt lgkmcnt(0)")
        for j in range(32):
            a(f"v_sub_f32 {v(SY+j)}, 0, {v(14 + j//16)}")
            a(f"v_mov_b32 {v(O0+j)}, 0")
        a(f"v_subrev_u32 v14, {RB}, v11")
        a(f"v_subrev_u32 v15, {RB}, v4")
        a("s_lshl_b32 s22, s33, 8")
        a("v_lshlrev_b32 v16, 3, v5")
        a("v_add_u32 v16, s22, v16")
        a("s_mov_b32 s36, s26")
        a("s_mov_b32 s37, 32")
        lp = a.label("pass2")
        a(f"{lp}:")
        a(f"buffer_load_dwordx2 {v(K4,2)}, v16, {WSR}, s36 offen offset:2048")
        a(f"buffer_load_dwordx4 {v(K16,4)}, v14, {WSR}, s36 offen")
        a("s_mov_b64 exec, s[40:41]")
        a(f"buffer_load_dwordx4 {v(VB,4)}, v15, {WSR}, s36 offen")
        a(f"buffer_load_dwordx4 {v(VB+4,4)}, v15, {WSR}, s36 offen offset:640")
        a("s_mov_b64 exec, -1")
        a("s_waitcnt vmcnt(0)")
        qk2b(SX, 0, v(SY, 32))
        a.nop(18)
        qk16(SX, 0)
        qk16(SX, 1)
        a.nop(12)
        for j in range(32):
            a(f"v_exp_f32 {v(SX+j)}, {v(SX+j)}")
        a.nop(2)
        for u in range(4):
            pv(0, SX, u)
        a("s_add_u32 s36, s36, 5120")
        a("s_sub_u32 s37, s37, 1")
        a("s_cmp_lg_u32 s37, 0")
        a(f"s_cbranch_scc1 {lp}")
        a.nop(12)
        a("s_barrier")
        for t in range(3):
            a(f"ds_write_b128 v12, {v(O1+4*t,4)} offset:{t*K}")
        a(f"s_branch {red}")
    return slow_path


class Dumper:
    def __init__(self, a, s_part):
        self.a = a
        self.s_part = s_part
        self.m0 = None

    def reset(self):
        self.m0 = None

    def __call__(self, reg, addr):
        a = self.a
        if addr + K > 49152 + 65536:
            for r in range(4):
                a(f"ds_write_b32 v12, {v(reg+r)} offset:{addr - 65536 + 256*r}")
            return
        base = 0 if addr + K <= 65536 else 49152
        if self.m0 != base:
            a(f"s_add_u32 m0, {s(self.s_part)}, {base}")
            a("s_nop 0")
            self.m0 = base
        for r in range(4):
            a(f"ds_write_addtid_b32 {v(reg+r)} offset:{addr - base + 256*r}")


def g16_addr(a, vx, vr, s_tb, s_x, s_rm):
    a(f"s_lshr_b32 s22, {s(S_I)}, 3")
    a("s_lshl_b32 s22, s22, 2")
    a(f"s_and_b32 s23, {s(S_W)}, 1")
    a("s_lshl_b32 s23, s23, 1")
    a("s_add_u32 s22, s22, s23")
    a(f"s_lshr_b32 s23, {s(S_W)}, 1")
    a(f"s_add_u32 {s(s_tb)}, s22, s23")
    a(f"s_lshr_b32 {s(s_x)}, {s(s_tb)}, 1")
    a(f"s_mul_i32 {s(s_x)}, {s(s_x)}, {40*K}")
    a(f"s_and_b32 s22, {s(s_tb)}, 1")
    a("s_lshl_b32 s22, s22, 8")
    a(f"s_add_u32 {s(s_x)}, {s(s_x)}, s22")
    a(f"s_and_b32 s23, {s(S_I)}, 7")
    a(f"s_mul_i32 s22, s23, {5*K}")
    a(f"s_add_u32 {s(s_x)}, {s(s_x)}, s22")
    a(f"s_add_u32 {s(s_x)}, {s(s_x)}, {s(S_SCR)}")
    a(f"s_lshl_b32 {s(s_rm)}, {s(S_X)}, 4")
    a(f"s_add_u32 {s(s_rm)}, {s(s_rm)}, {s(s_tb)}")
    a(f"s_mul_i32 {s(s_rm)}, {s(s_rm)}, {16*1280}")
    a("s_mul_i32 s22, s23, 160")
    a(f"s_add_u32 {s(s_rm)}, {s(s_rm)}, s22")
    a("v_and_b32 v234, 15, v0")
    a("v_lshrrev_b32 v235, 4, v0")
    a("v_lshrrev_b32 v236, 5, v0")
    a("v_lshlrev_b32 v236, 9, v236")
    a(f"v_lshl_add_u32 {v(vx)}, v234, 4, v236")
    a("v_and_b32 v236, 1, v235")
    a(f"v_lshl_add_u32 {v(vx)}, v236, 3, {v(vx)}")
    a(f"v_mul_u32_u24 {v(vr)}, 1280, v234")
    a(f"v_lshl_add_u32 {v(vr)}, v235, 3, {v(vr)}")


G_ACC = 64
G_WB = 128
G_AW = 160
G_NW = 14
G_CR = 216
RES = 112
WQ_ADDR = [c * 16 * K for c in range(6)] + [120 * K, 136 * K, 100 * K, 0]
QKV_SCR = 152 * K


class Rec:
    def __init__(self):
        self.l = []

    def __call__(self, t):
        self.l.append(t)

    def nop(self, n):
        self.l.append(f"s_nop {n-1}")


def gemm32_main(a, NT, addr, bars, swap, s_act, s_st, ld, fill, WB=G_WB, tail=None):
    UP = OPT.get("up32", 6)
    loads = []
    a(f"buffer_load_dwordx4 v[8:11], v7, {WSR}, {s(s_st)} offen {ld}")
    a(f"buffer_load_dwordx4 v[12:15], v7, {WSR}, {s(s_st)} offen offset:16 {ld}")
    WS_ = 4 * NT

    def act_load():
        k = len(loads)
        if k % 4 == 0:
            a(f"s_add_u32 s25, {s(s_act)}, {k*K}")
        a(f"buffer_load_dwordx4 {v(G_AW + 4*(k % G_NW), 4)}, v2, {WSR}, s25 offen offset:{(k % 4)*K} {ld}")
        loads.append(k)

    def wread(k, t):
        off = addr[k // 4] + ((k % 4) * NT + t) * K
        a(f"ds_read_b128 {v(WB + WS_*(k & 1) + 4*t, 4)}, {v(2 + off // 65536)} offset:{off % 65536}")

    for k in range(UP):
        act_load()
    assert 0 in bars
    a("s_barrier")
    for t in range(NT):
        wread(0, t)
    fill = list(fill)
    per = -(-len(fill) // (NT * 34))
    for k in range(40):
        last = (k == 39)
        bar = (k % 4 == 3) and not last and ((k + 1) // 4 in bars)
        for t in range(NT):
            if t == 0:
                a(f"s_waitcnt vmcnt({len(loads)-1-k}) lgkmcnt({NT-1})")
            else:
                a(f"s_waitcnt lgkmcnt({NT-1 if not last else NT-1-t})")
            A_ = v(WB + WS_ * (k & 1) + 4 * t, 4)
            B_ = v(G_AW + 4 * (k % G_NW), 4)
            if swap:
                A_, B_ = B_, A_
            D_ = v(G_ACC + 16 * t, 16)
            a(f"v_mfma_f32_32x32x16_bf16 {D_}, {A_}, {B_}, {D_ if k else 0}")
            if not last:
                if bar and t == 0:
                    a("s_barrier")
                wread(k + 1, t)
            n = len(loads)
            if n < 40 and ((t == 0 and n - k < G_NW) or (t == NT - 1 and n - k <= G_NW and (k % 2 == 0 or n - k <= UP))):
                act_load()
            if k >= 1:
                for _ in range(per):
                    if fill:
                        a(fill.pop(0))
            if last and t == 0 and tail:
                tail()
    assert not fill


def g32_common(a, X, STAT):
    a(f"s_lshl_b32 s29, {s(S_DOM)}, 2")
    a(f"s_add_u32 s29, s29, {s(S_W)}")
    a("v_lshlrev_b32 v2, 4, v0")
    a("v_and_b32 v5, 31, v0")
    a("v_lshrrev_b32 v6, 5, v0")
    if X is None:
        return
    a("s_and_b32 s28, s29, 7")
    a(f"s_mul_i32 s30, s28, {40*K}")
    a(f"s_add_u32 s30, s30, {s(S_SCR)}")
    a(f"s_add_u32 s30, s30, {X}")
    a("v_add_u32 v3, 0x10000, v2")
    a("v_add_u32 v4, 0x20000, v2")
    a("v_lshlrev_b32 v7, 6, v5")
    a("v_lshl_add_u32 v7, v6, 5, v7")
    a("s_lshl_b32 s31, s28, 11")
    a(f"s_add_u32 s31, s31, {s(S_SCR)}")
    a(f"s_add_u32 s31, s31, {STAT}")


MLP1_BARS = {0}
QKV_BARS = {0, 2, 4, 6, 8, 9}
MLP2_BARS = {0, 3, 5, 7, 9}


def mlp1_compute(a):
    g32_common(a, R_XA, R_STA)
    a(f"s_and_b32 s27, {s(S_I)}, 15")
    a("v_lshlrev_b32 v16, 4, v6")
    a(f"v_add_u32 v16, {C1_LDS}, v16")
    CSR = [20 + 4 * (i % 6) for i in range(12)]
    BR = [216 + 4 * i for i in range(10)] + [152, 156]
    BIAS2 = 52
    a("v_lshrrev_b32 v62, 4, v0")
    a("v_lshlrev_b32 v62, 3, v62")
    a(f"s_and_b32 s33, {s(S_I)}, 7")
    a("s_mul_i32 s33, s33, 160")
    a("v_lshrrev_b32 v17, 4, v5")
    a(f"v_mul_u32_u24 v17, {48*K}, v17")
    a("v_and_b32 v18, 15, v5")
    a("v_lshl_add_u32 v17, v18, 4, v17")
    a("v_lshl_add_u32 v17, v6, 8, v17")
    a(f"s_mul_i32 s34, s28, {2*48*K}")
    a(f"s_mul_i32 s35, s27, {3*K}")
    a("s_add_u32 s34, s34, s35")
    a(f"s_add_u32 s34, s34, {s(S_SCR)}")
    a(f"s_add_u32 s34, s34, {R_H}")
    k0 = -2.0 * math.sqrt(2.0 / math.pi) * math.log2(math.e)
    a(f"s_mov_b32 s36, {fhex(k0)}")
    a(f"s_mov_b32 s37, {fhex(k0)}")
    a(f"v_mov_b32 v18, {fhex(k0*0.044715)}")
    f = Rec()
    for j in range(12):
        f(f"ds_read_b128 {v(BR[j],4)}, v16 offset:{384 + (j//4)*128 + (j%4)*32}")
    for j in range(6):
        f(f"ds_read_b128 {v(CSR[j],4)}, v16 offset:{(j//4)*128 + (j%4)*32}")
    ln_stats(f, 8, True)
    f("v_mul_f32 v8, v8, v9")
    f("v_mov_b32 v10, v9")
    for j in range(12):
        for e in range(4):
            f(f"v_fma_f32 {v(BR[j]+e)}, -v8, {v(CSR[j]+e)}, {v(BR[j]+e)}")
        if j < 6:
            f(f"ds_read_b128 {v(CSR[j],4)}, v16 offset:{((j+6)//4)*128 + ((j+6)%4)*32}")

    def tail():
        for t in range(5):
            a(f"buffer_load_dwordx2 {v(BIAS2+2*t,2)}, v62, s[16:19], s33 offen offset:{t*32}")
    stamp(a, "preS3")
    wait_sync(a, 1, 16, S_DOM)
    stamp(a, "S3")
    gemm32_main(a, 3, W1_ADDR, MLP1_BARS, False, 30, 31, LD, f.l, tail=tail)
    stamp(a, "preE1")
    a("s_barrier")
    stamp(a, "E1")
    a.nop(8)
    TS = [20, 28, 36]
    stages = []
    for g in range(6):
        r = G_ACC + 8 * g
        T = TS[g % 3]
        A_, B_, C_ = [], [], []
        for p in range(4):
            b = BR[2 * g + p // 2] + 2 * (p % 2)
            A_.append(f"v_pk_fma_f32 {v(r+2*p,2)}, {v(r+2*p,2)}, v[10:11], {v(b,2)} op_sel_hi:[1,0,1]")
        for p in range(4):
            A_.append(f"v_pk_mul_f32 {v(T+2*p,2)}, {v(r+2*p,2)}, {v(r+2*p,2)}")
        for p in range(4):
            A_.append(f"v_pk_fma_f32 {v(T+2*p,2)}, {v(T+2*p,2)}, v[18:19], s[36:37] op_sel_hi:[1,0,1]")
        for p in range(4):
            A_.append(f"v_pk_mul_f32 {v(T+2*p,2)}, {v(T+2*p,2)}, {v(r+2*p,2)}")
        for e in range(8):
            A_.append(f"v_exp_f32 {v(T+e)}, {v(T+e)}")
        for p in range(4):
            B_.append(f"v_pk_add_f32 {v(T+2*p,2)}, {v(T+2*p,2)}, 1.0 op_sel_hi:[1,0]")
        for e in range(8):
            B_.append(f"v_rcp_f32 {v(T+e)}, {v(T+e)}")
        for p in range(4):
            C_.append(f"v_pk_mul_f32 {v(r+2*p,2)}, {v(r+2*p,2)}, {v(T+2*p,2)}")
        for p in range(4):
            C_.append(f"v_cvt_pk_bf16_f32 {v(r+p)}, {v(r+2*p)}, {v(r+2*p+1)}")
        C_.append(f"buffer_store_dwordx4 {v(r,4)}, v17, {WSR}, s34 offen offset:{(g//2)*K + (g%2)*512} {ST}")
        stages.append((A_, B_, C_))
    for g in range(6):
        for part in stages[g]:
            for x in part:
                a(x)


def qkv_compute(a, X, STAT, KVO, QO, addr, bars, sync, ld, fin, first=False):
    g32_common(a, X, STAT)
    if first:
        k1_prologue(a)
    CL = K1_CS if first else CQ_LDS
    a("s_lshr_b32 s33, s29, 1")
    a("s_and_b32 s34, s29, 1")
    vpath = a.label("vpath")
    a("s_cmp_ge_u32 s27, 10")
    a(f"s_cbranch_scc1 {vpath}")
    CR = [216 + 4 * i for i in range(10)] + [48, 52, 56, 60, 24, 28]
    if first:
        CR = [176 + 4 * i for i in range(16)]
    a("v_lshlrev_b32 v16, 4, v6")
    a(f"v_add_u32 v16, {CL}, v16")
    crd = [f"ds_read_b128 {v(CR[i],4)}, v16 offset:{(i//4)*128 + (i%4)*32}" for i in range(16)]
    a("s_cmp_ge_u32 s27, 5")
    a("s_cselect_b32 s35, 5, 0")
    a("s_sub_u32 s35, s27, s35")
    a("s_mov_b32 s36, 81920")
    a("s_cmp_ge_u32 s27, 5")
    a("s_cselect_b32 s36, 163840, s36")
    a(f"s_mov_b32 s37, {KVO}")
    a(f"s_mov_b32 s38, {QO}")
    a("s_cselect_b32 s37, s37, s38")
    a(f"s_cselect_b32 s39, 1.0, {fhex(QSCALE)}")
    a("v_and_b32 v17, 0x13, v5")
    a("v_and_b32 v18, 4, v5")
    a("v_lshl_or_b32 v17, v18, 1, v17")
    a("v_and_b32 v18, 8, v5")
    a("v_lshrrev_b32 v18, 1, v18")
    a("v_or_b32 v17, v17, v18")
    a("s_cselect_b32 s40, -1, 0")
    a("s_cselect_b32 s41, -1, 0")
    a("v_cndmask_b32 v17, v5, v17, s[40:41]")
    a("s_mul_i32 s42, s33, 5120")
    a("s_lshl_b32 s43, s34, 10")
    a("s_add_u32 s43, s43, s42")
    a("s_lshl_b32 s44, s34, 8")
    a("s_add_u32 s44, s44, s42")
    a("s_add_u32 s44, s44, 1024")
    a("s_mul_i32 s45, s29, 1280")
    a("s_cmp_ge_u32 s27, 5")
    a("s_cselect_b32 s43, s43, s45")
    a("s_cselect_b32 s44, s44, s45")
    a("v_lshlrev_b32 v18, 4, v17")
    a("v_add_u32 v18, s43, v18")
    a("v_lshlrev_b32 v19, 3, v17")
    a("v_add_u32 v19, s44, v19")
    a("s_lshl_b32 s46, s35, 5")
    a("s_mov_b32 s47, 52429")
    a("v_add_u32 v17, s46, v6")
    ad = Rec()
    for i in range(16):
        ad(f"v_add_u32 v20, {2*i}, v17")
        ad("v_mul_u32_u24 v21, s47, v20")
        ad("v_lshrrev_b32 v21, 18, v21")
        ad("v_mul_u32_u24 v22, 5, v21")
        ad("v_sub_u32 v22, v20, v22")
        ad("v_cmp_eq_u32 vcc, 4, v22")
        ad("v_mul_u32_u24 v21, s36, v21")
        ad("v_lshrrev_b32 v23, 1, v22")
        ad("v_cndmask_b32 v20, v18, v19, vcc")
        ad("v_lshl_add_u32 v21, v23, 9, v21")
        ad("v_and_b32 v22, 1, v22")
        ad("v_lshl_add_u32 v21, v22, 3, v21")
        ad(f"v_add_u32 {v(32+i)}, v21, v20")
    f = Rec()
    ln_stats(f, 8, False)
    f("v_mul_f32 v10, s39, v9")
    f("v_mul_f32 v8, v8, v10")
    for i in range(16):
        for e in range(4):
            f(f"v_mul_f32 {v(CR[i]+e)}, -v8, {v(CR[i]+e)}")
    if first:
        for x in ad.l:
            a(x)
        sync()
        k1_main(a, False)
        for x in crd + f.l[:-64]:
            a(x)
        a("v_sub_f32 v8, 0, v8")
        a("s_waitcnt lgkmcnt(0)")
        for i in range(16):
            for p in range(2):
                a(f"v_pk_mul_f32 {v(CR[i]+2*p,2)}, {v(CR[i]+2*p,2)}, v[8:9] op_sel_hi:[1,0]")
    else:
        sync()
        gemm32_main(a, 4, addr, bars, False, 30, 31, ld, crd + f.l + ad.l)
        a.nop(8)
    stamp(a, "qkvmain")
    for i in range(16):
        r = G_ACC + 4 * i
        for p in range(2):
            a(f"v_pk_fma_f32 {v(r+2*p,2)}, {v(r+2*p,2)}, v[10:11], {v(CR[i]+2*p,2)} op_sel_hi:[1,0,1]")
        a(f"v_cvt_pk_bf16_f32 {v(r)}, {v(r)}, {v(r+1)}")
        a(f"v_cvt_pk_bf16_f32 {v(r+1)}, {v(r+2)}, {v(r+3)}")
        a(f"buffer_store_dwordx2 {v(r,2)}, {v(32+i)}, {WSR}, s37 offen")
    a(f"s_branch {fin}")
    a(f"{vpath}:")
    CV = 40
    RR = 216
    a("v_lshlrev_b32 v16, 2, v5")
    a(f"v_add_u32 v23, {CL}, v16")
    a("s_sub_u32 s35, s27, 10")
    a("s_lshl_b32 s46, s35, 7")
    a("s_mul_i32 s42, s33, 5120")
    a("s_mul_i32 s43, s34, 1280")
    a("s_add_u32 s42, s42, s43")
    a(f"s_add_u32 s42, s42, {2560 + KVO}")
    a("s_mov_b32 s47, 52429")
    a("s_mov_b32 s36, 163840")
    a("v_mul_u32_u24 v17, 320, v6")
    for t in range(4):
        a(f"s_add_u32 s48, s46, {32*t}")
        a("v_add_u32 v20, s48, v5")
        a("v_mul_u32_u24 v21, s47, v20")
        a("v_lshrrev_b32 v21, 20, v21")
        a("v_mul_u32_u24 v22, 20, v21")
        a("v_sub_u32 v22, v20, v22")
        a("v_mul_u32_u24 v21, s36, v21")
        a("v_lshl_add_u32 v21, v22, 4, v21")
        a(f"v_add_u32 {v(32+t)}, v21, v17")
    a(f"s_lshl_b32 s49, {s(S_W)}, 8")
    a(f"s_add_u32 s49, s49, {QKV_SCR}")
    a("v_add_u32 v18, s49, v16")
    a("v_lshlrev_b32 v19, 4, v6")
    a("v_add_u32 v19, s49, v19")
    f = Rec()
    for i in range(4):
        f(f"ds_read_b32 {v(CV+2*i)}, v23 offset:{i*128}")
    ln_stats(f, 8, False)
    f("v_mul_f32 v8, -v8, v9")
    f("ds_write_b32 v18, v9")
    f("ds_write_b32 v18, v8 offset:128")
    for gq in range(4):
        f(f"ds_read_b128 {v(RR+4*gq,4)}, v19 offset:{32*gq}")
        f(f"ds_read_b128 {v(RR+16+4*gq,4)}, v19 offset:{128+32*gq}")
    sync()
    if first:
        k1_main(a, True)
        for x in f.l:
            a(x)
        a("s_waitcnt lgkmcnt(0)")
    else:
        gemm32_main(a, 4, addr, bars, True, 30, 31, ld, f.l)
        a.nop(8)
    stamp(a, "qkvmain")
    for t in range(4):
        r = G_ACC + 16 * t
        for p in range(8):
            a(f"v_pk_mul_f32 {v(r+2*p,2)}, {v(r+2*p,2)}, {v(RR+2*p,2)}")
        for p in range(8):
            a(f"v_pk_fma_f32 {v(r+2*p,2)}, {v(RR+16+2*p,2)}, {v(CV+2*t,2)}, {v(r+2*p,2)} op_sel_hi:[1,0,1]")
        for p in range(8):
            a(f"v_cvt_pk_bf16_f32 {v(r+p)}, {v(r+2*p)}, {v(r+2*p+1)}")
        a(f"buffer_store_dwordx4 {v(r,4)}, {v(32+t)}, {WSR}, s42 offen")
        a(f"buffer_store_dwordx4 {v(r+4,4)}, {v(32+t)}, {WSR}, s42 offen offset:640")


def g16_compute(a, mlp2, fin):
    KS = 48 if mlp2 else 20
    ACT = R_H if mlp2 else R_O
    XOUT = R_XB if mlp2 else R_XA
    STO = R_STB if mlp2 else R_STA
    CB = 20 * K
    RED = 100 * K if mlp2 else 128 * K
    ACC, WB, AW, NW = 16, 56, 128, (13 if mlp2 else 10)
    RF = 232 if mlp2 else 96
    RS = RES if mlp2 else RESL
    UP = OPT.get("up2", 5) if mlp2 else OPT.get("upo", 4)
    g16_addr(a, 7, 15, 34, 35, 42)
    a(f"s_and_b32 s27, {s(S_I)}, 7")
    a(f"s_lshr_b32 s30, {s(S_W)}, 1")
    a("s_xor_b32 s31, s34, 1")
    a("s_lshl_b32 s22, s30, 10")
    a(f"s_add_u32 s22, s22, {s(S_SCR)}")
    a(f"s_add_u32 s22, s22, {ACT}")
    a(f"s_mul_i32 s32, s34, {KS*K}")
    a("s_add_u32 s32, s32, s22")
    a(f"s_mul_i32 s33, s31, {KS*K}")
    a("s_add_u32 s33, s33, s22")
    a(f"s_mul_i32 s38, s30, {5*K}")
    a("v_add_u32 v12, s38, v2")
    a("v_add_u32 v13, 0x10000, v12")
    a("v_add_u32 v14, 0x20000, v12")
    a(f"s_mul_i32 s39, {s(S_W)}, 5120")
    a(f"s_add_u32 s39, s39, {RED}")
    a("v_add_u32 v3, s39, v2")
    a(f"s_xor_b32 s40, {s(S_W)}, 2")
    a("s_mul_i32 s40, s40, 5120")
    a(f"s_add_u32 s40, s40, {RED}")
    a("v_add_u32 v4, s40, v2")
    a(f"s_add_u32 s36, s35, {XOUT}")
    a("s_add_u32 s37, s36, 4096")
    a("s_lshl_b32 s43, s34, 10")
    a("s_lshl_b32 s44, s27, 3")
    a("s_add_u32 s43, s43, s44")
    a(f"s_add_u32 s43, s43, {s(S_SCR)}")
    a(f"s_add_u32 s43, s43, {STO}")
    a("v_lshlrev_b32 v1, 6, v234")
    for jx in range(10):
        a(f"v_lshlrev_b32 {v(RF+2*jx)}, 16, {v(RS+jx)}")
        a(f"v_and_b32 {v(RF+2*jx+1)}, 0xffff0000, {v(RS+jx)}")
        if mlp2:
            a(f"v_lshlrev_b32 v10, 16, {v(52+jx)}")
            a(f"v_and_b32 v11, 0xffff0000, {v(52+jx)}")
            a(f"v_pk_add_f32 {v(RF+2*jx,2)}, {v(RF+2*jx,2)}, v[10:11]")
    if mlp2:
        wait_sync(a, 2, 16, S_DOM)
        stamp(a, "S4")
    else:
        stamp(a, "preS2")
        wait_sync(a, 0, 32, S_X)
        stamp(a, "S2")
    nk = KS // 2
    loads = []

    def act_load():
        n = len(loads)
        i, tt = n // 2, n % 2
        if i % 2 == 0:
            a(f"s_add_u32 {s(24+tt)}, {s(32+tt)}, {i*2048}")
        a(f"buffer_load_dwordx4 {v(AW + 8*(i % NW) + 4*tt, 4)}, v2, {WSR}, {s(24+tt)} offen offset:{(i % 2)*2048} {LD}")
        loads.append((i, tt))

    def wread(i, t):
        c = i // 2
        off = (c % 7) * CB + (i % 2) * 10240 + t * K
        a(f"ds_read_b128 {v(WB + 20*(i & 1) + 4*t, 4)}, {v(12 + off // 65536)} offset:{off % 65536}")

    for _ in range(2 * UP):
        act_load()
    if mlp2:
        a("s_barrier")
    for t in range(5):
        wread(0, t)
    a("v_mov_b32 v8, 0")
    a("v_mov_b32 v9, 0")
    a("v_mov_b32 v11, 0x3f803f80")
    for i in range(nk):
        last = (i == nk - 1)
        bar = mlp2 and (i % 2 == 1) and not last and ((i + 1) // 2 in MLP2_BARS)
        order = [(t, tt) for t in range(5) for tt in range(2)]
        if last:
            order = [(t, 1) for t in range(5)] + [(t, 0) for t in range(5)]
        seen_t, seen_tt = set(), set()
        for t, tt in order:
            w = []
            if tt not in seen_tt:
                after = len(loads) - 1 - loads.index((i, tt))
                w.append(f"vmcnt({min(after,63)})")
                seen_tt.add(tt)
            if t not in seen_t:
                w.append(f"lgkmcnt({4 if not last else 4-t})")
                seen_t.add(t)
            if w:
                a("s_waitcnt " + " ".join(w))
            D_ = v(ACC + 20 * tt + 4 * t, 4)
            C_ = D_ if i else (v(RF + 4 * t, 4) if tt == 0 else "0")
            a(f"v_mfma_f32_16x16x32_bf16 {D_}, {v(WB + 20*(i & 1) + 4*t, 4)}, {v(AW + 8*(i % NW) + 4*tt, 4)}, {C_}")
            if not last and tt == 1:
                if bar and t == 0:
                    stamp(a, f"m2p{(i+1)//2}")
                    a("s_barrier")
                    stamp(a, f"m2b{(i+1)//2}")
                wread(i + 1, t)
                extra = (t == 4 and i % 2 == 0 and OPT.get("ramp", 1))
                if (t in (1, 3) or extra) and len(loads) < 2 * nk and len(loads) // 2 - i < NW:
                    act_load()
    stamp(a, "m2main" if mlp2 else "womain")
    for t in range(5):
        a(f"ds_write_b128 v3, {v(ACC+20+4*t,4)} offset:{t*K}")
    a("s_waitcnt lgkmcnt(0)")
    stamp(a, "preRm" if mlp2 else "preRw")
    a("s_barrier")
    stamp(a, "Rm" if mlp2 else "Rw")
    for t in range(5):
        a(f"ds_read_b128 {v(WB+4*t,4)}, v4 offset:{t*K}")
    lastl = a.label("lastl")
    if mlp2:
        a(f"s_cmp_lg_u32 {s(S_L)}, 0")
        a(f"s_cbranch_scc1 {lastl}")

    def fin_tile(t):
        r = ACC + 4 * t
        a(f"s_waitcnt lgkmcnt({4-t})")
        for p in range(2):
            a(f"v_pk_add_f32 {v(r+2*p,2)}, {v(r+2*p,2)}, {v(WB+4*t+2*p,2)}")
        a(f"v_cvt_pk_bf16_f32 {v(RES+2*t)}, {v(r)}, {v(r+1)}")
        a(f"v_cvt_pk_bf16_f32 {v(RES+2*t+1)}, {v(r+2)}, {v(r+3)}")

    for t in range(5):
        fin_tile(t)
        a(f"buffer_store_dwordx2 {v(RES+2*t,2)}, v7, {WSR}, {'s36' if t < 4 else 's37'} offen offset:{(t*K) % 4096} {ST}")
        for jx in (2 * t, 2 * t + 1):
            a(f"v_dot2_f32_bf16 v8, {v(RES+jx)}, v11, v8")
            a(f"v_dot2_f32_bf16 v9, {v(RES+jx)}, {v(RES+jx)}, v9")
    a.nop(2)
    a("v_mov_b32 v10, v8")
    a("v_mov_b32 v11, v9")
    a.nop(1)
    a("v_permlane16_swap_b32 v8, v10")
    a("v_permlane16_swap_b32 v9, v11")
    a("v_pk_add_f32 v[8:9], v[8:9], v[10:11]")
    a("v_pk_mov_b32 v[10:11], v[8:9], v[8:9] op_sel:[0,1]")
    a.nop(2)
    a("v_permlane32_swap_b32 v8, v10")
    a("v_permlane32_swap_b32 v9, v11")
    a("v_pk_add_f32 v[8:9], v[8:9], v[10:11]")
    a("s_mov_b64 exec, 0xffff")
    a(f"buffer_store_dwordx2 v[8:9], v1, {WSR}, s43 offen {ST}")
    a("s_mov_b64 exec, -1")

    def last_layer():
        a(f"{lastl}:")
        for t in range(5):
            fin_tile(t)
            a(f"buffer_store_dwordx2 {v(RES+2*t,2)}, v15, s[12:15], s42 offen offset:{t*32}")
        a(f"s_branch {fin}")
    return last_layer


def helper_chain(a, fin):
    def w2reg(k):
        return 16 + 4 * ((k + 1) % 60)
    WQR = 20
    a(f"s_and_b32 s29, {s(S_W)}, 3")
    a("s_mul_i32 s30, s29, 5120")
    a(f"s_and_b32 s31, {s(S_I)}, 7")
    a(f"s_mul_i32 s31, s31, {240*K}")
    a("s_add_u32 s31, s31, s30")
    a("s_mul_i32 s32, s29, 3072")
    a("s_lshl_b32 s33, s29, 12")
    a(f"s_and_b32 s34, {s(S_I)}, 15")
    a("s_cmp_eq_u32 s34, 15")
    a("s_cselect_b32 s35, 1, 0")
    a(f"s_or_b32 s35, s35, {s(S_L)}")
    a(f"s_mul_i32 s34, s34, {160*K}")
    a("s_add_u32 s34, s34, s33")
    a("s_lshl_b32 s22, s35, 31")
    a("s_or_b32 s38, s34, s22")
    a("v_lshlrev_b32 v12, 2, v0")
    a("v_add_u32 v12, s30, v12")
    a("v_add_u32 v12, 0x10000, v12")
    a("v_lshlrev_b32 v15, 7, v0")
    L = Loader(a)
    n2 = [0]
    nq = [0]

    def w2(n, depth):
        for _ in range(n):
            k = n2[0]
            if k >= 60:
                return
            a(f"s_add_u32 s24, s31, {W2T + (k//5)*20*K + (k % 5)*K}")
            a(f"buffer_load_dwordx4 {v(w2reg(k),4)}, v2, {WSR}, s24 offen")
            L.other(("w2", k))
            if depth:
                a(f"s_waitcnt vmcnt({depth-1})")
            n2[0] += 1

    def wq(n):
        for _ in range(n):
            k = nq[0]
            if k >= 4 * NQS:
                return
            a(f"s_add_u32 s24, s38, {WQT + (k//4)*16*K + (k % 4)*K}")
            a(f"buffer_load_dwordx4 {v(WQR+4*k,4)}, v2, {WSR}, s24 offen")
            L.other(("wq", k))
            nq[0] += 1

    th = touch_items(a, L, R_H, 768 * K, S_SCR, 12, 15, 36, vd=14)
    tx = touch_items(a, L, R_XB, 320 * K, S_SCR, 20, 15, 37, vd=14)
    a(f"s_lshl_b32 s39, {s(S_L)}, 31")
    tq = touch_items(a, L, WQT, 2457600, 39, OPT.get("tql", 15), 15, 40, vd=14)

    def run(spec):
        for tok in spec.split():
            body, _, n = tok.partition("*")
            for _ in range(int(n or 1)):
                for ch in body:
                    if ch == "w":
                        w2(1, 0)
                    elif ch == "q":
                        wq(1)
                    elif ch in "hxt":
                        lst = {"h": th, "x": tx, "t": tq}[ch]
                        if lst:
                            lst.pop(0)()
                    elif ch == "s":
                        a("s_sleep 1")
                    else:
                        a(f"s_waitcnt vmcnt({ch})")

    run(SCHED["a"])
    stamp(a, "preRw")
    a("s_barrier")
    stamp(a, "Rw")
    run(SCHED["r"])
    assert n2[0] <= 35
    D = Dumper(a, 32)
    for k in range(24):
        D(STG + 4 * k, W1_ADDR[2 + k // 3] + (k % 3) * K)
    a("s_waitcnt lgkmcnt(0)")
    run(SCHED["b"])
    stamp(a, "preS3")
    a("s_barrier")
    stamp(a, "S3")
    run(SCHED["c"])
    assert n2[0] >= 35
    stamp(a, "preE1")
    a("s_barrier")
    stamp(a, "E1")
    D = Dumper(a, 30)

    def dump2(c):
        L.wait(("w2", 5 * c + 4))
        for jj in range(5):
            D(w2reg(5 * c + jj), (c % 7) * 20 * K + jj * K)

    for c in range(7):
        run(SCHED["e"])
        dump2(c)
    a("s_waitcnt lgkmcnt(0)")
    run(SCHED["f"])
    stamp(a, "sig4")
    a("s_barrier")
    stamp(a, "S4")
    run(SCHED["g0"])
    w2(60, 0)
    stamp(a, "m2p3")
    a("s_barrier")
    stamp(a, "m2b3")
    dump2(7)
    dump2(8)
    run(SCHED["g3"])
    a("s_waitcnt lgkmcnt(0)")
    stamp(a, "m2p5")
    a("s_barrier")
    stamp(a, "m2b5")
    dump2(9)
    dump2(10)
    run(SCHED["g5"])
    a("s_waitcnt lgkmcnt(0)")
    stamp(a, "m2p7")
    a("s_barrier")
    stamp(a, "m2b7")
    dump2(11)
    run(SCHED["g7"])
    a("s_waitcnt lgkmcnt(0)")
    stamp(a, "m2p9")
    a("s_barrier")
    stamp(a, "m2b9")
    run(SCHED["g9"])
    wq(24)
    a("s_barrier")
    a("s_cmp_lg_u32 s35, 0")
    a(f"s_cbranch_scc1 {fin}")
    a("s_waitcnt vmcnt(0)")
    D = Dumper(a, 33)
    for k in range(4 * NQS):
        D(WQR + 4 * k, WQ_ADDR[k // 4] + (k % 4) * K)
    a("s_waitcnt lgkmcnt(0)")
    a("s_barrier")
    L = Loader(a)

    def dq(c):
        if NQS <= c < 10:
            L.dma(("wq", c), 4, WQ_ADDR[c], 34, WQT + c * 16 * K, 33)

    def wt(c):
        if c >= NQS:
            L.wait(("wq", c))
    dq(4)
    dq(5)
    a("s_barrier")
    dq(6)
    dq(7)
    wt(5)
    a("s_barrier")
    dq(8)
    dq(9)
    wt(7)
    a("s_barrier")
    wt(8)
    a("s_barrier")
    wt(9)
    a("s_barrier")


def roles(a):
    a(f"s_and_b32 {s(S_X)}, s2, 7")
    a(f"s_lshr_b32 {s(S_I)}, s2, 3")
    a(f"s_lshr_b32 s22, {s(S_I)}, 4")
    a(f"s_lshl_b32 {s(S_DOM)}, {s(S_X)}, 1")
    a(f"s_add_u32 {s(S_DOM)}, {s(S_DOM)}, s22")


def gen_chain(a):
    a(".globl chainb_kernel")
    a(".p2align 8")
    a(".type chainb_kernel,@function")
    a("chainb_kernel:")
    a(f"s_mov_b32 {s(S_L)}, 1")
    a("s_branch L_chain_body")
    a(".globl chaina_kernel")
    a(".p2align 8")
    a(".type chaina_kernel,@function")
    a("chaina_kernel:")
    a(f"s_mov_b32 {s(S_L)}, 0")
    a("L_chain_body:")
    name = "chain"
    if gen1.PROFILE:
        a("s_memrealtime s[96:97]")
        a("s_memtime s[94:95]")
        for i in range(16):
            a(f"s_mov_b32 s{60+2*i}, 0")
    a("s_cmp_ge_u32 s2, 256")
    a(f"s_cbranch_scc1 L_end_{name}")
    gen1.load_srd(a, S_WS, 10, WS_END)
    gen1.load_srd(a, 8, 0, 2621440)
    gen1.load_srd(a, 12, 8, 2621440)
    gen1.load_srd(a, 16, 7, 1280)
    gen1.load_srd(a, S_DBG, 9, 256)
    a("v_lshrrev_b32 v1, 6, v0")
    a("v_and_b32 v0, 63, v0")
    a(f"v_readfirstlane_b32 {s(S_W)}, v1")
    roles(a)
    a(f"s_lshl_b32 {s(S_CNT)}, {s(S_L)}, 14")
    a(f"s_add_u32 {s(S_CNT)}, {s(S_CNT)}, {CNT}")
    a(f"s_mul_i32 {s(S_SCR)}, {s(S_X)}, {SCR_STRIDE}")
    a(f"s_add_u32 {s(S_SCR)}, {s(S_SCR)}, {SCR}")
    slow_path = att_phase(a)
    stamp(a, "ostored")
    signal(a, 0, 7, S_X, 31)
    stamp(a, "sig2")
    fin = a.label("fin")
    comp = a.label("comp")
    a(f"s_cmp_lt_u32 {s(S_W)}, 4")
    a(f"s_cbranch_scc1 {comp}")
    helper_chain(a, fin)
    a(f"s_branch {fin}")
    slow_path()
    a(f"{comp}:")
    g16_compute(a, False, fin)
    stamp(a, "xstored")
    a(f"s_mul_i32 s32, {s(S_W)}, 3072")
    D = Dumper(a, 32)
    for k in range(6):
        D(STA + 4 * k, W1_ADDR[k // 3] + (k % 3) * K)
    signal(a, 1, 11, S_DOM, 15)
    stamp(a, "sig3")
    mlp1_compute(a)
    stamp(a, "hstored")
    signal(a, 2, 15, S_DOM, 15)
    stamp(a, "sig4")
    last_layer = g16_compute(a, True, fin)
    signal(a, 3, 19, S_DOM, 15)
    stamp(a, "sig5")
    a(f"s_and_b32 s27, {s(S_I)}, 15")
    a("s_cmp_eq_u32 s27, 15")
    a(f"s_cbranch_scc1 {fin}")

    def sync():
        wait_sync(a, 3, 16, S_DOM)
        stamp(a, "S5")
    qkv_compute(a, R_XB, R_STB, KVB[1], QB[1], WQ_ADDR, QKV_BARS, sync, LD, fin)
    a(f"s_branch {fin}")
    last_layer()
    a(f"{fin}:")
    if gen1.PROFILE:
        a(f"s_lshl_b32 s22, {s(S_L)}, 8")
        a("s_add_u32 s2, s2, s22")
    gen1.kernel_tail(a, name, 1)


K1_NW = 20
K1_PC = 128 * K
K1_CS = 144 * K
K1_TA = 48


def tr_addr32(a, dst, t_imm=None, t_sgpr=None):
    a("v_bfe_u32 v24, v0, 2, 2")
    a("v_lshrrev_b32 v25, 5, v0")
    a("v_lshl_add_u32 v25, v25, 3, v24")
    a("v_lshlrev_b32 v25, 8, v25")
    a("v_bfe_u32 v26, v0, 4, 1")
    a("v_lshl_add_u32 v25, v26, 5, v25")
    a("v_and_b32 v26, 3, v0")
    a("v_lshl_add_u32 v25, v26, 3, v25")
    if t_sgpr is not None:
        a(f"v_xor_b32 v26, {s(t_sgpr)}, v24")
        a(f"v_lshl_add_u32 {v(dst)}, v26, 6, v25")
        a(f"v_add_u32 {v(dst+1)}, 0x10000, {v(dst)}")
    else:
        for t in range(4):
            a(f"v_xor_b32 v26, {t}, v24")
            a(f"v_lshl_add_u32 {v(dst+2*t)}, v26, 6, v25")
            a(f"v_add_u32 {v(dst+2*t+1)}, 0x10000, {v(dst+2*t)}")


K1_XB = 64 * K
K1_STX = 145 * K


def x_addr(a, dst, s_tile):
    a("v_and_b32 v24, 31, v0")
    a("v_bfe_u32 v25, v0, 1, 3")
    a("v_lshrrev_b32 v26, 5, v0")
    a("v_xor_b32 v25, v25, v26")
    a("v_lshlrev_b32 v24, 7, v24")
    a(f"s_lshl_b32 s22, {s(s_tile)}, 12")
    a(f"s_add_u32 s22, s22, {K1_XB}")
    a("v_add_u32 v24, s22, v24")
    for ks in range(4):
        a(f"v_xor_b32 v26, {2*ks}, v25")
        a(f"v_lshl_add_u32 {v(dst+ks)}, v26, 4, v24")


def k1_dma_setup(a):
    a("v_lshrrev_b32 v3, 4, v0")
    a("v_lshlrev_b32 v4, 2, v3")
    a("v_and_b32 v60, 15, v0")
    a("v_xor_b32 v60, v60, v4")
    a("v_lshlrev_b32 v60, 4, v60")
    a("v_mul_u32_u24 v4, 3840, v3")
    a("v_add_u32 v60, v60, v4")
    a("v_lshrrev_b32 v5, 3, v0")
    a("v_and_b32 v61, 7, v0")
    a("v_xor_b32 v61, v61, v3")
    a("v_mul_u32_u24 v5, 1280, v5")
    a("v_xor_b32 v62, 4, v61")
    a("v_lshl_add_u32 v61, v61, 4, v5")
    a("v_lshl_add_u32 v62, v62, 4, v5")
    a(f"s_mul_i32 s54, {s(S_W)}, {16*3840}")
    a("s_lshl_b32 s22, s27, 8")
    a("s_add_u32 s54, s54, s22")
    a(f"s_lshl_b32 s55, {s(S_DOM)}, 2")
    a(f"s_add_u32 s55, s55, {s(S_W)}")
    a(f"s_mul_i32 s55, s55, {32*1280}")
    a(f"s_lshl_b32 s56, {s(S_W)}, 12")


def k1_dma(a, c, j):
    if j == 0:
        a(f"s_mul_i32 s58, s57, {64*3840}")
        a("s_add_u32 s58, s58, s54")
        a("s_lshl_b32 s59, s57, 7")
        a("s_add_u32 s59, s59, s55")
    a(f"s_add_u32 m0, s56, {(c % 4)*16*K + j*K}")
    a(f"s_add_u32 s24, s58, {4*j*3840}")
    a("buffer_load_dwordx4 v60, s[12:15], s24 offen lds")
    a(f"s_add_u32 m0, s56, {K1_XB + (c % 4)*16*K + j*K}")
    a(f"s_add_u32 s24, s59, {8*j*1280}")
    a(f"buffer_load_dwordx4 {v(61 + (j & 1))}, s[8:11], s24 offen lds")
    if j == 3:
        a("s_add_u32 s57, s57, 1")
        a("s_cmp_eq_u32 s57, 10")
        a("s_cselect_b32 s57, 0, s57")


def k1_prologue(a):
    tr_addr32(a, K1_TA)
    x_addr(a, 56, S_W)
    for r in range(10, 16):
        a(f"v_mov_b32 {v(r)}, 0")


def k1_main(a, swap):
    issued = [24]

    def wread(k, t):
        off = ((k // 4) % 4) * 16 * K + (k % 4) * 4096
        r = G_WB + 16 * (k & 1) + 4 * t
        if t == 0:
            a(f"ds_read_b128 {v(G_AW + 4*(k & 1), 4)}, {v(56 + k % 4)} offset:{((k // 4) % 4) * 16 * K}")
        a(f"ds_read_b64_tr_b16 {v(r,2)}, {v(K1_TA + 2*t)} offset:{off}")
        a(f"ds_read_b64_tr_b16 {v(r+2,2)}, {v(K1_TA + 2*t)} offset:{off + K}")

    stamp(a, "k1p0")
    a("s_waitcnt vmcnt(16)")
    a("s_barrier")
    stamp(a, "k1b0")
    for t in range(4):
        wread(0, t)
    for k in range(40):
        last = (k == 39)
        bar = (k % 4 == 3) and not last
        for t in range(4):
            if last or bar:
                n = 6 - 2 * t
            else:
                n = 6 if t == 0 else 7
            if not (bar and t == 3):
                a(f"s_waitcnt lgkmcnt({n})")
            A_ = v(G_WB + 16 * (k & 1) + 4 * t, 4)
            B_ = v(G_AW + 4 * (k & 1), 4)
            if swap:
                A_, B_ = B_, A_
            D_ = v(G_ACC + 16 * t, 16)
            a(f"v_mfma_f32_32x32x16_bf16 {D_}, {A_}, {B_}, {D_ if k else 0}")
            if bar:
                if t == 2:
                    c1 = (k + 1) // 4
                    a(f"s_waitcnt vmcnt({issued[0] - 8*(c1+1)}) lgkmcnt(0)")
                    a("s_barrier")
                    stamp(a, f"k1b{c1}")
                    wread(k + 1, 0)
                    wread(k + 1, 1)
                if t == 3:
                    wread(k + 1, 2)
                    wread(k + 1, 3)
            elif not last:
                wread(k + 1, t)
            if t == 1 and k // 4 + 3 < 10:
                k1_dma(a, k // 4 + 3, k % 4)
                issued[0] += 2
    a("s_barrier")
    a(f"s_lshl_b32 s22, {s(S_W)}, 8")
    a(f"s_add_u32 s22, s22, {K1_STX}")
    a("v_lshlrev_b32 v24, 3, v5")
    a("v_add_u32 v24, s22, v24")
    a("ds_read_b64 v[8:9], v24")
    a("s_waitcnt lgkmcnt(0)")
    a("v_mul_f32 v8, 0.5, v8")
    a("v_mul_f32 v9, 0.5, v9")


def code_prefetch(a, idx_sgpr, va=24, vd=130):
    here = a.label("pc")
    a("s_getpc_b64 s[22:23]")
    a(f"{here}:")
    a(f"s_sub_u32 s22, s22, {here}-L_text_begin")
    a("s_subb_u32 s23, s23, 0")
    a(f"s_mul_i32 s24, {s(idx_sgpr)}, 128*((L_text_end-L_text_begin+4095)/4096)")
    a(f"v_lshlrev_b32 {v(va)}, 7, v0")
    a(f"v_add_u32 {v(va)}, s24, {v(va)}")
    a(f"v_min_u32 {v(va)}, L_text_end-L_text_begin-4, {v(va)}")
    a("v_cmp_gt_u32 vcc, (L_text_end-L_text_begin+4095)/4096, v0")
    a("s_and_saveexec_b64 s[24:25], vcc")
    a(f"global_load_dword {v(vd)}, {v(va)}, s[22:23]")
    a("s_mov_b64 exec, -1")


PIECES = [(0, 200, 16, 1280, 10, 16, False, WOT, 20, 5), (200, 480, 40, 1280, 10, 16, True, W2T, 48, 5),
          (680, 480, 36, 3072, 24, 32, False, W1T, 40, 3)]


def piece_dispatch(a, s_pid, fn):
    end = a.label("pend")
    for P in PIECES:
        nxt = a.label("pnext")
        a(f"s_cmp_ge_u32 {s(s_pid)}, {P[0]+P[1]}")
        a(f"s_cbranch_scc1 {nxt}")
        a(f"s_sub_u32 s23, {s(s_pid)}, {P[0]}")
        a(f"s_mov_b32 s24, {magic(P[4])}")
        a("s_mul_hi_u32 s25, s23, s24")
        a(f"s_mul_i32 s26, s25, {P[4]}")
        a("s_sub_u32 s26, s23, s26")
        fn(P)
        a(f"s_branch {end}")
        a(f"{nxt}:")
    a(f"{end}:")


def t_layout(a, r):
    a(f"v_permlane32_swap_b32 {v(r)}, {v(r+2)}")
    a(f"v_permlane32_swap_b32 {v(r+1)}, {v(r+3)}")
    a.nop(2)
    a(f"v_permlane16_swap_b32 {v(r)}, {v(r+1)}")
    a(f"v_permlane16_swap_b32 {v(r+2)}, {v(r+3)}")


def piece_load(a, s_pid, s_lds):
    def fn(P):
        RS = P[3]
        a(f"s_mul_i32 s25, s25, {32*RS}")
        a("s_lshl_b32 s26, s26, 7")
        a("s_add_u32 s25, s25, s26")
        a("v_lshrrev_b32 v20, 3, v0")
        a(f"v_mul_u32_u24 v20, {RS}, v20")
        a("v_and_b32 v21, 7, v0")
        a("v_lshl_add_u32 v20, v21, 4, v20")
        for j in range(4):
            a(f"s_add_u32 m0, {s(s_lds)}, {j*K}")
            a(f"s_add_u32 s24, s25, {8*j*RS}")
            a(f"buffer_load_dwordx4 v20, {s(P[2],4)}, s24 offen lds")
    piece_dispatch(a, s_pid, fn)


def piece_finish(a, s_pid, s_lds):
    def fn(P):
        typ, perm, outbase, nks, ntile = P[5:]
        a("v_lshrrev_b32 v21, 4, v0")
        a("v_bfe_u32 v22, v0, 2, 2")
        a("v_and_b32 v23, 3, v0")
        if typ == 16:
            if perm:
                a("v_lshrrev_b32 v24, 1, v21")
                a("v_lshlrev_b32 v24, 4, v24")
                a("v_and_b32 v25, 1, v21")
                a("v_lshl_add_u32 v24, v25, 2, v24")
                second = 8
            else:
                a("v_lshlrev_b32 v24, 3, v21")
                second = 4
            a("v_add_u32 v24, v24, v22")
            a("v_lshlrev_b32 v24, 7, v24")
            a("v_lshl_add_u32 v24, v23, 3, v24")
            frs = [(ft * 32, ft, 0) for ft in range(4)]
        else:
            a("v_lshrrev_b32 v24, 1, v21")
            a("v_lshlrev_b32 v24, 3, v24")
            a("v_add_u32 v24, v24, v22")
            a("v_lshlrev_b32 v24, 7, v24")
            a("v_lshl_add_u32 v24, v23, 3, v24")
            a("v_and_b32 v25, 1, v21")
            a("v_lshl_add_u32 v24, v25, 5, v24")
            second = 4
            frs = [(ks * 16 * 128 + ft * 64, ft, ks) for ft in range(2) for ks in range(2)]
        a(f"v_add_u32 v24, {s(s_lds)}, v24")
        tl = outbase != WOT
        if tl:
            a("v_and_b32 v20, 15, v0")
            a("v_lshl_add_u32 v20, v20, 2, v21")
            a("v_lshlrev_b32 v20, 4, v20")
        else:
            a("v_lshlrev_b32 v20, 4, v0")
        for i, (off, ft, ks) in enumerate(frs):
            a(f"ds_read_b64_tr_b16 {v(28+4*i,2)}, v24 offset:{off}")
            a(f"ds_read_b64_tr_b16 {v(30+4*i,2)}, v24 offset:{off+second*128}")
        for i, (off, ft, ks) in enumerate(frs):
            if typ == 16:
                a("s_lshl_b32 s23, s26, 2")
                a(f"s_add_u32 s23, s23, {ft}")
                a("s_mov_b32 s28, s25")
            else:
                a("s_lshl_b32 s23, s26, 1")
                a(f"s_add_u32 s23, s23, {ft}")
                a("s_lshl_b32 s28, s25, 1")
                a(f"s_add_u32 s28, s28, {ks}")
            a(f"s_mov_b32 s24, {magic(ntile)}")
            a("s_mul_hi_u32 s24, s23, s24")
            a(f"s_mul_i32 s22, s24, {ntile}")
            a("s_sub_u32 s23, s23, s22")
            a(f"s_mul_i32 s24, s24, {nks}")
            a("s_add_u32 s24, s24, s28")
            a(f"s_mul_i32 s24, s24, {ntile}")
            a("s_add_u32 s24, s24, s23")
            a("s_lshl_b32 s24, s24, 10")
            a(f"s_add_u32 s24, s24, {outbase}")
            a(f"s_waitcnt lgkmcnt({2*(3-i)})")
            if tl:
                t_layout(a, 28 + 4 * i)
            a(f"buffer_store_dwordx4 {v(28+4*i,4)}, v20, {WSR}, s24 offen")
    piece_dispatch(a, s_pid, fn)


def k1_helper(a):
    a(f"s_and_b32 s29, {s(S_W)}, 3")
    a("s_lshl_b32 s30, s29, 12")
    a("s_mov_b32 s49, s57")
    tr_addr32(a, 8, t_sgpr=29)
    a("v_and_b32 v5, 15, v0")
    a("v_lshrrev_b32 v6, 4, v0")
    a("v_bfe_u32 v16, v0, 1, 3")
    a("v_xor_b32 v16, v16, v6")
    a("v_xor_b32 v17, 4, v16")
    a("v_lshlrev_b32 v18, 7, v5")
    a(f"s_add_u32 s22, s30, {K1_XB}")
    a("v_add_u32 v18, s22, v18")
    a("v_lshl_add_u32 v16, v16, 4, v18")
    a("v_lshl_add_u32 v17, v17, 4, v18")
    a("v_xor_b32 v18, v5, v6")
    a("v_and_b32 v18, 1, v18")
    a("v_cmp_eq_u32 vcc, 0, v18")
    for r in range(4):
        a(f"v_mov_b32 {v(12+r)}, 0x3f803f80")
    for r in range(4):
        a(f"v_cndmask_b32 {v(116+r)}, 0, v12, vcc")
    for r in range(20):
        a(f"v_mov_b32 {v(56+r)}, 0")
    a("v_lshlrev_b32 v10, 4, v0")
    a("v_lshl_add_u32 v11, v5, 2, v6")
    a("v_lshlrev_b32 v11, 4, v11")
    a(f"s_mul_i32 s32, s27, {160*K}")
    a("s_lshl_b32 s22, s29, 10")
    a("s_add_u32 s32, s32, s22")
    a(f"s_add_u32 s32, s32, {WQT}")
    a(f"s_mul_i32 s34, {s(S_DOM)}, 15")
    a("s_add_u32 s34, s34, s27")
    a("s_lshl_b32 s34, s34, 2")
    a("s_add_u32 s34, s34, s29")
    a(f"s_add_u32 s35, s30, {K1_PC}")
    a("s_mov_b32 s31, 0")
    a("s_setprio 1")
    lp = a.label("hloop")
    a(f"{lp}:")
    a("s_barrier")
    for f in range(4):
        a(f"ds_read_b128 {v(96+4*f,4)}, {v(16 + (f >> 1))} offset:{(f & 1)*2048}")
    for ks in range(4):
        a(f"ds_read_b64_tr_b16 {v(80+4*ks,2)}, v8 offset:{ks*4096}")
        a(f"ds_read_b64_tr_b16 {v(82+4*ks,2)}, v8 offset:{ks*4096 + K}")
    a("v_add_u32 v8, 0x4000, v8")
    a("v_and_b32 v8, 0xffff, v8")
    for r in (16, 17):
        a(f"v_add_u32 {v(r)}, 0x4000, {v(r)}")
        a(f"v_and_b32 {v(r)}, 0xffff, {v(r)}")
        a(f"v_or_b32 {v(r)}, 0x10000, {v(r)}")
    a("s_lshl_b32 s22, s49, 2")
    a(f"s_sub_u32 s23, {s(S_DOM)}, s22")
    a("s_and_b32 s23, s23, 15")
    a("s_add_u32 s22, s22, s23")
    a("s_lshl_b32 s22, s22, 12")
    a("s_add_u32 s22, s22, s32")
    a("s_waitcnt lgkmcnt(8)")
    for f in range(4):
        th = f & 1
        a(f"v_mfma_f32_16x16x32_bf16 {v(60+4*th,4)}, v[12:15], {v(96+4*f,4)}, {v(60+4*th,4)}")
        a(f"v_mfma_f32_16x16x32_bf16 {v(68+4*th,4)}, {v(96+4*f,4)}, {v(96+4*f,4)}, {v(68+4*th,4)}")
    a("s_waitcnt lgkmcnt(0)")
    for ks in range(4):
        a(f"v_mfma_f32_16x16x32_bf16 v[56:59], {v(80+4*ks,4)}, v[116:119], v[56:59]")
    nost = a.label("nost")
    a("s_cmp_ge_u32 s23, 4")
    a(f"s_cbranch_scc1 {nost}")
    for ks in range(4):
        lab = a.label("nost")
        a(f"s_cmp_lg_u32 s23, {ks}")
        a(f"s_cbranch_scc1 {lab}")
        lt = a.label("tl")
        a(f"s_cmp_lt_u32 s49, {NQS}")
        a(f"s_cbranch_scc1 {lt}")
        a(f"buffer_store_dwordx4 {v(80+4*ks,4)}, v10, {WSR}, s22 offen")
        a(f"s_branch {nost}")
        a(f"{lt}:")
        t_layout(a, 80 + 4 * ks)
        a(f"buffer_store_dwordx4 {v(80+4*ks,4)}, v11, {WSR}, s22 offen")
        a(f"{lab}:")
    a(f"{nost}:")
    lab = a.label("nopl")
    a(f"s_cmp_lg_u32 s31, {OPT.get('k1pc', 8)}")
    a(f"s_cbranch_scc1 {lab}")
    piece_load(a, 34, 35)
    a(f"{lab}:")
    a("s_add_u32 s49, s49, 1")
    a("s_cmp_eq_u32 s49, 10")
    a("s_cselect_b32 s49, 0, s49")
    a("s_add_u32 s31, s31, 1")
    a("s_cmp_lt_u32 s31, 10")
    a(f"s_cbranch_scc1 {lp}")
    a("v_and_b32 v18, 3, v0")
    a("v_lshlrev_b32 v19, 3, v5")
    a("s_lshl_b32 s22, s29, 8")
    a(f"s_add_u32 s22, s22, {K1_STX}")
    a("v_add_u32 v19, s22, v19")
    for r in range(1, 4):
        a(f"v_cmp_eq_u32 vcc, {r}, v18")
        a.nop(2)
        a(f"v_cndmask_b32 v68, v68, {v(68+r)}, vcc")
        a(f"v_cndmask_b32 v72, v72, {v(72+r)}, vcc")
    a("v_mov_b32 v61, v68")
    a("v_mov_b32 v65, v72")
    a("s_mov_b32 exec_lo, 0x00f0000f")
    a("s_mov_b32 exec_hi, 0xf0000f00")
    a("ds_write_b64 v19, v[60:61]")
    a("ds_write_b64 v19, v[64:65] offset:128")
    a("s_mov_b64 exec, -1")
    a("v_lshlrev_b32 v3, 6, v5")
    a("v_lshl_add_u32 v3, v6, 4, v3")
    a("s_lshl_b32 s22, s29, 7")
    a("v_add_u32 v3, s22, v3")
    a(f"v_add_u32 v4, {K1_CS}, v3")
    a("s_lshl_b32 s22, s27, 9")
    a(f"s_add_u32 s22, s22, {CSQ}")
    a("s_mov_b32 exec_lo, 0x00030003")
    a("s_mov_b32 exec_hi, 0x00030003")
    a("ds_write_b128 v4, v[56:59]")
    lab = a.label("nocs")
    a(f"s_cmp_lg_u32 {s(S_DOM)}, 0")
    a(f"s_cbranch_scc1 {lab}")
    a(f"buffer_store_dwordx4 v[56:59], v3, {WSR}, s22 offen")
    a(f"{lab}:")
    a("s_mov_b64 exec, -1")
    a("s_waitcnt lgkmcnt(0)")
    a("s_barrier")
    a("s_setprio 0")
    a("s_waitcnt vmcnt(0)")
    piece_finish(a, 34, 35)


def k1_spare(a):
    a(f"s_lshl_b32 s34, {s(S_DOM)}, 3")
    a(f"s_add_u32 s34, s34, {s(S_W)}")
    a("s_lshl_b32 s34, s34, 1")
    a("s_add_u32 s34, s34, 960")
    a("s_add_u32 s33, s34, 1")
    a(f"s_lshl_b32 s35, {s(S_W)}, 13")
    a(f"s_add_u32 s35, s35, {64*K}")
    a("s_add_u32 s32, s35, 4096")
    a("v_mul_u32_u24 v2, 43, v0")
    a("v_lshrrev_b32 v2, 9, v2")
    a("v_mul_u32_u24 v3, 12, v2")
    a("v_sub_u32 v3, v0, v3")
    a("v_mul_u32_u24 v4, 3072, v2")
    a("v_lshl_add_u32 v4, v3, 4, v4")
    a(f"s_mul_i32 s30, {s(S_W)}, {80*3072}")
    a(f"s_mul_i32 s31, {s(S_DOM)}, 192")
    a("s_add_u32 s30, s30, s31")
    a("s_mov_b32 exec_hi, 0x0fffffff")
    for i in range(16):
        a(f"s_add_u32 s24, s30, {5*i*3072}")
        a(f"buffer_load_dwordx4 {v(64+4*i,4)}, v4, s[36:39], s24 offen")
    a("s_mov_b64 exec, -1")
    piece_load(a, 34, 35)
    piece_load(a, 33, 32)
    for j in range(8):
        a(f"v_mov_b32 {v(8+j)}, 0")
    a("v_mov_b32 v16, 0x00003f80")
    a("v_mov_b32 v17, 0x3f800000")
    a(f"s_mul_i32 s22, {s(S_W)}, {5*384}")
    a("v_mul_u32_u24 v5, 384, v2")
    a("v_lshl_add_u32 v5, v3, 5, v5")
    a("v_add_u32 v5, s22, v5")
    a("s_waitcnt vmcnt(0)")
    for i in range(16):
        for j in range(4):
            a(f"v_dot2_f32_bf16 {v(8+2*j)}, {v(64+4*i+j)}, v16, {v(8+2*j)}")
            a(f"v_dot2_f32_bf16 {v(9+2*j)}, {v(64+4*i+j)}, v17, {v(9+2*j)}")
    a("s_mov_b32 exec_hi, 0x0fffffff")
    a.nop(3)
    a("ds_write_b128 v5, v[8:11]")
    a("ds_write_b128 v5, v[12:15] offset:16")
    a("s_mov_b64 exec, -1")
    a("s_waitcnt lgkmcnt(0)")
    a("s_barrier")
    lab = a.label("nored")
    a(f"s_cmp_ge_u32 {s(S_W)}, 2")
    a(f"s_cbranch_scc1 {lab}")
    a(f"s_mul_i32 s22, {s(S_W)}, 48")
    a("v_add_u32 v6, s22, v0")
    a("v_lshlrev_b32 v7, 2, v6")
    a("v_lshlrev_b32 v18, 1, v6")
    a("s_mov_b32 exec_hi, 0xffff")
    a(f"buffer_load_ushort v19, v18, s[44:47], s31 offen")
    for i in range(40):
        a(f"ds_read_b32 {v(64+i)}, v7 offset:{384*i}")
        if i % 10 == 9:
            a("s_waitcnt lgkmcnt(0)")
    for i in range(1, 40):
        a(f"v_add_f32 v64, v64, {v(64+i)}")
    a(f"s_mul_i32 s22, {s(S_DOM)}, 768")
    a(f"s_add_u32 s23, s22, {CS1}")
    a(f"s_add_u32 s22, s22, {CS1+384}")
    a(f"buffer_store_dword v64, v7, {WSR}, s23 offen")
    a("s_waitcnt vmcnt(1)")
    a("v_lshlrev_b32 v19, 16, v19")
    a(f"buffer_store_dword v19, v7, {WSR}, s22 offen")
    a("s_mov_b64 exec, -1")
    a(f"{lab}:")
    piece_finish(a, 34, 35)
    a.nop(2)
    piece_finish(a, 33, 32)


def gen_k1(a):
    name = "first_kernel"
    gen1.kernel_head(a, name, 256, [(8, 0, 2621440), (12, 1, 2457600), (16, 2, 819200), (36, 4, 1966080),
                                    (40, 6, 1966080), (44, 5, 3072)])
    a.lines.pop()
    lab = a.label("nocp")
    a(f"s_cmp_lg_u32 {s(S_W)}, 7")
    a(f"s_cbranch_scc1 {lab}")
    a("s_lshr_b32 s26, s2, 3")
    if OPT.get("cpf", 1):
        code_prefetch(a, 26)
    a(f"{lab}:")
    a("s_and_b32 s22, s2, 7")
    a("s_lshr_b32 s23, s2, 3")
    a("s_lshr_b32 s24, s22, 1")
    a("s_lshl_b32 s24, s24, 2")
    a("s_lshr_b32 s25, s23, 3")
    a(f"s_add_u32 {s(S_DOM)}, s24, s25")
    a("s_and_b32 s27, s22, 1")
    a("s_lshl_b32 s27, s27, 3")
    a("s_and_b32 s23, s23, 7")
    a("s_add_u32 s27, s27, s23")
    tab = 0
    for x in range(8):
        tab |= (([0, 3, 5, 8][x >> 1] + 5 * (x & 1)) % 10 if OPT.get("rot", 0) else 0) << (4 * x)
    a(f"s_mov_b32 s57, {hex(tab)}")
    a("s_lshl_b32 s24, s22, 2")
    a("s_lshr_b32 s57, s57, s24")
    a("s_and_b32 s57, s57, 15")
    fin = a.label("fin")
    hlp = a.label("hlp")
    spare = a.label("spare")
    a("s_cmp_eq_u32 s27, 15")
    a(f"s_cbranch_scc1 {spare}")
    a(f"s_cmp_ge_u32 {s(S_W)}, 4")
    a(f"s_cbranch_scc1 {hlp}")
    k1_dma_setup(a)
    a("s_waitcnt lgkmcnt(0)")
    for c in range(2):
        for j in range(4):
            k1_dma(a, c, j)

    def third():
        for j in range(4):
            k1_dma(a, 2, j)
    qkv_compute(a, None, None, KVB[0], QB[0], None, None, third, "", fin, first=True)
    a(f"s_branch {fin}")
    a(f"{hlp}:")
    a("s_waitcnt lgkmcnt(0)")
    k1_helper(a)
    a(f"s_branch {fin}")
    a(f"{spare}:")
    a("s_waitcnt lgkmcnt(0)")
    k1_spare(a)
    a("v_lshlrev_b32 v2, 2, v0")
    a("v_mov_b32 v3, 0")
    a(f"s_lshl_b32 s22, {s(S_DOM)}, 3")
    a(f"s_add_u32 s22, s22, {s(S_W)}")
    a("s_lshl_b32 s22, s22, 8")
    a(f"s_add_u32 s22, s22, {CNT}")
    a(f"buffer_store_dword v3, v2, {WSR}, s22 offen")
    a(f"{fin}:")
    gen1.kernel_tail(a, name, 0)
    return name


def generate(profile=False):
    gen1.PROFILE = profile
    a = Asm()
    a("L_text_begin:")
    names = [gen_k1(a)]
    gen_chain(a)
    a("L_text_end:")
    names += ["chaina_kernel", "chainb_kernel"]
    body = a.text()
    probs = check_hazards(body)
    hdr = open("cdna_kernels/" + NAME + ".s.ref").read().split("; Override launch")[0]
    out = hdr
    for n in names:
        lds = {"pre": 32768}.get(n[:3], 163840)
        out += f"; @launch kernel={n} grid=(256,1,1) block=(512,1,1) lds={lds}\n"
    out += '.amdgcn_target "amdgcn-amd-amdhsa--gfx950"\n.text\n' + body
    out += '.section .rodata,"a"\n'
    for n in names:
        out += ".p2align 6\n" + gen1.descriptor(n)
    return out, probs


if __name__ == "__main__":
    prof = "--profile" in sys.argv
    for arg in sys.argv[2:]:
        if arg.startswith("st="):
            ACTIVE.extend(arg[3:].split(","))
        elif arg.startswith("s."):
            kk, vv = arg[2:].split("=")
            SCHED[kk] = vv.replace(",", " ")
        elif "=" in arg:
            OPT[arg.split("=")[0]] = int(arg.split("=")[1])
    if not ACTIVE:
        ACTIVE.extend("P0,B1,B4,B7,preRa,S2,womain,sig3,S3,E1,sig4,S4,m2main,sig5,S5,qkvmain".split(","))
    out, probs = generate(prof)
    for p in probs[:50]:
        print("HAZARD", p)
    print("hazards:", len(probs))
    path = sys.argv[1]
    if prof:
        out = "; stamps: " + ",".join(ACTIVE) + "\n" + out
    open(path, "w").write(out)
    print("wrote", path, len(out), "bytes")
```

```python
import math
import struct
import sys
from asmlib import Asm, v, s, check_hazards
import gen1
from gen1 import fhex, magic, sum_xor16, sum_xor32, ln_stats, EPS, QSCALE, NAME

K = 1024
WOT = gen1.WOT
W1T = gen1.W1T
W2T = gen1.W2T
WQT = gen1.WQT
CSQ = gen1.CSQ
CS1 = gen1.CS1
B1F = gen1.B1F
CNT = 0x788000
SCR = 0x800000
SCR_STRIDE = 1856 * K
R_XA = 0
R_XB = 320 * K
R_H = 640 * K
R_STA = 1408 * K
R_STB = 1424 * K
R_O = 1536 * K
KVB = [0x1700000, 0x1C00000]
QB = [0x2100000, 0x2380000]
PROF = gen1.PROF
WS_END = gen1.WS_END

S_WS = 4
S_W = 20
S_X = 21
S_L = 50
S_I = 51
S_CNT = 52
S_DOM = 53
S_PURE = 54
S_XCC = 55
S_DBG = 56
S_SCR = 3
FORCE_IMPURE = False
WSR = s(S_WS, 4)

SYNC_LDS = 159 * K
ST = ""
LD = "sc1"
OPT = {}


ACTIVE = []
SCHED = {'a': 'w2*26', 'r': '', 'b': '', 'c': '', 'c3': '', 'c6': 'w3*9', 'e': 'wwww3', 'f': '', 'g0': '', 'g2': '', 'g4': '', 'g6': '', 'g8': '', 'g10': ''}


def stamp(a, name):
    if name in ACTIVE:
        gen1.stamp(a, ACTIVE.index(name))


class Loader:
    def __init__(self, a):
        self.a = a
        self.ops = []

    def dma(self, tag, n, lds, s_src, src_off, s_ldsw, j0=0):
        a = self.a
        for j in range(n):
            if j % 4 == 0:
                a(f"s_add_u32 m0, {s(s_ldsw)}, {lds + (j0+j)*K}")
                a(f"s_add_u32 s24, {s(s_src)}, {src_off + (j0+j)*K}")
            a(f"buffer_load_dwordx4 v2, {WSR}, s24 offen offset:{(j % 4)*K} lds")
            self.ops.append(tag)

    def other(self, tag):
        self.ops.append(tag)

    def wait(self, tag):
        last = max(i for i, t in enumerate(self.ops) if t == tag)
        n = len(self.ops) - 1 - last
        self.a(f"s_waitcnt vmcnt({min(n, 63)})")


def touch_items(a, L, base, nbytes, s_base, lines, vaddr, s_tmp, flags="", vd=28):
    pw = nbytes // 128
    assert pw % 128 == 0
    items = []
    off = 0
    while off < pw:
        n = min(lines, (pw - off) // 128)

        def f(off=off, n=n):
            if off == 0:
                a(f"s_lshl_b32 {s(s_tmp)}, {s(S_I)}, 2")
                a(f"s_add_u32 {s(s_tmp)}, {s(s_tmp)}, s29")
                a(f"s_mul_i32 {s(s_tmp)}, {s(s_tmp)}, {pw}")
                if s_base is not None:
                    a(f"s_add_u32 {s(s_tmp)}, {s(s_tmp)}, {s(s_base)}")
            a(f"s_add_u32 s24, {s(s_tmp)}, {base + off}")
            if n < 64:
                a(f"s_mov_b64 exec, {hex((1 << n) - 1)}" if n <= 31 else f"s_mov_b32 exec_hi, {hex((1 << (n-32)) - 1)}")
            a(f"buffer_load_dword {v(vd)}, {v(vaddr)}, {WSR}, s24 offen {flags}")
            L.other("pf")
            if n < 64:
                a("s_mov_b64 exec, -1")
        items.append(f)
        off += n * 128
    return items


def signal(a, phase, last_count, dom_sgpr, mem_mask):
    skip = a.label("nosig")
    imp = a.label("sigimp")
    a(f"v_mov_b32 v8, {SYNC_LDS}")
    a("v_mov_b32 v9, 1")
    a(f"s_lshl_b32 s22, {s(dom_sgpr)}, 8")
    a(f"s_add_u32 s22, s22, {s(S_CNT)}")
    a(f"s_add_u32 s22, s22, {phase*8192}")
    a("s_mov_b64 exec, 1")
    a("s_waitcnt vmcnt(0)")
    a("ds_add_rtn_u32 v10, v8, v9")
    a(f"s_and_b32 s23, {s(S_I)}, {mem_mask}")
    a("s_lshl_b32 s23, s23, 2")
    a("v_mov_b32 v8, s23")
    a("s_waitcnt lgkmcnt(0)")
    a(f"v_cmp_ne_u32 vcc, {last_count}, v10")
    a(f"s_cbranch_vccnz {skip}")
    a(f"s_cmp_eq_u32 {s(S_PURE)}, 0")
    a(f"s_cbranch_scc1 {imp}")
    a(f"buffer_store_dword v9, v8, {WSR}, s22 offen")
    a(f"s_branch {skip}")
    a(f"{imp}:")
    a("buffer_wbl2 sc1")
    a("s_waitcnt vmcnt(0)")
    a("v_mov_b32 v8, 128")
    a(f"buffer_atomic_add v9, v8, {WSR}, s22 offen sc1")
    a(f"{skip}:")
    a("s_mov_b64 exec, -1")


NSUB = 4


def signal_global(a, last_count):
    skip = a.label("nosig")
    a(f"v_mov_b32 v8, {SYNC_LDS}")
    a("v_mov_b32 v9, 1")
    a(f"s_and_b32 s22, {s(S_I)}, 7")
    a(f"s_mul_i32 s22, s22, {NSUB}")
    a(f"s_and_b32 s23, {s(S_X)}, {NSUB-1}")
    a("s_add_u32 s22, s22, s23")
    a("s_lshl_b32 s22, s22, 8")
    a(f"s_add_u32 s22, s22, {s(S_CNT)}")
    a("s_mov_b64 exec, 1")
    a("s_waitcnt vmcnt(0)")
    a("ds_add_rtn_u32 v10, v8, v9")
    a("v_mov_b32 v8, 0")
    a("s_waitcnt lgkmcnt(0)")
    a(f"v_cmp_ne_u32 vcc, {last_count}, v10")
    a(f"s_cbranch_vccnz {skip}")
    a(f"buffer_atomic_add v9, v8, {WSR}, s22 offen sc1")
    a(f"{skip}:")
    a("s_mov_b64 exec, -1")


def wait_global(a):
    oth = a.label("spin")
    done = a.label("go")
    poll = a.label("poll")
    out = a.label("polled")
    a(f"v_mov_b32 v8, {SYNC_LDS+4}")
    a(f"s_cmp_lg_u32 {s(S_W)}, 0")
    a(f"s_cbranch_scc1 {oth}")
    a(f"s_mul_i32 s22, {s(S_X)}, {NSUB*256}")
    a(f"s_add_u32 s22, s22, {s(S_CNT)}")
    a("s_mov_b32 s23, 200000")
    a("v_lshlrev_b32 v9, 8, v0")
    a(f"s_mov_b64 exec, {(1 << NSUB) - 1}")
    a(f"{poll}:")
    a(f"buffer_load_dword v10, v9, {WSR}, s22 offen sc1")
    a("s_sub_u32 s23, s23, 1")
    a(f"s_cbranch_scc1 {out}")
    a("s_waitcnt vmcnt(0)")
    a(f"v_cmp_gt_u32 vcc, {32 // NSUB}, v10")
    a(f"s_cbranch_vccnz {poll}")
    a(f"{out}:")
    a("v_mov_b32 v9, 1")
    a("ds_write_b32 v8, v9")
    a(f"s_branch {done}")
    a(f"{oth}:")
    a("s_mov_b64 exec, 1")
    a("s_mov_b32 s23, 8000000")
    sp = a.label("sp")
    a(f"{sp}:")
    a("ds_read_b32 v9, v8")
    a("s_sub_u32 s23, s23, 1")
    a(f"s_cbranch_scc1 {done}")
    a("s_waitcnt lgkmcnt(0)")
    a("v_cmp_gt_u32 vcc, 1, v9")
    a(f"s_cbranch_vccnz {sp}")
    a(f"{done}:")
    a("s_waitcnt lgkmcnt(0)")
    a("s_mov_b64 exec, -1")


def wait_sync(a, phase, n, dom_sgpr):
    oth = a.label("spin")
    done = a.label("go")
    poll = a.label("poll")
    out = a.label("polled")
    imp = a.label("pollimp")
    poll2 = a.label("poll2")
    out2 = a.label("polled2")
    a(f"v_mov_b32 v8, {SYNC_LDS+4}")
    a(f"s_cmp_lg_u32 {s(S_W)}, 0")
    a(f"s_cbranch_scc1 {oth}")
    a(f"s_lshl_b32 s22, {s(dom_sgpr)}, 8")
    a(f"s_add_u32 s22, s22, {s(S_CNT)}")
    a(f"s_add_u32 s22, s22, {phase*8192}")
    a("s_mov_b32 s23, 200000")
    a(f"s_cmp_eq_u32 {s(S_PURE)}, 0")
    a(f"s_cbranch_scc1 {imp}")
    a("v_lshlrev_b32 v9, 2, v0")
    a(f"s_mov_b32 exec_lo, {hex((1 << n) - 1)}")
    a("s_mov_b32 exec_hi, 0")
    a(f"{poll}:")
    a(f"buffer_load_dword v10, v9, {WSR}, s22 offen sc1")
    a("s_sub_u32 s23, s23, 1")
    a(f"s_cbranch_scc1 {out}")
    a("s_waitcnt vmcnt(0)")
    a("v_cmp_ne_u32 vcc, 1, v10")
    a(f"s_cbranch_vccnz {poll}")
    a(f"{out}:")
    a(f"v_mov_b32 v9, {phase+1}")
    a("ds_write_b32 v8, v9")
    a(f"s_branch {done}")
    a(f"{imp}:")
    a("s_mov_b64 exec, 1")
    a("v_mov_b32 v9, 128")
    a(f"{poll2}:")
    a(f"buffer_load_dword v10, v9, {WSR}, s22 offen sc1")
    a("s_sub_u32 s23, s23, 1")
    a(f"s_cbranch_scc1 {out2}")
    a("s_waitcnt vmcnt(0)")
    a(f"v_cmp_gt_u32 vcc, {n}, v10")
    a(f"s_cbranch_vccnz {poll2}")
    a(f"{out2}:")
    a("s_waitcnt vmcnt(0)")
    a("buffer_inv sc1")
    a("s_waitcnt vmcnt(0)")
    a(f"s_branch {out}")
    a(f"{oth}:")
    a("s_mov_b64 exec, 1")
    a("s_mov_b32 s23, 8000000")
    sp = a.label("sp")
    a(f"{sp}:")
    a("ds_read_b32 v9, v8")
    a("s_sub_u32 s23, s23, 1")
    a(f"s_cbranch_scc1 {done}")
    a("s_waitcnt lgkmcnt(0)")
    a(f"v_cmp_gt_u32 vcc, {phase+1}, v9")
    a(f"s_cbranch_vccnz {sp}")
    a(f"{done}:")
    a("s_waitcnt lgkmcnt(0)")
    a("s_mov_b64 exec, -1")


def xcc_value(a):
    a(f"s_getreg_b32 {s(S_XCC)}, hwreg(HW_REG_XCC_ID)")
    a(f"s_and_b32 {s(S_XCC)}, {s(S_XCC)}, 7")
    a(f"s_mul_i32 s22, {s(S_XCC)}, {s(S_XCC)}")
    a("s_lshl_b32 s22, s22, 8")
    a(f"s_add_u32 s22, s22, {s(S_XCC)}")
    a("s_lshl_b32 s22, s22, 8")
    a(f"s_add_u32 {s(S_XCC)}, s22, 1")
    a(f"s_lshl_b32 s22, {s(S_X)}, 5")
    a("v_mov_b32 v26, s22")


def publish_xcc(a):
    lab = a.label("nopub")
    a(f"s_cmp_lg_u32 {s(S_W)}, 0")
    a(f"s_cbranch_scc1 {lab}")
    a(f"v_mov_b32 v8, {s(S_XCC)}")
    a("s_mov_b64 exec, 1")
    a(f"buffer_atomic_add v8, v26, {s(S_DBG,4)}, 0 offen sc1")
    a("s_mov_b64 exec, -1")
    a(f"{lab}:")


def purity_load(a):
    a(f"buffer_load_dword v27, v26, {s(S_DBG,4)}, 0 offen sc1")


def purity_check(a):
    lp = a.label("pur")
    ok = a.label("purok")
    a("s_mov_b32 s23, 200000")
    a(f"{lp}:")
    a("v_readfirstlane_b32 s22, v27")
    a("s_and_b32 s24, s22, 0xff")
    a("s_cmp_eq_u32 s24, 32")
    a(f"s_cbranch_scc1 {ok}")
    a(f"buffer_load_dword v27, v26, {s(S_DBG,4)}, 0 offen sc1")
    a("s_waitcnt vmcnt(0)")
    a("s_sub_u32 s23, s23, 1")
    a(f"s_cbranch_scc0 {lp}")
    a(f"{ok}:")
    a(f"s_lshl_b32 s24, {s(S_XCC)}, 5")
    a("s_cmp_eq_u32 s24, s22")
    a(f"s_cselect_b32 {s(S_PURE)}, {0 if FORCE_IMPURE else 1}, 0")


RB = 100 * K


STG = 160
W1_ADDR = [c * 12 * K for c in range(10)]
STA = 208
RESL = 240
C1_LDS = 158 * K
CQ_LDS = 153 * K
NQS = int(__import__('os').environ.get('NQS', 4))


def att_phase(a):
    SX, SY, O0, O1, VB, K16, K4, Q4, QA, IDX = 32, 64, 96, 112, 128, 144, 148, 150, 152, 30
    a(f"s_lshr_b32 s48, {s(S_I)}, 3")
    a(f"s_lshl_b32 s22, {s(S_X)}, 2")
    a("s_add_u32 s48, s48, s22")
    a(f"s_and_b32 s49, {s(S_I)}, 7")
    a("s_mul_i32 s26, s48, 163840")
    a(f"s_mul_i32 s22, {s(S_L)}, {KVB[1]-KVB[0]}")
    a("s_add_u32 s26, s26, s22")
    a(f"s_add_u32 s26, s26, {KVB[0]}")
    a("v_lshlrev_b32 v2, 4, v0")
    a(f"s_lshl_b32 s30, {s(S_W)}, 10")
    a("s_add_u32 s31, s26, s30")
    a(f"s_add_u32 m0, s30, {RB}")
    a(f"s_and_b32 s29, {s(S_W)}, 3")
    a(f"s_lshr_b32 s33, {s(S_W)}, 2")
    a("s_lshl_b32 s27, s29, 1")
    a("s_lshl_b32 s22, s49, 3")
    a("s_add_u32 s22, s22, s27")
    a("s_mul_i32 s22, s22, 1280")
    a("s_mul_i32 s28, s48, 81920")
    a("s_add_u32 s28, s28, s22")
    a(f"s_mul_i32 s22, {s(S_L)}, {QB[1]-QB[0]}")
    a("s_add_u32 s28, s28, s22")
    a(f"s_add_u32 s28, s28, {QB[0]}")
    a("s_mul_i32 s22, s33, 1280")
    a("s_add_u32 s23, s28, s22")
    a("s_sub_u32 s22, s28, s22")
    a("v_and_b32 v5, 31, v0")
    a("v_lshrrev_b32 v6, 5, v0")
    a("v_xor_b32 v7, s33, v6")
    a("v_mul_u32_u24 v7, 1280, v7")
    a("v_lshl_add_u32 v7, v5, 3, v7")
    a("s_waitcnt lgkmcnt(0)")
    a(f"buffer_load_dwordx4 v2, {WSR}, s31 offen lds")
    a(f"buffer_load_dwordx4 {v(QA,4)}, v2, {WSR}, s23 offen")
    a(f"buffer_load_dwordx4 {v(QA+4,4)}, v2, {WSR}, s22 offen offset:1280")
    a(f"buffer_load_dwordx2 {v(Q4,2)}, v7, {WSR}, s28 offen offset:1024")
    LA, LB = Loader(a), Loader(a)
    for L in (LA, LB):
        for _ in range(4):
            L.other("q")

    def lin(L, tag, n, off):
        a(f"s_mul_i32 s30, s29, {n*K}")
        a("s_add_u32 s31, s26, s30")
        L.dma(tag, n, RB + off, 31, off, 30)

    lab = a.label("nl")
    a(f"s_cmp_lt_u32 {s(S_W)}, 4")
    a(f"s_cbranch_scc1 {lab}")
    lin(LB, "p0b", 1, 8 * K)
    a(f"{lab}:")
    a("s_add_u32 s27, s27, s33")
    a("s_mov_b32 s34, 0")
    a("s_lshl_b32 s22, s33, 10")
    a(f"s_add_u32 s22, s22, {RB}")
    a("v_add_u32 v11, s22, v2")
    a("s_lshl_b32 s22, s33, 8")
    a(f"s_add_u32 s22, s22, {RB+2048}")
    a("v_mul_u32_u24 v3, 5120, v6")
    a("v_lshl_add_u32 v3, v5, 3, v3")
    a("v_add_u32 v3, s22, v3")
    a("s_mul_i32 s22, s33, 1280")
    a(f"s_add_u32 s22, s22, {RB+2560}")
    a("v_mul_u32_u24 v4, 320, v6")
    a("v_lshl_add_u32 v4, v5, 4, v4")
    a("v_add_u32 v4, s22, v4")
    a(f"v_mov_b32 {v(IDX)}, 0xdddddddd")
    a("v_mov_b32 v8, 0x3f803f80")
    a("v_cmp_eq_u32 vcc, 20, v5")
    a("s_mov_b32 s40, 0x000fffff")
    a("s_mov_b32 s41, 0x000fffff")
    for j in range(16):
        a(f"v_cndmask_b32 {v(VB+j)}, 0, v8, vcc")
    for j in range(32):
        a(f"v_mov_b32 {v(O0+j)}, 0")
    a(f"s_and_b32 s39, {s(S_I)}, 15")
    a(f"s_mul_i32 s39, s39, {120*K}")
    a("s_mul_i32 s22, s29, 3072")
    a("s_add_u32 s39, s39, s22")
    xcc_value(a)
    for reg, x in ((12, 0), (13, 4)):
        a(f"s_xor_b32 s24, {s(S_W)}, {x}")
        a("s_mul_i32 s22, s24, 3072")
        a("s_cmp_ge_u32 s24, 6")
        a(f"s_cselect_b32 s24, {22*K}, 0")
        a("s_add_u32 s22, s22, s24")
        a(f"s_add_u32 s22, s22, {RB}")
        a(f"v_add_u32 {v(reg)}, s22, v2")
    a(f"s_lshl_b32 s22, {s(S_W)}, 2")
    a(f"s_add_u32 s22, s22, {SYNC_LDS+64}")
    a("v_mov_b32 v23, s22")
    a("v_and_b32 v24, 7, v0")
    a("v_lshlrev_b32 v24, 2, v24")
    a(f"v_add_u32 v24, {SYNC_LDS+64}, v24")
    a(f"v_mov_b32 v25, {fhex(2.0**64)}")
    a("v_lshlrev_b32 v29, 7, v0")
    a("v_lshrrev_b32 v9, 4, v5")
    a(f"v_mul_u32_u24 v9, {20*K}, v9")
    a("v_and_b32 v10, 15, v5")
    a("v_lshl_add_u32 v20, v10, 4, v9")
    a("v_lshl_add_u32 v20, v6, 8, v20")
    a("s_lshl_b32 s22, s48, 9")
    a("v_add_u32 v20, s22, v20")
    a("v_lshl_add_u32 v21, v10, 3, v9")
    a("s_lshl_b32 s22, s48, 7")
    a(f"s_add_u32 s22, s22, {16*K}")
    a("v_add_u32 v21, s22, v21")
    a(f"s_mul_i32 s38, s27, {2*20*K}")
    a(f"s_mul_i32 s22, s49, {SCR_STRIDE}")
    a("s_add_u32 s38, s38, s22")
    a(f"s_add_u32 s38, s38, {SCR + R_O}")
    for r in range(16, 20):
        a(f"v_mov_b32 {v(r)}, 0")

    def sbase(j):
        return ((j // 4) % 3) * 20480 + (j % 4) * 5120

    def readK(j):
        if j % 2 == 0 or j == 1:
            a(f"ds_read_b64 {v(K4,2)}, v3 offset:{sbase(j & ~1)}")
        a(f"ds_read_b128 {v(K16,4)}, v11 offset:{sbase(j)}")

    def readV(j):
        a("s_mov_b64 exec, s[40:41]")
        for u in range(2):
            a(f"ds_read_b128 {v(VB+8*(j & 1)+4*u,4)}, v4 offset:{sbase(j)+640*u}")
        a("s_mov_b64 exec, -1")

    def qk2b(Y, j, C="0"):
        a(f"v_mfma_f32_32x32x4_2b_bf16 {v(Y,32)}, {v(K4,2)}, {v(Q4,2)}, {C} cbsz:1 abid:{j & 1}")

    def qk16(Y, t):
        a(f"v_mfma_f32_32x32x16_bf16 {v(Y+16*t,16)}, {v(K16,4)}, {v(QA+4*t,4)}, {v(Y+16*t,16)}")

    def pv(j, X, u):
        a(f"v_smfmac_f32_32x32x32_bf16 {v(O0+16*(u >> 1),16)}, {v(VB+8*(j & 1)+4*(u & 1),4)}, {v(X+8*u,8)}, {v(IDX)}")

    def w1_item(L, c, reg):
        def f():
            a(f"s_add_u32 s24, s39, {W1T + c*12*K}")
            for jj in range(3):
                a(f"buffer_load_dwordx4 {v(reg+4*jj,4)}, v2, {WSR}, s24 offen offset:{jj*K}")
                L.other("w1")
        return f

    def main(role):
        L = LB if role else LA
        sched = {}

        def at(j, slot, f, kind=None):
            if kind and OPT.get("dbg_no" + kind, 0):
                return
            sched.setdefault((j, slot), []).append(f)

        if role:
            at(-1, 0, lambda: lin(L, "p1", 2, 12 * K))
            at(-1, 1, lambda: lin(L, "p2", 3, 20 * K))
            at(0, 1, lambda: lin(L, "p3", 2, 32 * K))
            at(1, 0, lambda: lin(L, ("c", 2), 5, 40 * K))
            for c in range(3, 8):
                j = 4 * (c - 2) - 2
                at(j, 1, lambda c=c: L.dma(("c", c), 3, RB + (c % 3) * 20480, 31, c * 20480, 30))
                at(j + 1, 0, lambda c=c: L.dma(("c", c), 2, RB + (c % 3) * 20480, 31, c * 20480, 30, 3))
            j0 = OPT.get("w1s", 8)
            steps = [j for j in range(j0, 30) if j % 4 in (0, 1, 2)]
            for n in range(8):
                at(steps[n], 0, w1_item(L, 2 + n, STG + 12 * n), 'w1')

            def consts():
                a(f"s_and_b32 s22, {s(S_I)}, 15")
                a("s_mul_i32 s24, s22, 768")
                a(f"s_add_u32 s24, s24, {CS1}")
                a(f"s_mov_b32 m0, {C1_LDS}")
                a("s_mov_b32 exec_hi, 0xffff")
                a(f"buffer_load_dwordx4 v2, {WSR}, s24 offen lds")
                a("s_lshl_b32 s24, s22, 9")
                a(f"s_add_u32 s24, s24, {CSQ}")
                a(f"s_mov_b32 m0, {CQ_LDS}")
                a("s_mov_b32 exec_hi, 0")
                a(f"buffer_load_dwordx4 v2, {WSR}, s24 offen lds")
                a("s_mov_b64 exec, -1")
                L.other("k")
                L.other("k")
            at(27, 0, consts)
        else:
            def wo_setup():
                a("s_mul_i32 s30, s29, 5120")
                a(f"s_and_b32 s32, {s(S_I)}, 7")
                a(f"s_mul_i32 s32, s32, {100*K}")
                a("s_add_u32 s32, s32, s30")
                a(f"s_lshl_b32 s42, {s(S_I)}, 2")
                a("s_add_u32 s42, s42, s29")
                a(f"s_mul_i32 s42, s42, {12*K}")
                a(f"s_add_u32 s42, s42, {s(S_SCR)}")
                a(f"s_lshl_b32 s22, {s(S_L)}, 31")
                a("s_or_b32 s42, s42, s22")
            at(0, 0, wo_setup)
            if OPT.get("cpf", 1):
                def cp():
                    lab = a.label("ncp")
                    a(f"s_cmp_lg_u32 {s(S_W)}, 3")
                    a(f"s_cbranch_scc1 {lab}")
                    code_prefetch(a, S_I, 31, 28)
                    a(f"{lab}:")
                at(OPT.get("cpfs", 24), 1, cp)
            j0 = OPT.get("wos", 1)
            for c in range(5):
                at(j0 + c, 0, lambda c=c: L.dma("wo", 3, c * 20480, 32, WOT + c * 20480, 30))
                at(j0 + c, 1, lambda c=c: L.dma("wo", 2, c * 20480, 32, WOT + c * 20480, 30, 3))
            if OPT.get("warm", 1):
                for n in range(12):
                    def z(n=n):
                        a(f"s_add_u32 s24, s42, {n*K}")
                        a(f"buffer_store_dwordx4 v[16:19], v2, {WSR}, s24 offen sc1")
                        L.other("z")
                    at(OPT.get("zs", 2) + (3 * n) // 2, 1 if n % 2 else 0, z)
            at(6, 1, w1_item(L, 0, STA))
            at(7, 1, w1_item(L, 1, STA + 12))

            def resid():
                g16_addr(a, 232, 233, 45, 46, 47)
                l1 = a.label("res1")
                lj = a.label("resj")
                a(f"s_cmp_lg_u32 {s(S_L)}, 0")
                a(f"s_cbranch_scc1 {l1}")
                for t in range(5):
                    a(f"buffer_load_dwordx2 {v(RESL+2*t,2)}, v233, s[8:11], s47 offen offset:{t*32}")
                a(f"s_branch {lj}")
                a(f"{l1}:")
                for t in range(5):
                    a(f"s_add_u32 s24, s46, {R_XB + t*K}")
                    a(f"buffer_load_dwordx2 {v(RESL+2*t,2)}, v232, {WSR}, s24 offen")
                a(f"{lj}:")
                for t in range(5):
                    L.other("r")
            at(18, 1, resid)
            for n, f in enumerate(touch_items(a, L, W2T, 1966080, None, 12, 29, 43)):
                at(OPT.get("w2s", 18) + n, 0, f, 'w2')
            if OPT.get("tox", 0):
                for n, f in enumerate(touch_items(a, L, R_XA, 320 * K, S_SCR, 20, 29, 44)):
                    at(28 + n, 0, f)

        if OPT.get("warm", 1):
            def zo():
                a(f"s_lshl_b32 s24, {s(S_L)}, 31")
                a("s_or_b32 s24, s24, s38")
                a(f"buffer_store_dwordx4 v[16:19], v20, {WSR}, s24 offen sc1")
                a(f"buffer_store_dwordx2 v[16:17], v21, {WSR}, s24 offen sc1")
                L.other("zo")
                L.other("zo")
            at(3, 1, zo)

        def run(j, slot):
            for f in sched.pop((j, slot), []):
                f()

        L.wait("q")
        stamp(a, "P0")
        a("s_barrier")
        stamp(a, "P0b")
        readK(0)
        readV(0)
        run(-1, 0)
        a("s_waitcnt lgkmcnt(2)")
        qk2b(SX, 0)
        a.nop(18)
        qk16(SX, 0)
        qk16(SX, 1)
        if role:
            L.wait("p0b")
        a("s_barrier")
        readK(1)
        run(-1, 1)
        a.nop(9)
        for j in range(32):
            X, Y = (SX, SY) if j % 2 == 0 else (SY, SX)
            e = [0]
            flip = 16 if j == 31 else 0

            def E(n):
                for _ in range(n):
                    r = X + (e[0] ^ flip)
                    a(f"v_exp_f32 {v(r)}, {v(r)}")
                    e[0] += 1

            if j >= 7:
                a(f"s_setprio {3 - ((j+1) % 4)}")
            else:
                a(f"s_setprio {j % 2}")
            nxt = j < 31
            E(2)
            if j > 0:
                pv(j - 1, Y, 3)
            E(1)
            if nxt:
                readV(j + 1)
            E(2)
            if nxt:
                a("s_waitcnt lgkmcnt(2)")
                qk2b(Y, j + 1)
            E(8)
            if not nxt:
                a("s_waitcnt lgkmcnt(0)")
            pv(j, X, 0 if nxt else 2)
            E(1)
            run(j, 0)
            E(4)
            pv(j, X, 1 if nxt else 3)
            E(3)
            if nxt:
                qk16(Y, 1 if j == 30 else 0)
            E(3)
            if nxt:
                qk16(Y, 0 if j == 30 else 1)
            E(1)
            if j + 2 < 32:
                tag = {0: "p1", 2: "p2", 4: "p3"}.get(j)
                if tag is None and (j + 2) % 4 == 0:
                    tag = ("c", (j + 2) // 4)
                if tag is not None:
                    if role:
                        L.wait(tag)
                    elif j == 22 and OPT.get("warm", 1):
                        L.wait("z")
                    if (j + 2) % 4 == 0:
                        a("s_waitcnt lgkmcnt(0)")
                    a("s_barrier")
                    stamp(a, f"B{(j+2)//4}" if (j + 2) % 4 == 0 else f"b{j}")
                    if j == 22 and not role:
                        publish_xcc(a)
                    if j == 26 and role:
                        a(f"v_mov_b32 v8, {SYNC_LDS}")
                        a("ds_write_b64 v8, v[16:17]")
                        a("s_waitcnt lgkmcnt(0)")
                readK(j + 2)
            run(j, 1)
            if j == 29:
                purity_load(a)
            E(2)
            pv(j, X, 2 if nxt else 0)
            if nxt:
                E(5)
            else:
                E(3)
                for t in range(3):
                    a(f"ds_write_b128 v12, {v(O1+4*t,4)} offset:{t*K}")
                E(2)
            assert e[0] == 32
        assert not sched, sched.keys()
        a(f"v_cmp_nle_f32 vcc, {fhex(2.0**-64)}, {v(O1+8)}")
        a(f"v_cmp_nle_f32 s[36:37], {v(O1+8)}, v25")
        pv(31, SY, 1)
        a("s_setprio 0")
        stamp(a, "attend")

    red = a.label("red")
    rb = a.label("roleb")
    a(f"s_cmp_ge_u32 {s(S_W)}, 4")
    a(f"s_cbranch_scc1 {rb}")
    main(0)
    a(f"s_branch {red}")
    a(f"{rb}:")
    main(1)
    a(f"{red}:")
    a("s_or_b32 s35, vcc_hi, s37")
    a("s_waitcnt vmcnt(0)")
    purity_check(a)
    a.nop(3)
    a(f"v_cmp_nle_f32 vcc, {fhex(2.0**-64)}, {v(O0+8)}")
    a(f"v_cmp_nle_f32 s[36:37], {v(O0+8)}, v25")
    a("s_or_b32 s35, s35, vcc_hi")
    a("s_or_b32 s35, s35, s37")
    a("v_mov_b32 v8, s35")
    a("ds_write_b32 v23, v8")
    a("s_waitcnt lgkmcnt(0)")
    stamp(a, "preRa")
    a("s_barrier")
    stamp(a, "Ra")
    a("ds_read_b32 v8, v24")
    for t in (2, 0, 1):
        a(f"ds_read_b128 {v(O1+4*t,4)}, v13 offset:{t*K}")
    epi = a.label("epi")
    slow = a.label("slow")
    a("s_waitcnt lgkmcnt(3)")
    a("v_cmp_ne_u32 vcc, 0, v8")
    a(f"s_cbranch_vccnz {slow}")
    a(f"{epi}:")
    a("s_waitcnt lgkmcnt(2)")
    for p in (4, 5):
        a(f"v_pk_add_f32 {v(O0+2*p,2)}, {v(O0+2*p,2)}, {v(O1+2*p,2)}")
    a(f"v_mov_b32 v8, {v(O0+8)}")
    a(f"v_mov_b32 v10, {v(O0+8)}")
    a("s_waitcnt lgkmcnt(0)")
    for p in range(2):
        a(f"v_pk_add_f32 {v(O0+2*p,2)}, {v(O0+2*p,2)}, {v(O1+2*p,2)}")
    a("v_permlane32_swap_b32 v8, v10")
    a("v_rcp_f32 v10, v10")
    for p in range(2, 4):
        a(f"v_pk_add_f32 {v(O0+2*p,2)}, {v(O0+2*p,2)}, {v(O1+2*p,2)}")
    for p in range(6):
        a(f"v_pk_mul_f32 {v(O0+2*p,2)}, {v(O0+2*p,2)}, v[10:11] op_sel_hi:[1,0]")
    for p in range(6):
        a(f"v_cvt_pk_bf16_f32 {v(O0+p)}, {v(O0+2*p)}, {v(O0+2*p+1)}")
    a(f"buffer_store_dwordx4 {v(O0,4)}, v20, {WSR}, s38 offen sc1")
    a("s_mov_b32 exec_hi, 0")
    a(f"buffer_store_dwordx2 {v(O0+4,2)}, v21, {WSR}, s38 offen sc1")
    a("s_mov_b64 exec, -1")

    def slow_path():
        a(f"{slow}:")
        a("s_cmp_lg_u32 s34, 0")
        a(f"s_cbranch_scc1 {epi}")
        a("s_mov_b32 s34, 1")
        a("v_mov_b32 v14, 0xff800000")
        a("v_mov_b32 v15, 0xff800000")
        a("v_lshlrev_b32 v16, 3, v0")
        a("s_mov_b32 s36, s26")
        a("s_mov_b32 s37, 32")
        lp = a.label("maxloop")
        a(f"{lp}:")
        a(f"buffer_load_dwordx2 {v(K4,2)}, v16, {WSR}, s36 offen offset:2048")
        for kt in range(2):
            a(f"buffer_load_dwordx4 {v(K16,4)}, v2, {WSR}, s36 offen offset:{kt*K}")
            a("s_waitcnt vmcnt(0)")
            qk2b(SX, kt)
            a.nop(18)
            qk16(SX, 0)
            qk16(SX, 1)
            a.nop(12)
            for j in range(8):
                a(f"v_max3_f32 v14, {v(SX+2*j)}, {v(SX+2*j+1)}, v14")
                a(f"v_max3_f32 v15, {v(SX+16+2*j)}, {v(SX+16+2*j+1)}, v15")
        a("s_add_u32 s36, s36, 5120")
        a("s_sub_u32 s37, s37, 1")
        a("s_cmp_lg_u32 s37, 0")
        a(f"s_cbranch_scc1 {lp}")
        for r in (14, 15):
            a(f"v_mov_b32 v16, {v(r)}")
            a.nop(2)
            a(f"v_permlane32_swap_b32 {v(r)}, v16")
            a(f"v_max_f32 {v(r)}, {v(r)}, v16")
        a("s_waitcnt lgkmcnt(0)")
        for j in range(32):
            a(f"v_sub_f32 {v(SY+j)}, 0, {v(14 + j//16)}")
            a(f"v_mov_b32 {v(O0+j)}, 0")
        a(f"v_subrev_u32 v14, {RB}, v11")
        a(f"v_subrev_u32 v15, {RB}, v4")
        a("s_lshl_b32 s22, s33, 8")
        a("v_lshlrev_b32 v16, 3, v5")
        a("v_add_u32 v16, s22, v16")
        a("s_mov_b32 s36, s26")
        a("s_mov_b32 s37, 32")
        lp = a.label("pass2")
        a(f"{lp}:")
        a(f"buffer_load_dwordx2 {v(K4,2)}, v16, {WSR}, s36 offen offset:2048")
        a(f"buffer_load_dwordx4 {v(K16,4)}, v14, {WSR}, s36 offen")
        a("s_mov_b64 exec, s[40:41]")
        a(f"buffer_load_dwordx4 {v(VB,4)}, v15, {WSR}, s36 offen")
        a(f"buffer_load_dwordx4 {v(VB+4,4)}, v15, {WSR}, s36 offen offset:640")
        a("s_mov_b64 exec, -1")
        a("s_waitcnt vmcnt(0)")
        qk2b(SX, 0, v(SY, 32))
        a.nop(18)
        qk16(SX, 0)
        qk16(SX, 1)
        a.nop(12)
        for j in range(32):
            a(f"v_exp_f32 {v(SX+j)}, {v(SX+j)}")
        a.nop(2)
        for u in range(4):
            pv(0, SX, u)
        a("s_add_u32 s36, s36, 5120")
        a("s_sub_u32 s37, s37, 1")
        a("s_cmp_lg_u32 s37, 0")
        a(f"s_cbranch_scc1 {lp}")
        a.nop(12)
        a("s_barrier")
        for t in range(3):
            a(f"ds_write_b128 v12, {v(O1+4*t,4)} offset:{t*K}")
        a(f"s_branch {red}")
    return slow_path


class Dumper:
    def __init__(self, a, s_part):
        self.a = a
        self.s_part = s_part
        self.m0 = None

    def reset(self):
        self.m0 = None

    def __call__(self, reg, addr):
        a = self.a
        if addr + K > 49152 + 65536:
            for r in range(4):
                a(f"ds_write_b32 v12, {v(reg+r)} offset:{addr - 65536 + 256*r}")
            return
        base = 0 if addr + K <= 65536 else 49152
        if self.m0 != base:
            a(f"s_add_u32 m0, {s(self.s_part)}, {base}")
            a("s_nop 0")
            self.m0 = base
        for r in range(4):
            a(f"ds_write_addtid_b32 {v(reg+r)} offset:{addr - base + 256*r}")


def g16_addr(a, vx, vr, s_tb, s_x, s_rm):
    a(f"s_lshr_b32 s22, {s(S_I)}, 3")
    a("s_lshl_b32 s22, s22, 2")
    a(f"s_and_b32 s23, {s(S_W)}, 1")
    a("s_lshl_b32 s23, s23, 1")
    a("s_add_u32 s22, s22, s23")
    a(f"s_lshr_b32 s23, {s(S_W)}, 1")
    a(f"s_add_u32 {s(s_tb)}, s22, s23")
    a(f"s_lshr_b32 {s(s_x)}, {s(s_tb)}, 1")
    a(f"s_mul_i32 {s(s_x)}, {s(s_x)}, {40*K}")
    a(f"s_and_b32 s22, {s(s_tb)}, 1")
    a("s_lshl_b32 s22, s22, 8")
    a(f"s_add_u32 {s(s_x)}, {s(s_x)}, s22")
    a(f"s_and_b32 s23, {s(S_I)}, 7")
    a(f"s_mul_i32 s22, s23, {5*K}")
    a(f"s_add_u32 {s(s_x)}, {s(s_x)}, s22")
    a(f"s_add_u32 {s(s_x)}, {s(s_x)}, {s(S_SCR)}")
    a(f"s_lshl_b32 {s(s_rm)}, {s(S_X)}, 4")
    a(f"s_add_u32 {s(s_rm)}, {s(s_rm)}, {s(s_tb)}")
    a(f"s_mul_i32 {s(s_rm)}, {s(s_rm)}, {16*1280}")
    a("s_mul_i32 s22, s23, 160")
    a(f"s_add_u32 {s(s_rm)}, {s(s_rm)}, s22")
    a("v_and_b32 v234, 15, v0")
    a("v_lshrrev_b32 v235, 4, v0")
    a("v_lshrrev_b32 v236, 5, v0")
    a("v_lshlrev_b32 v236, 9, v236")
    a(f"v_lshl_add_u32 {v(vx)}, v234, 4, v236")
    a("v_and_b32 v236, 1, v235")
    a(f"v_lshl_add_u32 {v(vx)}, v236, 3, {v(vx)}")
    a(f"v_mul_u32_u24 {v(vr)}, 1280, v234")
    a(f"v_lshl_add_u32 {v(vr)}, v235, 3, {v(vr)}")


G_ACC = 64
G_WB = 128
G_AW = 160
G_NW = 14
G_CR = 216
RES = 112
WQ_ADDR = [c * 16 * K for c in range(6)] + [120 * K, 136 * K, 100 * K, 0]
QKV_SCR = 152 * K


class Rec:
    def __init__(self):
        self.l = []

    def __call__(self, t):
        self.l.append(t)

    def nop(self, n):
        self.l.append(f"s_nop {n-1}")


def gemm32_main(a, NT, addr, bars, swap, s_act, s_st, ld, fill, WB=G_WB, tail=None):
    UP = OPT.get("up1", 8) if NT == 3 else OPT.get("upq", 12)
    loads = []
    ops = []
    WS_ = 4 * NT

    def act_load():
        k = len(loads)
        if k % 4 == 0:
            a(f"s_add_u32 s25, {s(s_act)}, {k*K}")
        a(f"buffer_load_dwordx4 {v(G_AW + 4*(k % G_NW), 4)}, v2, {WSR}, s25 offen offset:{(k % 4)*K} {ld}")
        loads.append(k)
        ops.append(k)

    lds = []

    def wread(k, t):
        off = addr[k // 4] + ((k % 4) * NT + t) * K
        a(f"ds_read_b128 {v(WB + WS_*(k & 1) + 4*t, 4)}, {v(2 + off // 65536)} offset:{off % 65536}")
        lds.append((k, t))

    for k in range(UP):
        if k in (0, 2, 4, 7):
            a(f"s_setprio {3 - (0, 2, 4, 7).index(k)}")
        act_load()
    a("s_setprio 0")
    a(f"buffer_load_dwordx4 v[8:11], v7, {WSR}, {s(s_st)} offen {ld}")
    a(f"buffer_load_dwordx4 v[12:15], v7, {WSR}, {s(s_st)} offen offset:16 {ld}")
    ops += ["s", "s"]
    assert 0 in bars
    a("s_barrier")
    for t in range(NT):
        wread(0, t)
    fill = list(fill)
    if OPT.get("nofill", 0):
        post = fill
        fill = []
    per = -(-len(fill) // (NT * (37 - UP)))
    for k in range(40):
        last = (k == 39)
        bar = (k % 4 == 3) and not last and ((k + 1) // 4 in bars)
        for t in range(NT):
            nl = min(15, len(lds) - 1 - lds.index((k, t)))
            if t == 0:
                a(f"s_waitcnt vmcnt({len(ops)-1-ops.index(k)}) lgkmcnt({nl})")
            else:
                a(f"s_waitcnt lgkmcnt({nl})")
            A_ = v(WB + WS_ * (k & 1) + 4 * t, 4)
            B_ = v(G_AW + 4 * (k % G_NW), 4)
            if swap:
                A_, B_ = B_, A_
            D_ = v(G_ACC + 16 * t, 16)
            a(f"v_mfma_f32_32x32x16_bf16 {D_}, {A_}, {B_}, {D_ if k else 0}")
            if not last:
                if bar and t == 0:
                    a("s_barrier")
                wread(k + 1, t)
            n = len(loads)
            rp = OPT.get("ramp32", 0)
            if n < 40 and ((t == NT - 1 and n - k <= G_NW) or (rp and t == 0 and n - k < G_NW and k % rp == 0)):
                act_load()
            if k >= UP or (fill and fill[0].startswith("ds_read") and k >= 1):
                for _ in range(per if k >= UP else 1):
                    if fill:
                        x = fill.pop(0)
                        a(x)
                        if x.startswith("ds_"):
                            lds.append("f")
            if last and t == 0 and tail:
                tail()
            if t == 0 and k % 4 == 0:
                stamp(a, f"g{NT}k{k}")
    assert not fill
    if OPT.get("nofill", 0):
        for x in post:
            a(x)
            if x.startswith("ds_"):
                a("s_waitcnt lgkmcnt(0)")


def g32_common(a, X, STAT):
    a(f"s_lshl_b32 s29, {s(S_DOM)}, 2")
    a(f"s_add_u32 s29, s29, {s(S_W)}")
    a("v_lshlrev_b32 v2, 4, v0")
    a("v_and_b32 v5, 31, v0")
    a("v_lshrrev_b32 v6, 5, v0")
    if X is None:
        return
    a("s_and_b32 s28, s29, 7")
    a(f"s_mul_i32 s30, s28, {40*K}")
    a(f"s_add_u32 s30, s30, {s(S_SCR)}")
    a(f"s_add_u32 s30, s30, {X}")
    a("v_add_u32 v3, 0x10000, v2")
    a("v_add_u32 v4, 0x20000, v2")
    a("v_lshlrev_b32 v7, 6, v5")
    a("v_lshl_add_u32 v7, v6, 5, v7")
    a("s_lshl_b32 s31, s28, 11")
    a(f"s_add_u32 s31, s31, {s(S_SCR)}")
    a(f"s_add_u32 s31, s31, {STAT}")


MLP1_BARS = {0, 3, 6}
QKV_BARS = set(range(10))
MLP2_BARS = {0, 2, 4, 6, 8, 10}


def mlp1_compute(a):
    g32_common(a, R_XA, R_STA)
    a(f"s_and_b32 s27, {s(S_I)}, 15")
    a("v_lshlrev_b32 v16, 4, v6")
    a(f"v_add_u32 v16, {C1_LDS}, v16")
    CSR = [20 + 4 * (i % 6) for i in range(12)]
    BR = [216 + 4 * i for i in range(10)] + [152, 156]
    BIAS2 = 52
    a("v_lshrrev_b32 v62, 4, v0")
    a("v_lshlrev_b32 v62, 3, v62")
    a(f"s_and_b32 s33, {s(S_I)}, 7")
    a("s_mul_i32 s33, s33, 160")
    a("v_lshrrev_b32 v17, 4, v5")
    a(f"v_mul_u32_u24 v17, {48*K}, v17")
    a("v_and_b32 v18, 15, v5")
    a("v_lshl_add_u32 v17, v18, 4, v17")
    a("v_lshl_add_u32 v17, v6, 8, v17")
    a(f"s_mul_i32 s34, s28, {2*48*K}")
    a(f"s_mul_i32 s35, s27, {3*K}")
    a("s_add_u32 s34, s34, s35")
    a(f"s_add_u32 s34, s34, {s(S_SCR)}")
    a(f"s_add_u32 s34, s34, {R_H}")
    k0 = -2.0 * math.sqrt(2.0 / math.pi) * math.log2(math.e)
    a(f"s_mov_b32 s36, {fhex(k0)}")
    a(f"s_mov_b32 s37, {fhex(k0)}")
    a(f"v_mov_b32 v18, {fhex(k0*0.044715)}")
    f = Rec()
    for j in range(12):
        f(f"ds_read_b128 {v(BR[j],4)}, v16 offset:{384 + (j//4)*128 + (j%4)*32}")
    for j in range(6):
        f(f"ds_read_b128 {v(CSR[j],4)}, v16 offset:{(j//4)*128 + (j%4)*32}")
    ln_stats(f, 8, True)
    f("v_mul_f32 v8, v8, v9")
    f("v_mov_b32 v10, v9")
    for j in range(12):
        for e in range(4):
            f(f"v_fma_f32 {v(BR[j]+e)}, -v8, {v(CSR[j]+e)}, {v(BR[j]+e)}")
        if j < 6:
            f(f"ds_read_b128 {v(CSR[j],4)}, v16 offset:{((j+6)//4)*128 + ((j+6)%4)*32}")

    def tail():
        for t in range(5):
            a(f"buffer_load_dwordx2 {v(BIAS2+2*t,2)}, v62, s[16:19], s33 offen offset:{t*32}")
    stamp(a, "preS3")
    wait_sync(a, 1, 16, S_DOM)
    stamp(a, "S3")
    gemm32_main(a, 3, W1_ADDR, MLP1_BARS, False, 30, 31, LD, f.l, tail=tail)
    stamp(a, "preE1")
    a("s_barrier")
    stamp(a, "E1")
    a.nop(8)
    TS = [20, 28, 36]
    stages = []
    for g in range(6):
        r = G_ACC + 8 * g
        T = TS[g % 3]
        A_, B_, C_ = [], [], []
        for p in range(4):
            b = BR[2 * g + p // 2] + 2 * (p % 2)
            A_.append(f"v_pk_fma_f32 {v(r+2*p,2)}, {v(r+2*p,2)}, v[10:11], {v(b,2)} op_sel_hi:[1,0,1]")
        for p in range(4):
            A_.append(f"v_pk_mul_f32 {v(T+2*p,2)}, {v(r+2*p,2)}, {v(r+2*p,2)}")
        for p in range(4):
            A_.append(f"v_pk_fma_f32 {v(T+2*p,2)}, {v(T+2*p,2)}, v[18:19], s[36:37] op_sel_hi:[1,0,1]")
        for p in range(4):
            A_.append(f"v_pk_mul_f32 {v(T+2*p,2)}, {v(T+2*p,2)}, {v(r+2*p,2)}")
        for e in range(8):
            A_.append(f"v_exp_f32 {v(T+e)}, {v(T+e)}")
        for p in range(4):
            B_.append(f"v_pk_add_f32 {v(T+2*p,2)}, {v(T+2*p,2)}, 1.0 op_sel_hi:[1,0]")
        for e in range(8):
            B_.append(f"v_rcp_f32 {v(T+e)}, {v(T+e)}")
        for p in range(4):
            C_.append(f"v_pk_mul_f32 {v(r+2*p,2)}, {v(r+2*p,2)}, {v(T+2*p,2)}")
        for p in range(4):
            C_.append(f"v_cvt_pk_bf16_f32 {v(r+p)}, {v(r+2*p)}, {v(r+2*p+1)}")
        C_.append(f"buffer_store_dwordx4 {v(r,4)}, v17, {WSR}, s34 offen offset:{(g//2)*K + (g%2)*512} {'sc1' if OPT.get('hsc1', 1) else ''}")
        stages.append((A_, B_, C_))
    for g in range(6):
        for part in stages[g]:
            for x in part:
                a(x)


def qkv_compute(a, X, STAT, KVO, QO, addr, bars, sync, ld, fin, first=False):
    g32_common(a, X, STAT)
    if first:
        k1_prologue(a)
    CL = K1_CS if first else CQ_LDS
    a("s_lshr_b32 s33, s29, 1")
    a("s_and_b32 s34, s29, 1")
    vpath = a.label("vpath")
    a("s_cmp_ge_u32 s27, 10")
    a(f"s_cbranch_scc1 {vpath}")
    CR = [216 + 4 * i for i in range(10)] + [48, 52, 56, 60, 24, 28]
    if first:
        CR = [188 + 4 * i for i in range(16)]
    a("v_lshlrev_b32 v16, 4, v6")
    a(f"v_add_u32 v16, {CL}, v16")
    crd = [f"ds_read_b128 {v(CR[i],4)}, v16 offset:{(i//4)*128 + (i%4)*32}" for i in range(16)]
    a("s_cmp_ge_u32 s27, 5")
    a("s_cselect_b32 s35, 5, 0")
    a("s_sub_u32 s35, s27, s35")
    a("s_mov_b32 s36, 81920")
    a("s_cmp_ge_u32 s27, 5")
    a("s_cselect_b32 s36, 163840, s36")
    a(f"s_mov_b32 s37, {KVO}")
    a(f"s_mov_b32 s38, {QO}")
    a("s_cselect_b32 s37, s37, s38")
    a(f"s_cselect_b32 s39, 1.0, {fhex(QSCALE)}")
    a("v_and_b32 v17, 0x13, v5")
    a("v_and_b32 v18, 4, v5")
    a("v_lshl_or_b32 v17, v18, 1, v17")
    a("v_and_b32 v18, 8, v5")
    a("v_lshrrev_b32 v18, 1, v18")
    a("v_or_b32 v17, v17, v18")
    a("s_cselect_b32 s40, -1, 0")
    a("s_cselect_b32 s41, -1, 0")
    a("v_cndmask_b32 v17, v5, v17, s[40:41]")
    a("s_mul_i32 s42, s33, 5120")
    a("s_lshl_b32 s43, s34, 10")
    a("s_add_u32 s43, s43, s42")
    a("s_lshl_b32 s44, s34, 8")
    a("s_add_u32 s44, s44, s42")
    a("s_add_u32 s44, s44, 1024")
    a("s_mul_i32 s45, s29, 1280")
    a("s_cmp_ge_u32 s27, 5")
    a("s_cselect_b32 s43, s43, s45")
    a("s_cselect_b32 s44, s44, s45")
    a("v_lshlrev_b32 v18, 4, v17")
    a("v_add_u32 v18, s43, v18")
    a("v_lshlrev_b32 v19, 3, v17")
    a("v_add_u32 v19, s44, v19")
    a("s_lshl_b32 s46, s35, 5")
    a("s_mov_b32 s47, 52429")
    a("v_add_u32 v17, s46, v6")
    a("s_lshl_b32 s48, s36, 1")
    a("s_add_u32 s40, s37, s48")
    a("s_add_u32 s41, s40, s48")
    a("s_add_u32 s42, s41, s48")
    SO = [37, 40, 41, 42]
    ad = a
    for i in range(5):
        ad(f"v_add_u32 v20, {2*i}, v17")
        ad("v_mul_u32_u24 v21, s47, v20")
        ad("v_lshrrev_b32 v21, 18, v21")
        ad("v_mul_u32_u24 v22, 5, v21")
        ad("v_sub_u32 v22, v20, v22")
        ad("v_cmp_eq_u32 vcc, 4, v22")
        ad("v_mul_u32_u24 v21, s36, v21")
        ad("v_lshrrev_b32 v23, 1, v22")
        ad("v_cndmask_b32 v20, v18, v19, vcc")
        ad("v_lshl_add_u32 v21, v23, 9, v21")
        ad("v_and_b32 v22, 1, v22")
        ad("v_lshl_add_u32 v21, v22, 3, v21")
        ad(f"v_add_u32 {v(32+i)}, v21, v20")
    f = Rec()
    ln_stats(f, 8, False)
    f("v_mul_f32 v10, s39, v9")
    f("v_mul_f32 v8, v8, v10")
    for i in range(16):
        for e in range(4):
            f(f"v_mul_f32 {v(CR[i]+e)}, -v8, {v(CR[i]+e)}")
    if first:
        sync()
        k1_main(a, False)
        for x in crd + f.l[:-64]:
            a(x)
        a("v_sub_f32 v8, 0, v8")
        a("s_waitcnt lgkmcnt(0)")
        for i in range(16):
            for p in range(2):
                a(f"v_pk_mul_f32 {v(CR[i]+2*p,2)}, {v(CR[i]+2*p,2)}, v[8:9] op_sel_hi:[1,0]")
    else:
        sync()
        gemm32_main(a, 4, addr, bars, False, 30, 31, ld, crd + f.l)
        a.nop(8)
    stamp(a, "qkvmain")
    for i in range(16):
        r = G_ACC + 4 * i
        for p in range(2):
            a(f"v_pk_fma_f32 {v(r+2*p,2)}, {v(r+2*p,2)}, v[10:11], {v(CR[i]+2*p,2)} op_sel_hi:[1,0,1]")
        a(f"v_cvt_pk_bf16_f32 {v(r)}, {v(r)}, {v(r+1)}")
        a(f"v_cvt_pk_bf16_f32 {v(r+1)}, {v(r+2)}, {v(r+3)}")
        a(f"buffer_store_dwordx2 {v(r,2)}, {v(32 + i % 5)}, {WSR}, {s(SO[i // 5])} offen")
    a(f"s_branch {fin}")
    a(f"{vpath}:")
    CV = 40
    RR = 216
    a("v_lshlrev_b32 v16, 2, v5")
    a(f"v_add_u32 v23, {CL}, v16")
    a("s_sub_u32 s35, s27, 10")
    a("s_lshl_b32 s46, s35, 7")
    a("s_mul_i32 s42, s33, 5120")
    a("s_mul_i32 s43, s34, 1280")
    a("s_add_u32 s42, s42, s43")
    a(f"s_add_u32 s42, s42, {2560 + KVO}")
    a("s_mov_b32 s47, 52429")
    a("s_mov_b32 s36, 163840")
    a("v_mul_u32_u24 v17, 320, v6")
    for t in range(4):
        a(f"s_add_u32 s48, s46, {32*t}")
        a("v_add_u32 v20, s48, v5")
        a("v_mul_u32_u24 v21, s47, v20")
        a("v_lshrrev_b32 v21, 20, v21")
        a("v_mul_u32_u24 v22, 20, v21")
        a("v_sub_u32 v22, v20, v22")
        a("v_mul_u32_u24 v21, s36, v21")
        a("v_lshl_add_u32 v21, v22, 4, v21")
        a(f"v_add_u32 {v(32+t)}, v21, v17")
    a(f"s_lshl_b32 s49, {s(S_W)}, 8")
    a(f"s_add_u32 s49, s49, {QKV_SCR}")
    a("v_add_u32 v18, s49, v16")
    a("v_lshlrev_b32 v19, 4, v6")
    a("v_add_u32 v19, s49, v19")
    f = Rec()
    for i in range(4):
        f(f"ds_read_b32 {v(CV+2*i)}, v23 offset:{i*128}")
    ln_stats(f, 8, False)
    f("v_mul_f32 v8, -v8, v9")
    f("ds_write_b32 v18, v9")
    f("ds_write_b32 v18, v8 offset:128")
    for gq in range(4):
        f(f"ds_read_b128 {v(RR+4*gq,4)}, v19 offset:{32*gq}")
        f(f"ds_read_b128 {v(RR+16+4*gq,4)}, v19 offset:{128+32*gq}")
    sync()
    if first:
        k1_main(a, True)
        for x in f.l:
            a(x)
        a("s_waitcnt lgkmcnt(0)")
    else:
        gemm32_main(a, 4, addr, bars, True, 30, 31, ld, f.l)
        a.nop(8)
    stamp(a, "qkvmain")
    for t in range(4):
        r = G_ACC + 16 * t
        for p in range(8):
            a(f"v_pk_mul_f32 {v(r+2*p,2)}, {v(r+2*p,2)}, {v(RR+2*p,2)}")
        for p in range(8):
            a(f"v_pk_fma_f32 {v(r+2*p,2)}, {v(RR+16+2*p,2)}, {v(CV+2*t,2)}, {v(r+2*p,2)} op_sel_hi:[1,0,1]")
        for p in range(8):
            a(f"v_cvt_pk_bf16_f32 {v(r+p)}, {v(r+2*p)}, {v(r+2*p+1)}")
        a(f"buffer_store_dwordx4 {v(r,4)}, {v(32+t)}, {WSR}, s42 offen")
        a(f"buffer_store_dwordx4 {v(r+4,4)}, {v(32+t)}, {WSR}, s42 offen offset:640")


def g16_compute(a, mlp2, fin):
    KS = 48 if mlp2 else 20
    ACT = R_H if mlp2 else R_O
    XOUT = R_XB if mlp2 else R_XA
    STO = R_STB if mlp2 else R_STA
    CB = 20 * K
    RED = 100 * K if mlp2 else 128 * K
    ACC, WB, AW, NW = 16, 56, 128, (13 if mlp2 else 10)
    RF = 232 if mlp2 else 96
    RS = RES if mlp2 else RESL
    UP = OPT.get("up2", 6) if mlp2 else OPT.get("upo", 6)
    g16_addr(a, 7, 15, 34, 35, 42)
    a(f"s_and_b32 s27, {s(S_I)}, 7")
    a(f"s_lshr_b32 s30, {s(S_W)}, 1")
    a("s_xor_b32 s31, s34, 1")
    a("s_lshl_b32 s22, s30, 10")
    a(f"s_add_u32 s22, s22, {s(S_SCR)}")
    a(f"s_add_u32 s22, s22, {ACT}")
    a(f"s_mul_i32 s32, s34, {KS*K}")
    a("s_add_u32 s32, s32, s22")
    a(f"s_mul_i32 s33, s31, {KS*K}")
    a("s_add_u32 s33, s33, s22")
    a(f"s_mul_i32 s38, s30, {5*K}")
    a("v_add_u32 v12, s38, v2")
    a("v_add_u32 v13, 0x10000, v12")
    a("v_add_u32 v14, 0x20000, v12")
    a(f"s_mul_i32 s39, {s(S_W)}, 5120")
    a(f"s_add_u32 s39, s39, {RED}")
    a("v_add_u32 v3, s39, v2")
    a(f"s_xor_b32 s40, {s(S_W)}, 2")
    a("s_mul_i32 s40, s40, 5120")
    a(f"s_add_u32 s40, s40, {RED}")
    a("v_add_u32 v4, s40, v2")
    a(f"s_add_u32 s36, s35, {XOUT}")
    a("s_add_u32 s37, s36, 4096")
    a("s_lshl_b32 s43, s34, 10")
    a("s_lshl_b32 s44, s27, 3")
    a("s_add_u32 s43, s43, s44")
    a(f"s_add_u32 s43, s43, {s(S_SCR)}")
    a(f"s_add_u32 s43, s43, {STO}")
    a("v_lshlrev_b32 v1, 6, v234")
    if not mlp2:
        a("v_lshlrev_b32 v6, 8, v235")
        a("v_lshl_add_u32 v6, v234, 3, v6")
    for jx in range(10):
        a(f"v_lshlrev_b32 {v(RF+2*jx)}, 16, {v(RS+jx)}")
        a(f"v_and_b32 {v(RF+2*jx+1)}, 0xffff0000, {v(RS+jx)}")
        if mlp2:
            a(f"v_lshlrev_b32 v10, 16, {v(52+jx)}")
            a(f"v_and_b32 v11, 0xffff0000, {v(52+jx)}")
            a(f"v_pk_add_f32 {v(RF+2*jx,2)}, {v(RF+2*jx,2)}, v[10:11]")
    if mlp2:
        wait_sync(a, 2, 16, S_DOM)
        stamp(a, "S4")
    else:
        stamp(a, "preS2")
        wait_global(a)
        stamp(a, "S2")
    nk = KS // 2
    loads = []
    ops = []

    def act_load():
        n = len(loads)
        i, tt = n // 2, n % 2
        if i % 2 == 0:
            a(f"s_add_u32 {s(24+tt)}, {s(32+tt)}, {i*2048}")
        r = AW + 8 * (i % NW) + 4 * tt
        if not mlp2 and i >= 8:
            for e in range(2):
                a(f"buffer_load_dwordx2 {v(r+2*e, 2)}, v6, {WSR}, {s(24+tt)} offen offset:{(i % 2)*2048 + e*128} {LD}")
            ops.append((i, tt, 0))
        else:
            a(f"buffer_load_dwordx4 {v(r, 4)}, v2, {WSR}, {s(24+tt)} offen offset:{(i % 2)*2048} {LD}")
        ops.append((i, tt))
        loads.append((i, tt))

    def wread(i, t):
        c = i // 2
        off = (c % 7) * CB + (i % 2) * 10240 + t * K
        a(f"ds_read_b128 {v(WB + 20*(i & 1) + 4*t, 4)}, {v(12 + off // 65536)} offset:{off % 65536}")

    for n in range(2 * UP):
        if n in (0, 2, 4, 8):
            a(f"s_setprio {3 - (0, 2, 4, 8).index(n)}")
        act_load()
    a("s_setprio 0")
    if mlp2:
        a("s_barrier")
    for t in range(5):
        wread(0, t)
    a("v_mov_b32 v8, 0")
    a("v_mov_b32 v9, 0")
    a("v_mov_b32 v11, 0x3f803f80")
    for i in range(nk):
        last = (i == nk - 1)
        bar = mlp2 and (i % 2 == 1) and not last and ((i + 1) // 2 in MLP2_BARS)
        order = [(t, tt) for t in range(5) for tt in range(2)]
        if last:
            order = [(t, 1) for t in range(5)] + [(t, 0) for t in range(5)]
        seen_t, seen_tt = set(), set()
        for t, tt in order:
            w = []
            if tt not in seen_tt:
                after = len(ops) - 1 - ops.index((i, tt))
                w.append(f"vmcnt({min(after,63)})")
                seen_tt.add(tt)
            if t not in seen_t:
                w.append(f"lgkmcnt({4 if not last else 4-t})")
                seen_t.add(t)
            if w:
                a("s_waitcnt " + " ".join(w))
            D_ = v(ACC + 20 * tt + 4 * t, 4)
            C_ = D_ if i else (v(RF + 4 * t, 4) if tt == 0 else "0")
            a(f"v_mfma_f32_16x16x32_bf16 {D_}, {v(WB + 20*(i & 1) + 4*t, 4)}, {v(AW + 8*(i % NW) + 4*tt, 4)}, {C_}")
            if not last and tt == 1:
                if bar and t == 0:
                    stamp(a, f"m2p{(i+1)//2}")
                    a("s_barrier")
                    stamp(a, f"m2b{(i+1)//2}")
                wread(i + 1, t)
                extra = (t == 4 and i % 2 == 0 and OPT.get("ramp", 0))
                if (t in (1, 3) or extra) and len(loads) < 2 * nk and len(loads) // 2 - i < NW:
                    act_load()
    stamp(a, "m2main" if mlp2 else "womain")
    for t in range(5):
        a(f"ds_write_b128 v3, {v(ACC+20+4*t,4)} offset:{t*K}")
    a("s_waitcnt lgkmcnt(0)")
    stamp(a, "preRm" if mlp2 else "preRw")
    a("s_barrier")
    stamp(a, "Rm" if mlp2 else "Rw")
    for t in range(5):
        a(f"ds_read_b128 {v(WB+4*t,4)}, v4 offset:{t*K}")
    lastl = a.label("lastl")
    if mlp2:
        a(f"s_cmp_lg_u32 {s(S_L)}, 0")
        a(f"s_cbranch_scc1 {lastl}")

    def fin_tile(t):
        r = ACC + 4 * t
        a(f"s_waitcnt lgkmcnt({4-t})")
        for p in range(2):
            a(f"v_pk_add_f32 {v(r+2*p,2)}, {v(r+2*p,2)}, {v(WB+4*t+2*p,2)}")
        a(f"v_cvt_pk_bf16_f32 {v(RES+2*t)}, {v(r)}, {v(r+1)}")
        a(f"v_cvt_pk_bf16_f32 {v(RES+2*t+1)}, {v(r+2)}, {v(r+3)}")

    for t in range(5):
        fin_tile(t)
        a(f"buffer_store_dwordx2 {v(RES+2*t,2)}, v7, {WSR}, {'s36' if t < 4 else 's37'} offen offset:{(t*K) % 4096} {'sc1' if OPT.get('xsc1', 0) else ''}")
        for jx in (2 * t, 2 * t + 1):
            a(f"v_dot2_f32_bf16 v8, {v(RES+jx)}, v11, v8")
            a(f"v_dot2_f32_bf16 v9, {v(RES+jx)}, {v(RES+jx)}, v9")
    a.nop(2)
    a("v_mov_b32 v10, v8")
    a("v_mov_b32 v11, v9")
    a.nop(1)
    a("v_permlane16_swap_b32 v8, v10")
    a("v_permlane16_swap_b32 v9, v11")
    a("v_pk_add_f32 v[8:9], v[8:9], v[10:11]")
    a("v_pk_mov_b32 v[10:11], v[8:9], v[8:9] op_sel:[0,1]")
    a.nop(2)
    a("v_permlane32_swap_b32 v8, v10")
    a("v_permlane32_swap_b32 v9, v11")
    a("v_pk_add_f32 v[8:9], v[8:9], v[10:11]")
    a("s_mov_b64 exec, 0xffff")
    a(f"buffer_store_dwordx2 v[8:9], v1, {WSR}, s43 offen {ST}")
    a("s_mov_b64 exec, -1")

    def last_layer():
        a(f"{lastl}:")
        for t in range(5):
            fin_tile(t)
            a(f"buffer_store_dwordx2 {v(RES+2*t,2)}, v15, s[12:15], s42 offen offset:{t*32} {['','sc1','nt'][OPT.get('osc1', 0)]}")
        a(f"s_branch {fin}")
    return last_layer


def helper_chain(a, fin):
    def w2reg(k):
        return 16 + 4 * ((k + 1) % 60)
    WQR = 20
    a(f"s_and_b32 s29, {s(S_W)}, 3")
    a("s_mul_i32 s30, s29, 5120")
    a(f"s_and_b32 s31, {s(S_I)}, 7")
    a(f"s_mul_i32 s31, s31, {240*K}")
    a("s_add_u32 s31, s31, s30")
    a("s_mul_i32 s32, s29, 3072")
    a("s_lshl_b32 s33, s29, 12")
    a(f"s_and_b32 s34, {s(S_I)}, 15")
    a("s_cmp_eq_u32 s34, 15")
    a("s_cselect_b32 s35, 1, 0")
    a(f"s_or_b32 s35, s35, {s(S_L)}")
    a(f"s_mul_i32 s34, s34, {160*K}")
    a("s_add_u32 s34, s34, s33")
    a("s_lshl_b32 s22, s35, 31")
    a("s_or_b32 s38, s34, s22")
    a("v_lshlrev_b32 v12, 2, v0")
    a("v_add_u32 v12, s30, v12")
    a("v_add_u32 v12, 0x10000, v12")
    a("v_lshlrev_b32 v15, 7, v0")
    L = Loader(a)
    n2 = [0]
    nq = [0]

    def w2(n, depth):
        for _ in range(n):
            k = n2[0]
            if k >= 60:
                return
            a(f"s_add_u32 s24, s31, {W2T + (k//5)*20*K + (k % 5)*K}")
            a(f"buffer_load_dwordx4 {v(w2reg(k),4)}, v2, {WSR}, s24 offen")
            L.other(("w2", k))
            if depth:
                a(f"s_waitcnt vmcnt({depth-1})")
            n2[0] += 1

    def wq(n):
        for _ in range(n):
            k = nq[0]
            if k >= 4 * NQS:
                return
            a(f"s_add_u32 s24, s38, {WQT + (k//4)*16*K + (k % 4)*K}")
            a(f"buffer_load_dwordx4 {v(WQR+4*k,4)}, v2, {WSR}, s24 offen")
            L.other(("wq", k))
            nq[0] += 1

    th = touch_items(a, L, R_H, 768 * K, S_SCR, 12, 15, 36, vd=14)
    tx = touch_items(a, L, R_XB, 320 * K, S_SCR, 20, 15, 37, vd=14)
    ty = touch_items(a, L, R_XA, 320 * K, S_SCR, 20, 15, 37, vd=14)
    a(f"s_lshl_b32 s39, {s(S_L)}, 31")
    tq = touch_items(a, L, WQT, 2457600, 39, OPT.get("tql", 15), 15, 40, vd=14)

    def run(spec):
        for tok in spec.split():
            body, _, n = tok.partition("*")
            for _ in range(int(n or 1)):
                for ch in body:
                    if ch == "w":
                        w2(1, 0)
                    elif ch == "q":
                        wq(1)
                    elif ch in "hxyt":
                        lst = {"h": th, "x": tx, "y": ty, "t": tq}[ch]
                        if lst:
                            lst.pop(0)()
                    elif ch == "B":
                        lab = a.label("nowb")
                        a(f"s_and_b32 s22, {s(S_I)}, 15")
                        a("s_lshl_b32 s22, s22, 2")
                        a("s_add_u32 s22, s22, s29")
                        a("s_cmp_lg_u32 s22, 63")
                        a(f"s_cbranch_scc1 {lab}")
                        a("buffer_wbl2 sc1")
                        a(f"{lab}:")
                    else:
                        a(f"s_waitcnt vmcnt({ch})")

    run(SCHED["a"])
    stamp(a, "preRw")
    a("s_barrier")
    stamp(a, "Rw")
    run(SCHED["r"])
    assert n2[0] <= 35
    D = Dumper(a, 32)
    for k in range(24):
        D(STG + 4 * k, W1_ADDR[2 + k // 3] + (k % 3) * K)
    a("s_waitcnt lgkmcnt(0)")
    run(SCHED["b"])
    stamp(a, "preS3")
    a("s_barrier")
    stamp(a, "S3")
    run(SCHED["c"])
    a("s_barrier")
    run(SCHED["c3"])
    a("s_barrier")
    run(SCHED["c6"])
    assert n2[0] >= 35
    stamp(a, "preE1")
    a("s_barrier")
    stamp(a, "E1")
    D = Dumper(a, 30)

    def dump2(c):
        L.wait(("w2", 5 * c + 4))
        for jj in range(5):
            D(w2reg(5 * c + jj), (c % 7) * 20 * K + jj * K)

    for c in range(7):
        run(SCHED["e"])
        dump2(c)
    a("s_waitcnt lgkmcnt(0)")
    run(SCHED["f"])
    stamp(a, "sig4")
    a("s_barrier")
    stamp(a, "S4")
    run(SCHED["g0"])
    w2(60, 0)
    a(f"s_setprio {OPT.get('hprio', 0)}")
    for b, (k0, k1) in ((2, (35, 40)), (4, (40, 47)), (6, (47, 54)), (8, (54, 60)), (10, (60, 60))):
        stamp(a, f"m2p{b}")
        a("s_barrier")
        stamp(a, f"m2b{b}")
        if k1 > k0:
            L.wait(("w2", k1 - 1))
        for k in range(k0, k1):
            D(w2reg(k), ((k // 5) % 7) * 20 * K + (k % 5) * K)
        run(SCHED[f"g{b}"])
        a("s_waitcnt lgkmcnt(0)")
    a("s_setprio 0")
    wq(24)
    a("s_barrier")
    a("s_cmp_lg_u32 s35, 0")
    a(f"s_cbranch_scc1 {fin}")
    a("s_waitcnt vmcnt(0)")
    D = Dumper(a, 33)
    for k in range(4 * NQS):
        D(WQR + 4 * k, WQ_ADDR[k // 4] + (k % 4) * K)
    a("s_waitcnt lgkmcnt(0)")
    a("s_barrier")
    L = Loader(a)

    def dq(c):
        if NQS <= c < 10:
            L.dma(("wq", c), 4, WQ_ADDR[c], 34, WQT + c * 16 * K, 33)

    def wt(c):
        if c >= NQS:
            L.wait(("wq", c))
    LEAD = NQS
    for c in range(10):
        if c:
            wt(c)
            a("s_barrier")
        dq(c + LEAD)


def roles(a):
    a(f"s_and_b32 {s(S_X)}, s2, 7")
    a(f"s_lshr_b32 {s(S_I)}, s2, 3")
    a(f"s_lshr_b32 s22, {s(S_I)}, 4")
    a(f"s_lshl_b32 {s(S_DOM)}, {s(S_X)}, 1")
    a(f"s_add_u32 {s(S_DOM)}, {s(S_DOM)}, s22")


def gen_chain(a):
    a(".globl chainb_kernel")
    a(".p2align 8")
    a(".type chainb_kernel,@function")
    a("chainb_kernel:")
    a(f"s_mov_b32 {s(S_L)}, 1")
    a("s_branch L_chain_body")
    a(".globl chaina_kernel")
    a(".p2align 8")
    a(".type chaina_kernel,@function")
    a("chaina_kernel:")
    a(f"s_mov_b32 {s(S_L)}, 0")
    a("L_chain_body:")
    name = "chain"
    if gen1.PROFILE:
        a("s_memrealtime s[96:97]")
        a("s_memtime s[94:95]")
        for i in range(16):
            a(f"s_mov_b32 s{60+2*i}, 0")
    a("s_cmp_ge_u32 s2, 256")
    a(f"s_cbranch_scc1 L_end_{name}")
    gen1.load_srd(a, S_WS, 10, WS_END)
    gen1.load_srd(a, 8, 0, 2621440)
    gen1.load_srd(a, 12, 8, 2621440)
    gen1.load_srd(a, 16, 7, 1280)
    gen1.load_srd(a, S_DBG, 9, 256)
    a("v_lshrrev_b32 v1, 6, v0")
    a("v_and_b32 v0, 63, v0")
    a(f"v_readfirstlane_b32 {s(S_W)}, v1")
    roles(a)
    a(f"s_lshl_b32 {s(S_CNT)}, {s(S_L)}, 15")
    a(f"s_add_u32 {s(S_CNT)}, {s(S_CNT)}, {CNT}")
    a(f"s_mul_i32 {s(S_SCR)}, {s(S_X)}, {SCR_STRIDE}")
    a(f"s_add_u32 {s(S_SCR)}, {s(S_SCR)}, {SCR}")
    slow_path = att_phase(a)
    stamp(a, "ostored")
    signal_global(a, 7)
    stamp(a, "sig2")
    fin = a.label("fin")
    comp = a.label("comp")
    a(f"s_cmp_lt_u32 {s(S_W)}, 4")
    a(f"s_cbranch_scc1 {comp}")
    helper_chain(a, fin)
    a(f"s_branch {fin}")
    slow_path()
    a(f"{comp}:")
    g16_compute(a, False, fin)
    stamp(a, "xstored")
    a(f"s_mul_i32 s32, {s(S_W)}, 3072")
    D = Dumper(a, 32)
    for k in range(6):
        D(STA + 4 * k, W1_ADDR[k // 3] + (k % 3) * K)
    signal(a, 1, 11, S_DOM, 15)
    stamp(a, "sig3")
    mlp1_compute(a)
    stamp(a, "hstored")
    signal(a, 2, 15, S_DOM, 15)
    stamp(a, "sig4")
    last_layer = g16_compute(a, True, fin)
    signal(a, 3, 19, S_DOM, 15)
    stamp(a, "sig5")
    a(f"s_and_b32 s27, {s(S_I)}, 15")
    a("s_cmp_eq_u32 s27, 15")
    a(f"s_cbranch_scc1 {fin}")

    def sync():
        wait_sync(a, 3, 16, S_DOM)
        stamp(a, "S5")
    qkv_compute(a, R_XB, R_STB, KVB[1], QB[1], WQ_ADDR, QKV_BARS, sync, LD, fin)
    a(f"s_branch {fin}")
    last_layer()
    a(f"{fin}:")
    if gen1.PROFILE:
        a(f"s_lshl_b32 s22, {s(S_L)}, 8")
        a("s_add_u32 s2, s2, s22")
    gen1.kernel_tail(a, name, 1)


K1_NW = 20
K1_PC = 128 * K
K1_CS = 144 * K
K1_TA = 48


def tr_addr32(a, dst, t_imm=None, t_sgpr=None):
    a("v_bfe_u32 v24, v0, 2, 2")
    a("v_lshrrev_b32 v25, 5, v0")
    a("v_lshl_add_u32 v25, v25, 3, v24")
    a("v_lshlrev_b32 v25, 8, v25")
    a("v_bfe_u32 v26, v0, 4, 1")
    a("v_lshl_add_u32 v25, v26, 5, v25")
    a("v_and_b32 v26, 3, v0")
    a("v_lshl_add_u32 v25, v26, 3, v25")
    if t_sgpr is not None:
        a(f"v_xor_b32 v26, {s(t_sgpr)}, v24")
        a(f"v_lshl_add_u32 {v(dst)}, v26, 6, v25")
        a(f"v_add_u32 {v(dst+1)}, 0x10000, {v(dst)}")
    else:
        for t in range(4):
            a(f"v_xor_b32 v26, {t}, v24")
            a(f"v_lshl_add_u32 {v(dst+2*t)}, v26, 6, v25")
            a(f"v_add_u32 {v(dst+2*t+1)}, 0x10000, {v(dst+2*t)}")


K1_XB = 64 * K
K1_STX = 145 * K


def x_addr(a, dst, s_tile):
    a("v_and_b32 v24, 31, v0")
    a("v_bfe_u32 v25, v0, 1, 3")
    a("v_lshrrev_b32 v26, 5, v0")
    a("v_xor_b32 v25, v25, v26")
    a("v_lshlrev_b32 v24, 7, v24")
    a(f"s_lshl_b32 s22, {s(s_tile)}, 12")
    a(f"s_add_u32 s22, s22, {K1_XB}")
    a("v_add_u32 v24, s22, v24")
    for ks in range(4):
        a(f"v_xor_b32 v26, {2*ks}, v25")
        a(f"v_lshl_add_u32 {v(dst+ks)}, v26, 4, v24")


def k1_dma_setup(a):
    a("v_lshrrev_b32 v3, 4, v0")
    a("v_lshlrev_b32 v4, 2, v3")
    a("v_and_b32 v60, 15, v0")
    a("v_xor_b32 v60, v60, v4")
    a("v_lshlrev_b32 v60, 4, v60")
    a("v_mul_u32_u24 v4, 3840, v3")
    a("v_add_u32 v60, v60, v4")
    a("v_lshrrev_b32 v5, 3, v0")
    a("v_and_b32 v61, 7, v0")
    a("v_xor_b32 v61, v61, v3")
    a("v_mul_u32_u24 v5, 1280, v5")
    a("v_xor_b32 v62, 4, v61")
    a("v_lshl_add_u32 v61, v61, 4, v5")
    a("v_lshl_add_u32 v62, v62, 4, v5")
    a(f"s_mul_i32 s54, s29, {16*3840}")
    a("s_lshl_b32 s22, s27, 8")
    a("s_add_u32 s54, s54, s22")
    a(f"s_lshl_b32 s55, {s(S_DOM)}, 2")
    a("s_add_u32 s55, s55, s29")
    a(f"s_mul_i32 s55, s55, {32*1280}")
    a("s_lshl_b32 s56, s29, 12")


def k1_dma(a, L, c, js=range(4)):
    for j in js:
        a(f"s_add_u32 m0, s56, {(c % 4)*16*K + j*K}")
        a(f"s_add_u32 s24, s54, {(64*c + 4*j)*3840}")
        a("buffer_load_dwordx4 v60, s[12:15], s24 offen lds")
        a(f"s_add_u32 m0, s56, {K1_XB + (c % 4)*16*K + j*K}")
        a(f"s_add_u32 s24, s55, {128*c + 8*j*1280}")
        a(f"buffer_load_dwordx4 {v(61 + (j & 1))}, s[8:11], s24 offen lds")
        L.other(("w", c))
        L.other(("w", c))


def k1_touch(a):
    a("s_lshl_b32 s22, s2, 2")
    a("s_add_u32 s22, s22, s29")
    a("v_lshlrev_b32 v63, 7, v0")
    a("s_mul_i32 s23, s22, 2560")
    a("s_mul_i32 s22, s22, 2432")
    a("s_mov_b64 exec, 0xfffff")
    a("buffer_load_dword v254, v63, s[8:11], s23 offen")
    a("s_mov_b64 exec, 0x7ffff")
    a("buffer_load_dword v254, v63, s[12:15], s22 offen")
    a("s_mov_b64 exec, -1")


K1_SA = 176
K1_X16 = 168


def k1_prologue(a):
    tr_addr32(a, K1_TA)
    x_addr(a, 56, S_W)
    a("v_and_b32 v24, 15, v0")
    a("v_lshrrev_b32 v25, 4, v0")
    a("v_bfe_u32 v60, v0, 1, 3")
    a("v_xor_b32 v60, v60, v25")
    a("v_xor_b32 v61, 4, v60")
    a("v_lshlrev_b32 v24, 7, v24")
    a("v_add_u32 v24, s22, v24")
    a("v_lshl_add_u32 v60, v60, 4, v24")
    a("v_lshl_add_u32 v61, v61, 4, v24")
    for r in range(4):
        a(f"v_mov_b32 {v(192+r)}, 0x3f803f80")
    for r in range(10, 16):
        a(f"v_mov_b32 {v(r)}, 0")


def k1_main(a, swap):
    lds = []

    def wread(k, t):
        sl = ((k // 4) % 4) * 16 * K
        off = sl + (k % 4) * 4096
        r = G_WB + 16 * (k & 1) + 4 * t
        if t == 0:
            a(f"ds_read_b128 {v(G_AW + 4*(k & 1), 4)}, {v(56 + k % 4)} offset:{sl}")
            lds.append("x")
        a(f"ds_read_b64_tr_b16 {v(r,2)}, {v(K1_TA + 2*t)} offset:{off}")
        a(f"ds_read_b64_tr_b16 {v(r+2,2)}, {v(K1_TA + 2*t)} offset:{off + K}")
        lds.extend(["h", (k, t)])
        if t == 1:
            a(f"ds_read_b128 {v(K1_X16 + 4*(k & 1), 4)}, {v(60 + ((k >> 1) & 1))} offset:{sl + (k & 1)*2048}")
            lds.append("y")

    if OPT.get("k1touch", 2) == 1:
        a(f"s_mov_b32 s28, s29")
        a(f"s_mov_b32 s29, {s(S_W)}")
        k1_touch(a)
        a(f"s_mov_b32 s29, s28")
    stamp(a, "k1p0")
    a("s_barrier")
    stamp(a, "k1b0")
    for t in range(4):
        wread(0, t)
    for k in range(40):
        last = (k == 39)
        for t in range(4):
            a(f"s_waitcnt lgkmcnt({len(lds) - 1 - lds.index((k, t))})")
            A_ = v(G_WB + 16 * (k & 1) + 4 * t, 4)
            B_ = v(G_AW + 4 * (k & 1), 4)
            if swap:
                A_, B_ = B_, A_
            D_ = v(G_ACC + 16 * t, 16)
            a(f"v_mfma_f32_32x32x16_bf16 {D_}, {A_}, {B_}, {D_ if k else 0}")
            if not last:
                if k % 4 == 3 and t == 0:
                    a("s_barrier")
                    stamp(a, f"k1b{(k+1)//4}")
                wread(k + 1, t)
            if t >= 2:
                X_ = v(K1_X16 + 4 * (k & 1), 4)
                D2 = v(K1_SA + 8 * (t - 2) + 4 * (k & 1), 4)
                a(f"v_mfma_f32_16x16x32_bf16 {D2}, {'v[192:195]' if t == 2 else X_}, {X_}, {D2 if k > 1 else 0}")
    a("v_and_b32 v25, 3, v0")
    a("v_and_b32 v26, 15, v0")
    a(f"s_lshl_b32 s22, {s(S_W)}, 8")
    a(f"s_add_u32 s22, s22, {K1_STX}")
    a("v_lshlrev_b32 v26, 3, v26")
    a("v_add_u32 v26, s22, v26")
    a("v_lshlrev_b32 v24, 3, v5")
    a("v_add_u32 v24, s22, v24")
    G0, G1 = K1_SA + 8, K1_SA + 12
    for r in range(1, 4):
        a(f"v_cmp_eq_u32 vcc, {r}, v25")
        a.nop(2)
        a(f"v_cndmask_b32 {v(G0)}, {v(G0)}, {v(G0+r)}, vcc")
        a(f"v_cndmask_b32 {v(G1)}, {v(G1)}, {v(G1+r)}, vcc")
    a(f"v_mov_b32 {v(K1_SA+1)}, {v(G0)}")
    a(f"v_mov_b32 {v(K1_SA+5)}, {v(G1)}")
    a("s_mov_b32 exec_lo, 0x00f0000f")
    a("s_mov_b32 exec_hi, 0xf0000f00")
    a(f"ds_write_b64 v26, {v(K1_SA,2)}")
    a(f"ds_write_b64 v26, {v(K1_SA+4,2)} offset:128")
    a("s_mov_b64 exec, -1")
    a("ds_read_b64 v[8:9], v24")
    a("s_barrier")
    a("s_waitcnt lgkmcnt(0)")
    a("v_mul_f32 v8, 0.5, v8")
    a("v_mul_f32 v9, 0.5, v9")


def code_prefetch(a, idx_sgpr, va=24, vd=255):
    here = a.label("pc")
    a("s_getpc_b64 s[22:23]")
    a(f"{here}:")
    a(f"s_sub_u32 s22, s22, {here}-L_text_begin")
    a("s_subb_u32 s23, s23, 0")
    a(f"s_mul_i32 s24, {s(idx_sgpr)}, 128*((L_text_end-L_text_begin+4095)/4096)")
    a(f"v_lshlrev_b32 {v(va)}, 7, v0")
    a(f"v_add_u32 {v(va)}, s24, {v(va)}")
    a(f"v_min_u32 {v(va)}, L_text_end-L_text_begin-4, {v(va)}")
    a("v_cmp_gt_u32 vcc, (L_text_end-L_text_begin+4095)/4096, v0")
    a("s_and_saveexec_b64 s[24:25], vcc")
    a(f"global_load_dword {v(vd)}, {v(va)}, s[22:23]")
    a("s_mov_b64 exec, -1")


PIECES = [(0, 200, 16, 1280, 10, 16, True, WOT, 20, 5), (200, 480, 40, 1280, 10, 16, True, W2T, 48, 5),
          (680, 480, 36, 3072, 24, 32, False, W1T, 40, 3)]


def piece_dispatch(a, s_pid, fn):
    end = a.label("pend")
    for P in PIECES:
        nxt = a.label("pnext")
        a(f"s_cmp_ge_u32 {s(s_pid)}, {P[0]+P[1]}")
        a(f"s_cbranch_scc1 {nxt}")
        a(f"s_sub_u32 s23, {s(s_pid)}, {P[0]}")
        a(f"s_mov_b32 s24, {magic(P[4])}")
        a("s_mul_hi_u32 s25, s23, s24")
        a(f"s_mul_i32 s26, s25, {P[4]}")
        a("s_sub_u32 s26, s23, s26")
        fn(P)
        a(f"s_branch {end}")
        a(f"{nxt}:")
    a(f"{end}:")


def t_layout(a, r):
    a(f"v_permlane32_swap_b32 {v(r)}, {v(r+2)}")
    a(f"v_permlane32_swap_b32 {v(r+1)}, {v(r+3)}")
    a.nop(2)
    a(f"v_permlane16_swap_b32 {v(r)}, {v(r+1)}")
    a(f"v_permlane16_swap_b32 {v(r+2)}, {v(r+3)}")


def piece_load(a, s_pid, s_lds):
    def fn(P):
        RS = P[3]
        a("s_lshl_b32 s26, s26, 7")
        a("v_lshrrev_b32 v20, 3, v0")
        a("v_and_b32 v21, 7, v0")

        def go(rows_kb, base, rowj):
            a(f"s_mul_i32 s25, s25, {rows_kb*RS}")
            a("s_add_u32 s25, s25, s26")
            a(f"v_mul_u32_u24 v20, {RS}, v20")
            a("v_lshl_add_u32 v20, v21, 4, v20")
            for j in range(4):
                a(f"s_add_u32 m0, {s(s_lds)}, {j*K}")
                a(f"s_add_u32 s24, s25, {(base + rowj[j])*RS}")
                a(f"buffer_load_dwordx4 v20, {s(P[2],4)}, s24 offen lds")
        if P[7] != WOT:
            go(32, 0, [0, 8, 16, 24])
        else:
            hi = a.label("wohi")
            dn = a.label("wodn")
            a("s_cmp_ge_u32 s25, 16")
            a(f"s_cbranch_scc1 {hi}")
            go(40, 0, [0, 8, 20, 28])
            a(f"s_branch {dn}")
            a(f"{hi}:")
            a("s_sub_u32 s25, s25, 16")
            a("v_lshrrev_b32 v22, 2, v20")
            a("v_mul_u32_u24 v22, 36, v22")
            a("v_add_u32 v20, v20, v22")
            go(160, 16, [0, 20, 80, 100])
            a(f"{dn}:")
    piece_dispatch(a, s_pid, fn)


def piece_finish(a, s_pid, s_lds):
    def fn(P):
        typ, perm, outbase, nks, ntile = P[5:]
        a("v_lshrrev_b32 v21, 4, v0")
        a("v_bfe_u32 v22, v0, 2, 2")
        a("v_and_b32 v23, 3, v0")
        if typ == 16:
            if perm:
                a("v_lshrrev_b32 v24, 1, v21")
                a("v_lshlrev_b32 v24, 4, v24")
                a("v_and_b32 v25, 1, v21")
                a("v_lshl_add_u32 v24, v25, 2, v24")
                second = 8
            else:
                a("v_lshlrev_b32 v24, 3, v21")
                second = 4
            a("v_add_u32 v24, v24, v22")
            a("v_lshlrev_b32 v24, 7, v24")
            a("v_lshl_add_u32 v24, v23, 3, v24")
            frs = [(ft * 32, ft, 0) for ft in range(4)]
        else:
            a("v_lshrrev_b32 v24, 1, v21")
            a("v_lshlrev_b32 v24, 3, v24")
            a("v_add_u32 v24, v24, v22")
            a("v_lshlrev_b32 v24, 7, v24")
            a("v_lshl_add_u32 v24, v23, 3, v24")
            a("v_and_b32 v25, 1, v21")
            a("v_lshl_add_u32 v24, v25, 5, v24")
            second = 4
            frs = [(ks * 16 * 128 + ft * 64, ft, ks) for ft in range(2) for ks in range(2)]
        a(f"v_add_u32 v24, {s(s_lds)}, v24")
        tl = outbase != WOT
        if tl:
            a("v_and_b32 v20, 15, v0")
            a("v_lshl_add_u32 v20, v20, 2, v21")
            a("v_lshlrev_b32 v20, 4, v20")
        else:
            a("v_lshlrev_b32 v20, 4, v0")
        for i, (off, ft, ks) in enumerate(frs):
            a(f"ds_read_b64_tr_b16 {v(28+4*i,2)}, v24 offset:{off}")
            a(f"ds_read_b64_tr_b16 {v(30+4*i,2)}, v24 offset:{off+second*128}")
        for i, (off, ft, ks) in enumerate(frs):
            if typ == 16:
                a("s_lshl_b32 s23, s26, 2")
                a(f"s_add_u32 s23, s23, {ft}")
                a("s_mov_b32 s28, s25")
            else:
                a("s_lshl_b32 s23, s26, 1")
                a(f"s_add_u32 s23, s23, {ft}")
                a("s_lshl_b32 s28, s25, 1")
                a(f"s_add_u32 s28, s28, {ks}")
            a(f"s_mov_b32 s24, {magic(ntile)}")
            a("s_mul_hi_u32 s24, s23, s24")
            a(f"s_mul_i32 s22, s24, {ntile}")
            a("s_sub_u32 s23, s23, s22")
            a(f"s_mul_i32 s24, s24, {nks}")
            a("s_add_u32 s24, s24, s28")
            a(f"s_mul_i32 s24, s24, {ntile}")
            a("s_add_u32 s24, s24, s23")
            a("s_lshl_b32 s24, s24, 10")
            a(f"s_add_u32 s24, s24, {outbase}")
            a(f"s_waitcnt lgkmcnt({2*(3-i)})")
            if tl:
                t_layout(a, 28 + 4 * i)
            a(f"buffer_store_dwordx4 {v(28+4*i,4)}, v20, {WSR}, s24 offen")
    piece_dispatch(a, s_pid, fn)


def k1_helper(a):
    L = Loader(a)
    k1_dma_setup(a)
    a("s_waitcnt lgkmcnt(0)")
    NF = OPT.get("k1first", 2)
    for c in range(NF):
        k1_dma(a, L, c)
    a("s_setprio 2")
    tr_addr32(a, 8, t_sgpr=29)
    a("v_and_b32 v5, 15, v0")
    a("v_lshrrev_b32 v6, 4, v0")
    a("v_xor_b32 v18, v5, v6")
    a("v_and_b32 v18, 1, v18")
    a("v_cmp_eq_u32 vcc, 0, v18")
    a("v_mov_b32 v12, 0x3f803f80")
    a("v_lshlrev_b32 v10, 4, v0")
    for r in range(4):
        a(f"v_cndmask_b32 {v(116+r)}, 0, v12, vcc")
    a("v_lshl_add_u32 v11, v5, 2, v6")
    a("v_lshlrev_b32 v11, 4, v11")
    a(f"s_mul_i32 s32, s27, {160*K}")
    a("s_lshl_b32 s22, s29, 10")
    a("s_add_u32 s32, s32, s22")
    a(f"s_add_u32 s32, s32, {WQT}")
    a(f"s_mul_i32 s34, {s(S_DOM)}, 15")
    a("s_add_u32 s34, s34, s27")
    a("s_lshl_b32 s34, s34, 2")
    a("s_add_u32 s34, s34, s29")
    a(f"s_add_u32 s35, s56, {K1_PC}")
    a(f"s_lshr_b32 s30, {s(S_DOM)}, 2")
    a(f"s_and_b32 s31, {s(S_DOM)}, 3")
    a("s_lshl_b32 s22, s31, 12")
    a("s_add_u32 s32, s32, s22")
    a("v_add_u32 v9, s22, v8")
    for c in range(10):
        L.wait(("w", c))
        a("s_barrier")
        off = (c % 4) * 16 * K
        for ks in range(4):
            a(f"ds_read_b64_tr_b16 {v(80+4*ks,2)}, v8 offset:{off + ks*4096}")
            a(f"ds_read_b64_tr_b16 {v(82+4*ks,2)}, v8 offset:{off + ks*4096 + K}")
        nost = a.label("nost")
        a(f"s_cmp_lg_u32 s30, {c % 4}")
        a(f"s_cbranch_scc1 {nost}")
        a(f"ds_read_b64_tr_b16 v[96:97], v9 offset:{off}")
        a(f"ds_read_b64_tr_b16 v[98:99], v9 offset:{off + K}")
        a(f"s_add_u32 s24, s32, {c*16*K}")
        a("s_waitcnt lgkmcnt(0)")
        if c < NQS:
            t_layout(a, 96)
        a(f"buffer_store_dwordx4 v[96:99], {'v11' if c < NQS else 'v10'}, {WSR}, s24 offen")
        a(f"{nost}:")
        cn = c + 2 if (c + 2 >= NF and c + 2 < 10) else None
        if c == 0 and NF == 3:
            cn = 3
        if c == 1 and NF == 3:
            cn = None
        for ks in range(4):
            if cn is not None:
                k1_dma(a, L, cn, [ks])
            a(f"s_waitcnt lgkmcnt({6-2*ks})")
            a(f"v_mfma_f32_16x16x32_bf16 v[56:59], {v(80+4*ks,4)}, v[116:119], {'v[56:59]' if c or ks else 0}")
        if c == OPT.get("k1pc", 8):
            piece_load(a, 34, 35)
            for _ in range(4):
                L.other("pc")
    a("v_lshlrev_b32 v3, 6, v5")
    a("v_lshl_add_u32 v3, v6, 4, v3")
    a("s_lshl_b32 s22, s29, 7")
    a("v_add_u32 v3, s22, v3")
    a(f"v_add_u32 v4, {K1_CS}, v3")
    a("s_lshl_b32 s22, s27, 9")
    a(f"s_add_u32 s22, s22, {CSQ}")
    a("s_mov_b32 exec_lo, 0x00030003")
    a("s_mov_b32 exec_hi, 0x00030003")
    a("ds_write_b128 v4, v[56:59]")
    lab = a.label("nocs")
    a(f"s_cmp_lg_u32 {s(S_DOM)}, 0")
    a(f"s_cbranch_scc1 {lab}")
    a(f"buffer_store_dwordx4 v[56:59], v3, {WSR}, s22 offen")
    a(f"{lab}:")
    a("s_mov_b64 exec, -1")
    a("s_waitcnt lgkmcnt(0)")
    a("s_barrier")
    a("s_waitcnt vmcnt(0)")
    piece_finish(a, 34, 35)


def k1_spare(a):
    a(f"s_lshl_b32 s34, {s(S_DOM)}, 3")
    a(f"s_add_u32 s34, s34, {s(S_W)}")
    a("s_lshl_b32 s34, s34, 1")
    a("s_add_u32 s34, s34, 960")
    a("s_add_u32 s33, s34, 1")
    a(f"s_lshl_b32 s35, {s(S_W)}, 13")
    a(f"s_add_u32 s35, s35, {64*K}")
    a("s_add_u32 s32, s35, 4096")
    a("v_mul_u32_u24 v2, 43, v0")
    a("v_lshrrev_b32 v2, 9, v2")
    a("v_mul_u32_u24 v3, 12, v2")
    a("v_sub_u32 v3, v0, v3")
    a("v_mul_u32_u24 v4, 3072, v2")
    a("v_lshl_add_u32 v4, v3, 4, v4")
    a(f"s_mul_i32 s30, {s(S_W)}, {80*3072}")
    a(f"s_mul_i32 s31, {s(S_DOM)}, 192")
    a("s_add_u32 s30, s30, s31")
    a("s_mov_b32 exec_hi, 0x0fffffff")
    for i in range(16):
        a(f"s_add_u32 s24, s30, {5*i*3072}")
        a(f"buffer_load_dwordx4 {v(64+4*i,4)}, v4, s[36:39], s24 offen")
    a("s_mov_b64 exec, -1")
    piece_load(a, 34, 35)
    piece_load(a, 33, 32)
    for j in range(8):
        a(f"v_mov_b32 {v(8+j)}, 0")
    a("v_mov_b32 v16, 0x00003f80")
    a("v_mov_b32 v17, 0x3f800000")
    a(f"s_mul_i32 s22, {s(S_W)}, {5*384}")
    a("v_mul_u32_u24 v5, 384, v2")
    a("v_lshl_add_u32 v5, v3, 5, v5")
    a("v_add_u32 v5, s22, v5")
    a("s_waitcnt vmcnt(0)")
    for i in range(16):
        for j in range(4):
            a(f"v_dot2_f32_bf16 {v(8+2*j)}, {v(64+4*i+j)}, v16, {v(8+2*j)}")
            a(f"v_dot2_f32_bf16 {v(9+2*j)}, {v(64+4*i+j)}, v17, {v(9+2*j)}")
    a("s_mov_b32 exec_hi, 0x0fffffff")
    a.nop(3)
    a("ds_write_b128 v5, v[8:11]")
    a("ds_write_b128 v5, v[12:15] offset:16")
    a("s_mov_b64 exec, -1")
    a("s_waitcnt lgkmcnt(0)")
    a("s_barrier")
    lab = a.label("nored")
    a(f"s_cmp_ge_u32 {s(S_W)}, 2")
    a(f"s_cbranch_scc1 {lab}")
    a(f"s_mul_i32 s22, {s(S_W)}, 48")
    a("v_add_u32 v6, s22, v0")
    a("v_lshlrev_b32 v7, 2, v6")
    a("v_lshlrev_b32 v18, 1, v6")
    a("s_mov_b32 exec_hi, 0xffff")
    a(f"buffer_load_ushort v19, v18, s[44:47], s31 offen")
    for i in range(40):
        a(f"ds_read_b32 {v(64+i)}, v7 offset:{384*i}")
        if i % 10 == 9:
            a("s_waitcnt lgkmcnt(0)")
    for i in range(1, 40):
        a(f"v_add_f32 v64, v64, {v(64+i)}")
    a(f"s_mul_i32 s22, {s(S_DOM)}, 768")
    a(f"s_add_u32 s23, s22, {CS1}")
    a(f"s_add_u32 s22, s22, {CS1+384}")
    a(f"buffer_store_dword v64, v7, {WSR}, s23 offen")
    a("s_waitcnt vmcnt(1)")
    a("v_lshlrev_b32 v19, 16, v19")
    a(f"buffer_store_dword v19, v7, {WSR}, s22 offen")
    a("s_mov_b64 exec, -1")
    a(f"{lab}:")
    piece_finish(a, 34, 35)
    a.nop(2)
    piece_finish(a, 33, 32)


def gen_k1(a):
    name = "first_kernel"
    gen1.kernel_head(a, name, 256, [(8, 0, 2621440), (12, 1, 2457600), (16, 2, 819200), (36, 4, 1966080),
                                    (40, 6, 1966080), (44, 5, 3072)])
    a.lines.pop()
    lab = a.label("nocp")
    a(f"s_cmp_lg_u32 {s(S_W)}, 3")
    a(f"s_cbranch_scc1 {lab}")
    a("s_lshr_b32 s26, s2, 3")
    if OPT.get("cpf", 1):
        code_prefetch(a, 26)
    a(f"{lab}:")
    a("s_and_b32 s22, s2, 7")
    a("s_lshr_b32 s23, s2, 3")
    a("s_lshr_b32 s24, s22, 1")
    a("s_lshl_b32 s24, s24, 2")
    a("s_lshr_b32 s25, s23, 3")
    a(f"s_add_u32 {s(S_DOM)}, s24, s25")
    a("s_and_b32 s27, s22, 1")
    a("s_lshl_b32 s27, s27, 3")
    a("s_and_b32 s23, s23, 7")
    a("s_add_u32 s27, s27, s23")
    a(f"s_and_b32 s29, {s(S_W)}, 3")
    fin = a.label("fin")
    comp = a.label("comp")
    spare = a.label("spare")
    a("s_cmp_eq_u32 s27, 15")
    a(f"s_cbranch_scc1 {spare}")
    a(f"s_cmp_lt_u32 {s(S_W)}, 4")
    a(f"s_cbranch_scc1 {comp}")
    k1_helper(a)
    a(f"s_branch {fin}")
    a(f"{comp}:")
    a("s_waitcnt lgkmcnt(0)")
    if OPT.get("k1touch", 2) == 2:
        k1_touch(a)
    qkv_compute(a, None, None, KVB[0], QB[0], None, None, lambda: None, "", fin, first=True)
    a(f"s_branch {fin}")
    a(f"{spare}:")
    a("s_waitcnt lgkmcnt(0)")
    if OPT.get("k1touch", 2):
        k1_touch(a)
    k1_spare(a)
    a("v_lshlrev_b32 v2, 3, v0")
    a("v_mov_b32 v4, 0")
    a("v_mov_b32 v5, 0")
    a(f"s_lshl_b32 s22, {s(S_DOM)}, 3")
    a(f"s_add_u32 s22, s22, {s(S_W)}")
    a("s_lshl_b32 s22, s22, 9")
    a(f"s_add_u32 s22, s22, {CNT}")
    a(f"buffer_store_dwordx2 v[4:5], v2, {WSR}, s22 offen")
    a(f"{fin}:")
    gen1.kernel_tail(a, name, 0)
    return name


def generate(profile=False):
    gen1.PROFILE = profile
    a = Asm()
    a("L_text_begin:")
    names = [gen_k1(a)]
    gen_chain(a)
    a("L_text_end:")
    names += ["chaina_kernel", "chainb_kernel"]
    body = a.text()
    probs = check_hazards(body)
    hdr = open("cdna_kernels/" + NAME + ".s.ref").read().split("; Override launch")[0]
    out = hdr
    for n in names:
        lds = {"pre": 32768}.get(n[:3], 163840)
        out += f"; @launch kernel={n} grid=(256,1,1) block=(512,1,1) lds={lds}\n"
    out += '.amdgcn_target "amdgcn-amd-amdhsa--gfx950"\n.text\n' + body
    out += '.section .rodata,"a"\n'
    for n in names:
        out += ".p2align 6\n" + gen1.descriptor(n)
    return out, probs


if __name__ == "__main__":
    prof = "--profile" in sys.argv
    for arg in sys.argv[2:]:
        if arg.startswith("st="):
            ACTIVE.extend(arg[3:].split(","))
        elif arg.startswith("s."):
            kk, vv = arg[2:].split("=")
            SCHED[kk] = vv.replace(",", " ")
        elif "=" in arg:
            OPT[arg.split("=")[0]] = int(arg.split("=")[1])
    if not ACTIVE:
        ACTIVE.extend("P0,B1,B4,B7,preRa,S2,womain,sig3,S3,E1,sig4,S4,m2main,sig5,S5,qkvmain".split(","))
    out, probs = generate(prof)
    for p in probs[:50]:
        print("HAZARD", p)
    print("hazards:", len(probs))
    path = sys.argv[1]
    if prof:
        out = "; stamps: " + ",".join(ACTIVE) + "\n" + out
    open(path, "w").write(out)
    print("wrote", path, len(out), "bytes")
```

```python
import math
import struct
import sys
from asmlib import Asm, v, s, check_hazards
import gen1
from gen1 import fhex, magic, sum_xor16, sum_xor32, ln_stats, EPS, QSCALE, NAME

K = 1024
WOT = 0
W1T = 800 * K
W2T = W1T + 1920 * K
WQT = W2T + 1920 * K
CSQ = WQT + 2400 * K
CS1 = CSQ + 8 * K
CNT = CSQ + 32 * K
SCR = CNT + 64 * K
SCR_STRIDE = 336 * K
R_O = 0
R_ST = 320 * K
KVQ = SCR + 8 * SCR_STRIDE
DOM_STRIDE = 480 * K
R_Q = 320 * K
XSR = "s[12:15]"
PROF = gen1.PROF
WS_END = gen1.WS_END

S_WS = 4
S_W = 20
S_X = 21
S_L = 50
S_I = 51
S_CNT = 52
S_DOM = 53
S_PURE = 54
S_XCC = 55
S_DBG = 56
S_SCR = 3
FORCE_IMPURE = False
WSR = s(S_WS, 4)

SYNC_LDS = 159 * K
ST = ""
LD = "sc1"
OPT = {}


ACTIVE = []
SCHED = {'a': 'w2*22', 'r': '', 'b': 'www', 'c': '', 'c3': 'w2*4', 'c6': 'w3*10', 'e': 'ww2', 'f': '', 'g0': '', 'g2': '', 'g4': '', 'g6': '', 'g8': '', 'g10': ''}


def stamp(a, name):
    if name in ACTIVE:
        gen1.stamp(a, ACTIVE.index(name))


class Loader:
    def __init__(self, a):
        self.a = a
        self.ops = []

    def dma(self, tag, n, lds, s_src, src_off, s_ldsw, j0=0):
        a = self.a
        for j in range(n):
            if j % 4 == 0:
                a(f"s_add_u32 m0, {s(s_ldsw)}, {lds + (j0+j)*K}")
                a(f"s_add_u32 s24, {s(s_src)}, {src_off + (j0+j)*K}")
            a(f"buffer_load_dwordx4 v2, {WSR}, s24 offen offset:{(j % 4)*K} lds")
            self.ops.append(tag)

    def other(self, tag):
        self.ops.append(tag)

    def wait(self, tag):
        last = max(i for i, t in enumerate(self.ops) if t == tag)
        n = len(self.ops) - 1 - last
        self.a(f"s_waitcnt vmcnt({min(n, 63)})")


def touch_items(a, L, base, nbytes, s_base, lines, vaddr, s_tmp, flags="", vd=28):
    pw = nbytes // 128
    assert pw % 128 == 0
    items = []
    off = 0
    while off < pw:
        n = min(lines, (pw - off) // 128)

        def f(off=off, n=n):
            if off == 0:
                a(f"s_lshl_b32 {s(s_tmp)}, {s(S_I)}, 2")
                a(f"s_add_u32 {s(s_tmp)}, {s(s_tmp)}, s29")
                a(f"s_mul_i32 {s(s_tmp)}, {s(s_tmp)}, {pw}")
                if s_base is not None:
                    a(f"s_add_u32 {s(s_tmp)}, {s(s_tmp)}, {s(s_base)}")
            a(f"s_add_u32 s24, {s(s_tmp)}, {base + off}")
            if n < 64:
                a(f"s_mov_b64 exec, {hex((1 << n) - 1)}" if n <= 31 else f"s_mov_b32 exec_hi, {hex((1 << (n-32)) - 1)}")
            a(f"buffer_load_dword {v(vd)}, {v(vaddr)}, {WSR}, s24 offen {flags}")
            L.other("pf")
            if n < 64:
                a("s_mov_b64 exec, -1")
        items.append(f)
        off += n * 128
    return items


FLG = 0x1000
COLD = []
PENDING = []


def flag_base(a, phase, s_tile, dst):
    a(f"s_lshl_b32 {s(dst)}, {s(S_X)}, 3")
    a(f"s_add_u32 {s(dst)}, {s(dst)}, {s(s_tile)}")
    a(f"s_lshl_b32 {s(dst)}, {s(dst)}, 6")
    a(f"s_add_u32 {s(dst)}, {s(dst)}, {s(S_CNT)}")
    a(f"s_add_u32 {s(dst)}, {s(dst)}, {phase*8192 + FLG}")


def signal(a, phase, last_count, s_tile, s_slot):
    imp = a.label("sigimp")
    back = a.label("sigback")
    flag_base(a, phase, s_tile, 100)
    a(f"s_lshl_b32 s23, {s(s_slot)}, 2")
    a("s_add_u32 s100, s100, s23")

    def fire():
        a("v_mov_b32 v8, 0")
        a("v_mov_b32 v9, 1")
        a(f"s_cmp_eq_u32 {s(S_PURE)}, 0")
        a("s_mov_b64 exec, 1")
        a("s_waitcnt vmcnt(0)")
        a(f"s_cbranch_scc1 {imp}")
        a(f"buffer_store_dword v9, v8, {WSR}, s100 offen")
        a(f"{back}:")
        a("s_mov_b64 exec, -1")
        stamp(a, f"sig{phase+2}")
    PENDING.append(fire)

    def cold():
        a(f"{imp}:")
        a(f"v_mov_b32 v8, {SYNC_LDS}")
        a(f"s_lshl_b32 s22, {s(S_DOM)}, 8")
        a(f"s_add_u32 s22, s22, {s(S_CNT)}")
        a(f"s_add_u32 s22, s22, {phase*8192}")
        a("ds_add_rtn_u32 v10, v8, v9")
        a("v_mov_b32 v8, 0")
        a("s_waitcnt lgkmcnt(0)")
        a(f"v_cmp_ne_u32 vcc, {last_count}, v10")
        a(f"s_cbranch_vccnz {back}")
        a("buffer_wbl2 sc1")
        a("s_waitcnt vmcnt(0)")
        a(f"buffer_atomic_add v9, v8, {WSR}, s22 offen sc1")
        a(f"s_branch {back}")
    COLD.append(cold)


NSUB = 4


def signal_global(a, last_count):
    skip = a.label("nosig")
    a(f"v_mov_b32 v8, {SYNC_LDS}")
    a("v_mov_b32 v9, 1")
    a(f"s_and_b32 s22, {s(S_I)}, 7")
    a(f"s_mul_i32 s22, s22, {NSUB}")
    a(f"s_and_b32 s23, {s(S_X)}, {NSUB-1}")
    a("s_add_u32 s22, s22, s23")
    a("s_lshl_b32 s22, s22, 8")
    a(f"s_add_u32 s22, s22, {s(S_CNT)}")
    a("s_mov_b64 exec, 1")
    a("s_waitcnt vmcnt(0)")
    a("ds_add_rtn_u32 v10, v8, v9")
    a("v_mov_b32 v8, 0")
    a("s_waitcnt lgkmcnt(0)")
    a(f"v_cmp_ne_u32 vcc, {last_count}, v10")
    a(f"s_cbranch_vccnz {skip}")
    a(f"buffer_atomic_add v9, v8, {WSR}, s22 offen sc1")
    a(f"{skip}:")
    a("s_mov_b64 exec, -1")


def wait_global(a):
    oth = a.label("spin")
    done = a.label("go")
    poll = a.label("poll")
    out = a.label("polled")
    a(f"v_mov_b32 v8, {SYNC_LDS+4}")
    a(f"s_cmp_lg_u32 {s(S_W)}, 0")
    a(f"s_cbranch_scc1 {oth}")
    a(f"s_mul_i32 s22, {s(S_X)}, {NSUB*256}")
    a(f"s_add_u32 s22, s22, {s(S_CNT)}")
    a("s_mov_b32 s23, 200000")
    a("v_lshlrev_b32 v9, 8, v0")
    a(f"s_mov_b64 exec, {(1 << NSUB) - 1}")
    a(f"{poll}:")
    a(f"buffer_load_dword v10, v9, {WSR}, s22 offen sc1")
    a("s_sub_u32 s23, s23, 1")
    a(f"s_cbranch_scc1 {out}")
    a("s_waitcnt vmcnt(0)")
    a(f"v_cmp_gt_u32 vcc, {32 // NSUB}, v10")
    a(f"s_cbranch_vccnz {poll}")
    a(f"{out}:")
    a("v_mov_b32 v9, 1")
    a("ds_write_b32 v8, v9")
    a(f"s_branch {done}")
    a(f"{oth}:")
    a("s_mov_b64 exec, 1")
    a("s_mov_b32 s23, 8000000")
    sp = a.label("sp")
    a(f"{sp}:")
    a("ds_read_b32 v9, v8")
    a("s_sub_u32 s23, s23, 1")
    a(f"s_cbranch_scc1 {done}")
    a("s_waitcnt lgkmcnt(0)")
    a("v_cmp_gt_u32 vcc, 1, v9")
    a(f"s_cbranch_vccnz {sp}")
    a(f"{done}:")
    a("s_waitcnt lgkmcnt(0)")
    a("s_mov_b64 exec, -1")


def wait_sync(a, phase, s_tile):
    poll = a.label("poll")
    out = a.label("polled")
    imp = a.label("pollimp")
    PENDING[-1]()
    flag_base(a, phase, s_tile, 22)
    a("s_mov_b32 s23, 200000")
    a("v_lshlrev_b32 v9, 2, v0")
    a(f"s_cmp_eq_u32 {s(S_PURE)}, 0")
    a(f"s_cbranch_scc1 {imp}")
    a("s_mov_b64 exec, 0xffff")
    a(f"{poll}:")
    a(f"buffer_load_dword v10, v9, {WSR}, s22 offen sc1")
    a("s_sub_u32 s23, s23, 1")
    a(f"s_cbranch_scc1 {out}")
    a("s_waitcnt vmcnt(0)")
    a("v_cmp_ne_u32 vcc, 1, v10")
    a(f"s_cbranch_vccnz {poll}")
    a(f"{out}:")
    a("s_waitcnt lgkmcnt(0)")
    a("s_mov_b64 exec, -1")

    def cold():
        poll2 = a.label("poll2")
        out2 = a.label("polled2")
        a(f"{imp}:")
        a(f"s_lshl_b32 s22, {s(S_DOM)}, 8")
        a(f"s_add_u32 s22, s22, {s(S_CNT)}")
        a(f"s_add_u32 s22, s22, {phase*8192}")
        a("s_mov_b64 exec, 1")
        a(f"{poll2}:")
        a(f"buffer_load_dword v10, v9, {WSR}, s22 offen sc1")
        a("s_sub_u32 s23, s23, 1")
        a(f"s_cbranch_scc1 {out2}")
        a("s_waitcnt vmcnt(0)")
        a("v_cmp_gt_u32 vcc, 16, v10")
        a(f"s_cbranch_vccnz {poll2}")
        a(f"{out2}:")
        a("s_waitcnt vmcnt(0)")
        a("buffer_inv sc1")
        a("s_waitcnt vmcnt(0)")
        a(f"s_branch {out}")
    COLD.append(cold)


def xcc_value(a):
    a(f"s_getreg_b32 {s(S_XCC)}, hwreg(HW_REG_XCC_ID)")
    a(f"s_and_b32 {s(S_XCC)}, {s(S_XCC)}, 7")
    a(f"s_mul_i32 s22, {s(S_XCC)}, {s(S_XCC)}")
    a("s_lshl_b32 s22, s22, 8")
    a(f"s_add_u32 s22, s22, {s(S_XCC)}")
    a("s_lshl_b32 s22, s22, 8")
    a(f"s_add_u32 {s(S_XCC)}, s22, 1")
    a(f"s_lshl_b32 s22, {s(S_X)}, 5")
    a("v_mov_b32 v26, s22")


def publish_xcc(a):
    lab = a.label("nopub")
    a(f"s_cmp_lg_u32 {s(S_W)}, 0")
    a(f"s_cbranch_scc1 {lab}")
    a(f"v_mov_b32 v8, {s(S_XCC)}")
    a("s_mov_b64 exec, 1")
    a(f"buffer_atomic_add v8, v26, {s(S_DBG,4)}, 0 offen sc1")
    a("s_mov_b64 exec, -1")
    a(f"{lab}:")


def purity_load(a):
    a(f"buffer_load_dword v27, v26, {s(S_DBG,4)}, 0 offen sc1")


def purity_check(a):
    lp = a.label("pur")
    ok = a.label("purok")
    a("s_mov_b32 s23, 200000")
    a(f"{lp}:")
    a("v_readfirstlane_b32 s22, v27")
    a("s_and_b32 s24, s22, 0xff")
    a("s_cmp_eq_u32 s24, 32")
    a(f"s_cbranch_scc1 {ok}")
    a(f"buffer_load_dword v27, v26, {s(S_DBG,4)}, 0 offen sc1")
    a("s_waitcnt vmcnt(0)")
    a("s_sub_u32 s23, s23, 1")
    a(f"s_cbranch_scc0 {lp}")
    a(f"{ok}:")
    a(f"s_lshl_b32 s24, {s(S_XCC)}, 5")
    a("s_cmp_eq_u32 s24, s22")
    a(f"s_cselect_b32 {s(S_PURE)}, {0 if FORCE_IMPURE else 1}, 0")


RB = 100 * K


STG = 160
W1_ADDR = [c * 12 * K for c in range(10)]
STA = 208
RESL = 240
C1_LDS = 158 * K
CQ_LDS = 153 * K
NQS = int(__import__('os').environ.get('NQS', 4))


def att_phase(a):
    SX, SY, O0, O1, VB, K16, K4, Q4, QA, IDX = 32, 64, 96, 112, 128, 144, 148, 150, 152, 30
    a(f"s_lshr_b32 s48, {s(S_I)}, 3")
    a(f"s_lshl_b32 s22, {s(S_X)}, 2")
    a("s_add_u32 s48, s48, s22")
    a(f"s_and_b32 s49, {s(S_I)}, 7")
    a("s_mul_i32 s26, s48, 10240")
    a(f"s_add_u32 s26, s26, {KVQ}")
    if OPT.get("kvsep", 0):
        a(f"s_mul_i32 s22, {s(S_L)}, {16*DOM_STRIDE}")
        a("s_add_u32 s26, s26, s22")
    a("v_lshlrev_b32 v2, 4, v0")
    a(f"s_lshl_b32 s30, {s(S_W)}, 10")
    a("s_add_u32 s31, s26, s30")
    a(f"s_add_u32 m0, s30, {RB}")
    a(f"s_and_b32 s29, {s(S_W)}, 3")
    a(f"s_lshr_b32 s33, {s(S_W)}, 2")
    a("s_lshl_b32 s27, s29, 1")
    a("s_lshl_b32 s22, s49, 1")
    a("s_lshr_b32 s23, s29, 1")
    a("s_add_u32 s22, s22, s23")
    a(f"s_mul_i32 s22, s22, {DOM_STRIDE}")
    a("s_mul_i32 s28, s48, 5120")
    a("s_add_u32 s28, s28, s22")
    a("s_and_b32 s22, s29, 1")
    a("s_mul_i32 s22, s22, 2560")
    a("s_add_u32 s28, s28, s22")
    a(f"s_add_u32 s28, s28, {KVQ + R_Q}")
    if OPT.get("kvsep", 0):
        a(f"s_mul_i32 s22, {s(S_L)}, {16*DOM_STRIDE}")
        a("s_add_u32 s28, s28, s22")
    a("s_mul_i32 s22, s33, 1280")
    a("s_add_u32 s23, s28, s22")
    a("s_sub_u32 s22, s28, s22")
    a("v_and_b32 v5, 31, v0")
    a("v_lshrrev_b32 v6, 5, v0")
    a("v_xor_b32 v7, s33, v6")
    a("v_mul_u32_u24 v7, 1280, v7")
    a("v_lshl_add_u32 v7, v5, 3, v7")
    a("s_waitcnt lgkmcnt(0)")
    a(f"buffer_load_dwordx4 v2, {WSR}, s31 offen lds")
    a(f"buffer_load_dwordx4 {v(QA,4)}, v2, {WSR}, s23 offen")
    a(f"buffer_load_dwordx4 {v(QA+4,4)}, v2, {WSR}, s22 offen offset:1280")
    a(f"buffer_load_dwordx2 {v(Q4,2)}, v7, {WSR}, s28 offen offset:1024")
    LA, LB = Loader(a), Loader(a)
    for L in (LA, LB):
        for _ in range(4):
            L.other("q")

    def pair(L, tag, d, js):
        for jj in js:
            if jj < 2:
                a(f"s_lshl_b32 s30, s29, 10")
            else:
                a("s_and_b32 s30, s29, 1")
                a("s_lshl_b32 s30, s30, 10")
            a("s_add_u32 s31, s26, s30")
            L.dma(tag, 1, RB + d * 10240 + jj * 4 * K, 31, d * DOM_STRIDE + jj * 4 * K, 30)

    def steady():
        a("s_lshr_b32 s30, s29, 1")
        a(f"s_mul_i32 s31, s30, {DOM_STRIDE}")
        a("s_and_b32 s30, s29, 1")
        a("s_mul_i32 s30, s30, 5120")
        a("s_add_u32 s31, s31, s30")
        a("s_add_u32 s31, s31, s26")
        a("s_mul_i32 s30, s29, 5120")

    lab = a.label("nl")
    a(f"s_cmp_lt_u32 {s(S_W)}, 4")
    a(f"s_cbranch_scc1 {lab}")
    pair(LB, "p0b", 0, [2])
    a(f"{lab}:")
    a("s_add_u32 s27, s27, s33")
    a("s_mov_b32 s34, 0")
    a("s_lshl_b32 s22, s33, 10")
    a(f"s_add_u32 s22, s22, {RB}")
    a("v_add_u32 v11, s22, v2")
    a("s_lshl_b32 s22, s33, 8")
    a(f"s_add_u32 s22, s22, {RB+2048}")
    a("v_mul_u32_u24 v3, 5120, v6")
    a("v_lshl_add_u32 v3, v5, 3, v3")
    a("v_add_u32 v3, s22, v3")
    a("s_mul_i32 s22, s33, 1280")
    a(f"s_add_u32 s22, s22, {RB+2560}")
    a("v_mul_u32_u24 v4, 320, v6")
    a("v_lshl_add_u32 v4, v5, 4, v4")
    a("v_add_u32 v4, s22, v4")
    a(f"v_mov_b32 {v(IDX)}, 0xdddddddd")
    a("v_mov_b32 v8, 0x3f803f80")
    a("v_cmp_eq_u32 vcc, 20, v5")
    a("s_mov_b32 s40, 0x000fffff")
    a("s_mov_b32 s41, 0x000fffff")
    for j in range(16):
        a(f"v_cndmask_b32 {v(VB+j)}, 0, v8, vcc")
    for j in range(32):
        a(f"v_mov_b32 {v(O0+j)}, 0")
    a(f"s_and_b32 s39, {s(S_I)}, 15")
    a(f"s_mul_i32 s39, s39, {120*K}")
    a("s_mul_i32 s22, s29, 3072")
    a("s_add_u32 s39, s39, s22")
    xcc_value(a)
    for reg, x in ((12, 0), (13, 4)):
        a(f"s_xor_b32 s24, {s(S_W)}, {x}")
        a("s_mul_i32 s22, s24, 3072")
        a("s_cmp_ge_u32 s24, 6")
        a(f"s_cselect_b32 s24, {22*K}, 0")
        a("s_add_u32 s22, s22, s24")
        a(f"s_add_u32 s22, s22, {RB}")
        a(f"v_add_u32 {v(reg)}, s22, v2")
    a(f"s_lshl_b32 s22, {s(S_W)}, 2")
    a(f"s_add_u32 s22, s22, {SYNC_LDS+64}")
    a("v_mov_b32 v23, s22")
    a("v_and_b32 v24, 7, v0")
    a("v_lshlrev_b32 v24, 2, v24")
    a(f"v_add_u32 v24, {SYNC_LDS+64}, v24")
    a(f"v_mov_b32 v25, {fhex(2.0**64)}")
    a("v_lshlrev_b32 v29, 7, v0")
    a("v_lshrrev_b32 v9, 4, v5")
    a(f"v_mul_u32_u24 v9, {20*K}, v9")
    a("v_and_b32 v10, 15, v5")
    a("v_lshl_add_u32 v20, v10, 4, v9")
    a("v_lshl_add_u32 v20, v6, 8, v20")
    a("s_lshl_b32 s22, s48, 9")
    a("v_add_u32 v20, s22, v20")
    a("v_lshl_add_u32 v21, v10, 3, v9")
    a("s_lshl_b32 s22, s48, 7")
    a(f"s_add_u32 s22, s22, {16*K}")
    a("v_add_u32 v21, s22, v21")
    a(f"s_mul_i32 s38, s27, {2*20*K}")
    a(f"s_mul_i32 s22, s49, {SCR_STRIDE}")
    a("s_add_u32 s38, s38, s22")
    a(f"s_add_u32 s38, s38, {SCR + R_O}")
    for r in range(16, 20):
        a(f"v_mov_b32 {v(r)}, 0")

    def sbase(j):
        return ((j // 4) % 3) * 20480 + (j % 4) * 5120

    def readK(j):
        if j % 2 == 0 or j == 1:
            a(f"ds_read_b64 {v(K4,2)}, v3 offset:{sbase(j & ~1)}")
        a(f"ds_read_b128 {v(K16,4)}, v11 offset:{sbase(j)}")

    def readV(j):
        a("s_mov_b64 exec, s[40:41]")
        for u in range(2):
            a(f"ds_read_b128 {v(VB+8*(j & 1)+4*u,4)}, v4 offset:{sbase(j)+640*u}")
        a("s_mov_b64 exec, -1")

    def qk2b(Y, j, C="0"):
        a(f"v_mfma_f32_32x32x4_2b_bf16 {v(Y,32)}, {v(K4,2)}, {v(Q4,2)}, {C} cbsz:1 abid:{j & 1}")

    def qk16(Y, t):
        a(f"v_mfma_f32_32x32x16_bf16 {v(Y+16*t,16)}, {v(K16,4)}, {v(QA+4*t,4)}, {v(Y+16*t,16)}")

    def pv(j, X, u):
        a(f"v_smfmac_f32_32x32x32_bf16 {v(O0+16*(u >> 1),16)}, {v(VB+8*(j & 1)+4*(u & 1),4)}, {v(X+8*u,8)}, {v(IDX)}")

    def w1_item(L, c, reg):
        def f():
            a(f"s_add_u32 s24, s39, {W1T + c*12*K}")
            for jj in range(3):
                a(f"buffer_load_dwordx4 {v(reg+4*jj,4)}, v2, {WSR}, s24 offen offset:{jj*K}")
                L.other("w1")
        return f

    def main(role):
        L = LB if role else LA
        sched = {}

        def at(j, slot, f, kind=None):
            if kind and OPT.get("dbg_no" + kind, 0):
                return
            sched.setdefault((j, slot), []).append(f)

        if role:
            at(-1, 0, lambda: pair(L, "p1", 1, [0, 1, 2]))
            at(-1, 1, lambda: pair(L, "p2", 2, [0, 1, 2]))
            at(0, 1, lambda: pair(L, "p3", 3, [0, 1, 2]))
            at(1, 0, steady)
            at(1, 0, lambda: L.dma(("c", 2), 3, RB + 2 * 20480, 31, 4 * DOM_STRIDE, 30))
            at(1, 1, lambda: L.dma(("c", 2), 2, RB + 2 * 20480, 31, 4 * DOM_STRIDE, 30, 3))
            for c in range(3, 8):
                j = 4 * (c - 2) - 2
                at(j, 1, lambda c=c: L.dma(("c", c), 3, RB + (c % 3) * 20480, 31, 2 * c * DOM_STRIDE, 30))
                at(j + 1, 0, lambda c=c: L.dma(("c", c), 2, RB + (c % 3) * 20480, 31, 2 * c * DOM_STRIDE, 30, 3))
            j0 = OPT.get("w1s", 4)
            steps = [j for j in range(j0, 30) if j % 4 in (0, 1)]
            for n in range(8):
                at(steps[n], 0, w1_item(L, 2 + n, STG + 12 * n), 'w1')

            def consts():
                a(f"s_and_b32 s22, {s(S_I)}, 15")
                a("s_mul_i32 s24, s22, 768")
                a(f"s_add_u32 s24, s24, {CS1}")
                a(f"s_mov_b32 m0, {C1_LDS}")
                a("s_mov_b32 exec_hi, 0xffff")
                a(f"buffer_load_dwordx4 v2, {WSR}, s24 offen lds")
                a("s_lshl_b32 s24, s22, 9")
                a(f"s_add_u32 s24, s24, {CSQ}")
                a(f"s_mov_b32 m0, {CQ_LDS}")
                a("s_mov_b32 exec_hi, 0")
                a(f"buffer_load_dwordx4 v2, {WSR}, s24 offen lds")
                a("s_mov_b64 exec, -1")
                L.other("k")
                L.other("k")
            at(27, 0, consts)
        else:
            def wo_setup():
                a("s_mul_i32 s30, s29, 5120")
                a(f"s_and_b32 s32, {s(S_I)}, 7")
                a(f"s_mul_i32 s32, s32, {100*K}")
                a("s_add_u32 s32, s32, s30")
                a(f"s_lshl_b32 s42, {s(S_I)}, 2")
                a("s_add_u32 s42, s42, s29")
                a("s_lshl_b32 s44, s42, 7")
                a(f"s_add_u32 s44, s44, {s(S_SCR)}")
                a(f"s_add_u32 s44, s44, {R_ST}")
                a(f"s_lshl_b32 s22, {s(S_X)}, 7")
                a("s_add_u32 s42, s42, s22")
                a("s_mul_i32 s42, s42, 2560")
                a(f"s_lshl_b32 s22, {s(S_L)}, 31")
                a("s_or_b32 s42, s42, s22")
                a("s_or_b32 s44, s44, s22")
            at(0, 0, wo_setup)
            if OPT.get("cpf", 1):
                def cp():
                    lab = a.label("ncp")
                    a(f"s_cmp_lg_u32 {s(S_W)}, 3")
                    a(f"s_cbranch_scc1 {lab}")
                    code_prefetch(a, S_I, 31, 28)
                    a(f"{lab}:")
                at(OPT.get("cpfs", 24), 1, cp)
            j0 = OPT.get("wos", 1)
            for c in range(5):
                at(j0 + 2 * c, 0, lambda c=c: L.dma("wo", 2, c * 20480, 32, WOT + c * 20480, 30))
                at(j0 + 2 * c, 1, lambda c=c: L.dma("wo", 1, c * 20480, 32, WOT + c * 20480, 30, 2))
                at(j0 + 2 * c + 1, 0, lambda c=c: L.dma("wo", 2, c * 20480, 32, WOT + c * 20480, 30, 3))
            if OPT.get("warm", 1):
                for n in range(4):
                    def z(n=n):
                        if n >= 2:
                            a("s_mov_b64 exec, 0xff" if n == 3 else "s_mov_b32 exec_hi, 0")
                        if n < 3:
                            a(f"buffer_store_dwordx4 v[16:19], v2, {XSR}, s42 offen offset:{n*K} sc1")
                        else:
                            a(f"buffer_store_dwordx4 v[16:19], v2, {WSR}, s44 offen sc1")
                        if n >= 2:
                            a("s_mov_b64 exec, -1")
                        L.other("z")
                    at(OPT.get("zs", 6) + 2 * n, 1, z)
            at(12, 0, w1_item(L, 0, STA))
            at(14, 0, w1_item(L, 1, STA + 12))

            def resid():
                l1 = a.label("res1")
                lj = a.label("resj")
                a(f"s_cmp_lg_u32 {s(S_L)}, 0")
                a(f"s_cbranch_scc1 {l1}")
                for t in range(5):
                    a(f"buffer_load_dwordx2 {v(RESL+2*t,2)}, v233, s[8:11], s47 offen offset:{t*32}")
                a(f"s_branch {lj}")
                a(f"{l1}:")
                for t in range(5):
                    a(f"s_add_u32 s24, s46, {t*K}")
                    a(f"buffer_load_dwordx2 {v(RESL+2*t,2)}, v232, {XSR}, s24 offen")
                a(f"{lj}:")
                for t in range(5):
                    L.other("r")
            at(16, 0, resid)

            def tflag():
                a("v_lshrrev_b32 v31, 2, v0")
                a("v_lshlrev_b32 v31, 13, v31")
                a("v_and_b32 v27, 3, v0")
                a("v_lshl_add_u32 v31, v27, 7, v31")
                a(f"s_lshl_b32 s24, {s(S_X)}, 9")
                a(f"s_add_u32 s24, s24, {s(S_CNT)}")
                a(f"s_add_u32 s24, s24, {8192 + FLG}")
                a("s_mov_b64 exec, 0xfff")
                a(f"buffer_load_dword v28, v31, {WSR}, s24 offen sc1")
                a("s_mov_b64 exec, -1")
                L.other("pf")
            if OPT.get("tflag", 1):
                at(29, 0, tflag)
            g16_addr(a, 232, 233, 45, 46, 47)
            for n, f in enumerate(touch_items(a, L, W2T, 1966080, None, 12, 29, 43)):
                at(OPT.get("w2s", 18) + n, 0, f, 'w2')

        if OPT.get("warm", 1):
            def zo():
                a(f"s_lshl_b32 s24, {s(S_L)}, 31")
                a("s_or_b32 s24, s24, s38")
                a(f"buffer_store_dwordx4 v[16:19], v20, {WSR}, s24 offen sc1")
                a(f"buffer_store_dwordx2 v[16:17], v21, {WSR}, s24 offen sc1")
                L.other("zo")
                L.other("zo")
            at(3, 1, zo)

        def run(j, slot):
            for f in sched.pop((j, slot), []):
                f()

        L.wait("q")
        stamp(a, "P0")
        a("s_barrier")
        stamp(a, "P0b")
        readK(0)
        readV(0)
        run(-1, 0)
        a("s_waitcnt lgkmcnt(2)")
        qk2b(SX, 0)
        a.nop(18)
        qk16(SX, 0)
        qk16(SX, 1)
        if role:
            L.wait("p0b")
        a("s_barrier")
        readK(1)
        run(-1, 1)
        a.nop(9)
        for j in range(32):
            X, Y = (SX, SY) if j % 2 == 0 else (SY, SX)
            e = [0]
            flip = 16 if j == 31 else 0

            def E(n):
                for _ in range(n):
                    r = X + (e[0] ^ flip)
                    a(f"v_exp_f32 {v(r)}, {v(r)}")
                    e[0] += 1

            if j >= 7:
                a(f"s_setprio {3 - ((j+1) % 4)}")
            else:
                a(f"s_setprio {j % 2}")
            nxt = j < 31
            E(2)
            if j > 0:
                pv(j - 1, Y, 3)
            E(1)
            if nxt:
                readV(j + 1)
            E(2)
            if nxt:
                a("s_waitcnt lgkmcnt(2)")
                qk2b(Y, j + 1)
            E(8)
            if not nxt:
                a("s_waitcnt lgkmcnt(0)")
            pv(j, X, 0 if nxt else 2)
            E(1)
            run(j, 0)
            E(4)
            pv(j, X, 1 if nxt else 3)
            E(3)
            if nxt:
                qk16(Y, 1 if j == 30 else 0)
            E(3)
            if nxt:
                qk16(Y, 0 if j == 30 else 1)
            E(1)
            if j + 2 < 32:
                tag = {0: "p1", 2: "p2", 4: "p3"}.get(j)
                if tag is None and (j + 2) % 4 == 0:
                    tag = ("c", (j + 2) // 4)
                if tag is not None:
                    if role:
                        L.wait(tag)
                    elif j == 22 and OPT.get("warm", 1):
                        L.wait("z")
                    if (j + 2) % 4 == 0:
                        a("s_waitcnt lgkmcnt(0)")
                    a("s_barrier")
                    stamp(a, f"B{(j+2)//4}" if (j + 2) % 4 == 0 else f"b{j}")
                    if j == 22 and not role:
                        publish_xcc(a)
                    if j == 26 and role:
                        a(f"v_mov_b32 v8, {SYNC_LDS}")
                        a("ds_write_b64 v8, v[16:17]")
                        a("s_waitcnt lgkmcnt(0)")
                readK(j + 2)
            run(j, 1)
            if j == 29:
                purity_load(a)
            E(2)
            pv(j, X, 2 if nxt else 0)
            if nxt:
                E(5)
            else:
                E(3)
                for t in range(3):
                    a(f"ds_write_b128 v12, {v(O1+4*t,4)} offset:{t*K}")
                E(2)
            assert e[0] == 32
        assert not sched, sched.keys()
        a(f"v_cmp_nle_f32 vcc, {fhex(2.0**-64)}, {v(O1+8)}")
        a(f"v_cmp_nle_f32 s[36:37], {v(O1+8)}, v25")
        pv(31, SY, 1)
        a("s_setprio 0")
        stamp(a, "attend")

    red = a.label("red")
    rb = a.label("roleb")
    a(f"s_cmp_ge_u32 {s(S_W)}, 4")
    a(f"s_cbranch_scc1 {rb}")
    main(0)
    a(f"s_branch {red}")
    a(f"{rb}:")
    main(1)
    a(f"{red}:")
    a("s_or_b32 s35, vcc_hi, s37")
    a("s_waitcnt vmcnt(0)")
    purity_check(a)
    a.nop(3)
    a(f"v_cmp_nle_f32 vcc, {fhex(2.0**-64)}, {v(O0+8)}")
    a(f"v_cmp_nle_f32 s[36:37], {v(O0+8)}, v25")
    a("s_or_b32 s35, s35, vcc_hi")
    a("s_or_b32 s35, s35, s37")
    a("v_mov_b32 v8, s35")
    a("ds_write_b32 v23, v8")
    a("s_waitcnt lgkmcnt(0)")
    stamp(a, "preRa")
    a("s_barrier")
    stamp(a, "Ra")
    a("ds_read_b32 v8, v24")
    for t in (2, 0, 1):
        a(f"ds_read_b128 {v(O1+4*t,4)}, v13 offset:{t*K}")
    epi = a.label("epi")
    slow = a.label("slow")
    a("s_waitcnt lgkmcnt(3)")
    a("v_cmp_ne_u32 vcc, 0, v8")
    a(f"s_cbranch_vccnz {slow}")
    a(f"{epi}:")
    a("s_waitcnt lgkmcnt(2)")
    for p in (4, 5):
        a(f"v_pk_add_f32 {v(O0+2*p,2)}, {v(O0+2*p,2)}, {v(O1+2*p,2)}")
    a(f"v_mov_b32 v8, {v(O0+8)}")
    a(f"v_mov_b32 v10, {v(O0+8)}")
    a("s_waitcnt lgkmcnt(0)")
    for p in range(2):
        a(f"v_pk_add_f32 {v(O0+2*p,2)}, {v(O0+2*p,2)}, {v(O1+2*p,2)}")
    a("v_permlane32_swap_b32 v8, v10")
    a("v_rcp_f32 v10, v10")
    for p in range(2, 4):
        a(f"v_pk_add_f32 {v(O0+2*p,2)}, {v(O0+2*p,2)}, {v(O1+2*p,2)}")
    for p in range(6):
        a(f"v_pk_mul_f32 {v(O0+2*p,2)}, {v(O0+2*p,2)}, v[10:11] op_sel_hi:[1,0]")
    for p in range(6):
        a(f"v_cvt_pk_bf16_f32 {v(O0+p)}, {v(O0+2*p)}, {v(O0+2*p+1)}")
    a(f"buffer_store_dwordx4 {v(O0,4)}, v20, {WSR}, s38 offen sc1")
    a("s_mov_b32 exec_hi, 0")
    a(f"buffer_store_dwordx2 {v(O0+4,2)}, v21, {WSR}, s38 offen sc1")
    a("s_mov_b64 exec, -1")

    def slow_path():
        a(f"{slow}:")
        a("s_cmp_lg_u32 s34, 0")
        a(f"s_cbranch_scc1 {epi}")
        a("s_mov_b32 s34, 1")
        a("v_mov_b32 v14, 0xff800000")
        a("v_mov_b32 v15, 0xff800000")
        a("v_lshlrev_b32 v16, 3, v0")
        a("s_mov_b32 s36, s26")
        a("s_mov_b32 s37, 32")
        lp = a.label("maxloop")
        a(f"{lp}:")
        a(f"buffer_load_dwordx2 {v(K4,2)}, v16, {WSR}, s36 offen offset:2048")
        for kt in range(2):
            a(f"buffer_load_dwordx4 {v(K16,4)}, v2, {WSR}, s36 offen offset:{kt*K}")
            a("s_waitcnt vmcnt(0)")
            qk2b(SX, kt)
            a.nop(18)
            qk16(SX, 0)
            qk16(SX, 1)
            a.nop(12)
            for j in range(8):
                a(f"v_max3_f32 v14, {v(SX+2*j)}, {v(SX+2*j+1)}, v14")
                a(f"v_max3_f32 v15, {v(SX+16+2*j)}, {v(SX+16+2*j+1)}, v15")
        a("s_bitcmp1_b32 s37, 0")
        a(f"s_cselect_b32 s22, {DOM_STRIDE - 10240}, 0")
        a("s_add_u32 s36, s36, s22")
        a("s_add_u32 s36, s36, 5120")
        a("s_sub_u32 s37, s37, 1")
        a("s_cmp_lg_u32 s37, 0")
        a(f"s_cbranch_scc1 {lp}")
        for r in (14, 15):
            a(f"v_mov_b32 v16, {v(r)}")
            a.nop(2)
            a(f"v_permlane32_swap_b32 {v(r)}, v16")
            a(f"v_max_f32 {v(r)}, {v(r)}, v16")
        a("s_waitcnt lgkmcnt(0)")
        for j in range(32):
            a(f"v_sub_f32 {v(SY+j)}, 0, {v(14 + j//16)}")
            a(f"v_mov_b32 {v(O0+j)}, 0")
        a(f"v_subrev_u32 v14, {RB}, v11")
        a(f"v_subrev_u32 v15, {RB}, v4")
        a("s_lshl_b32 s22, s33, 8")
        a("v_lshlrev_b32 v16, 3, v5")
        a("v_add_u32 v16, s22, v16")
        a("s_mov_b32 s36, s26")
        a("s_mov_b32 s37, 32")
        lp = a.label("pass2")
        a(f"{lp}:")
        a(f"buffer_load_dwordx2 {v(K4,2)}, v16, {WSR}, s36 offen offset:2048")
        a(f"buffer_load_dwordx4 {v(K16,4)}, v14, {WSR}, s36 offen")
        a("s_mov_b64 exec, s[40:41]")
        a(f"buffer_load_dwordx4 {v(VB,4)}, v15, {WSR}, s36 offen")
        a(f"buffer_load_dwordx4 {v(VB+4,4)}, v15, {WSR}, s36 offen offset:640")
        a("s_mov_b64 exec, -1")
        a("s_waitcnt vmcnt(0)")
        qk2b(SX, 0, v(SY, 32))
        a.nop(18)
        qk16(SX, 0)
        qk16(SX, 1)
        a.nop(12)
        for j in range(32):
            a(f"v_exp_f32 {v(SX+j)}, {v(SX+j)}")
        a.nop(2)
        for u in range(4):
            pv(0, SX, u)
        a("s_bitcmp1_b32 s37, 0")
        a(f"s_cselect_b32 s22, {DOM_STRIDE - 10240}, 0")
        a("s_add_u32 s36, s36, s22")
        a("s_add_u32 s36, s36, 5120")
        a("s_sub_u32 s37, s37, 1")
        a("s_cmp_lg_u32 s37, 0")
        a(f"s_cbranch_scc1 {lp}")
        a.nop(12)
        a("s_barrier")
        for t in range(3):
            a(f"ds_write_b128 v12, {v(O1+4*t,4)} offset:{t*K}")
        a(f"s_branch {red}")
    return slow_path


class Dumper:
    def __init__(self, a, s_part):
        self.a = a
        self.s_part = s_part
        self.m0 = None

    def reset(self):
        self.m0 = None

    def __call__(self, reg, addr):
        a = self.a
        if addr + K > 49152 + 65536:
            for r in range(4):
                a(f"ds_write_b32 v12, {v(reg+r)} offset:{addr - 65536 + 256*r}")
            return
        base = 0 if addr + K <= 65536 else 49152
        if self.m0 != base:
            a(f"s_add_u32 m0, {s(self.s_part)}, {base}")
            a("s_nop 0")
            self.m0 = base
        for r in range(4):
            a(f"ds_write_addtid_b32 {v(reg+r)} offset:{addr - base + 256*r}")


def g16_addr(a, vx, vr, s_tb, s_x, s_rm):
    a(f"s_lshr_b32 s22, {s(S_I)}, 3")
    a("s_lshl_b32 s22, s22, 2")
    a(f"s_and_b32 s23, {s(S_W)}, 1")
    a("s_lshl_b32 s23, s23, 1")
    a("s_add_u32 s22, s22, s23")
    a(f"s_lshr_b32 s23, {s(S_W)}, 1")
    a(f"s_add_u32 {s(s_tb)}, s22, s23")
    a(f"s_lshr_b32 {s(s_x)}, {s(s_tb)}, 1")
    a(f"s_mul_i32 {s(s_x)}, {s(s_x)}, {40*K}")
    a(f"s_and_b32 s22, {s(s_tb)}, 1")
    a("s_lshl_b32 s22, s22, 8")
    a(f"s_add_u32 {s(s_x)}, {s(s_x)}, s22")
    a(f"s_and_b32 s23, {s(S_I)}, 7")
    a(f"s_mul_i32 s22, s23, {5*K}")
    a(f"s_add_u32 {s(s_x)}, {s(s_x)}, s22")
    a(f"s_mul_i32 s22, {s(S_X)}, {320*K}")
    a(f"s_add_u32 {s(s_x)}, {s(s_x)}, s22")
    a(f"s_lshl_b32 {s(s_rm)}, {s(S_X)}, 4")
    a(f"s_add_u32 {s(s_rm)}, {s(s_rm)}, {s(s_tb)}")
    a(f"s_mul_i32 {s(s_rm)}, {s(s_rm)}, {16*1280}")
    a("s_mul_i32 s22, s23, 160")
    a(f"s_add_u32 {s(s_rm)}, {s(s_rm)}, s22")
    a("v_and_b32 v234, 15, v0")
    a("v_lshrrev_b32 v235, 4, v0")
    a("v_lshrrev_b32 v236, 5, v0")
    a("v_lshlrev_b32 v236, 9, v236")
    a(f"v_lshl_add_u32 {v(vx)}, v234, 4, v236")
    a("v_and_b32 v236, 1, v235")
    a(f"v_lshl_add_u32 {v(vx)}, v236, 3, {v(vx)}")
    a(f"v_mul_u32_u24 {v(vr)}, 1280, v234")
    a(f"v_lshl_add_u32 {v(vr)}, v235, 3, {v(vr)}")


G_ACC = 64
G_WB = 128
G_AW = 160
G_NW = 14
G_CR = 216
RES = 112
WQ_ADDR = [c * 16 * K for c in range(6)] + [120 * K, 136 * K, 100 * K, 0]
QKV_SCR = 152 * K


class Rec:
    def __init__(self):
        self.l = []

    def __call__(self, t):
        self.l.append(t)

    def nop(self, n):
        self.l.append(f"s_nop {n-1}")


def gemm32_main(a, NT, addr, bars, swap, s_act, s_st, ld, fill, WB=G_WB, tail=None):
    UP = OPT.get("up1", 8) if NT == 3 else OPT.get("upq", 12)
    loads = []
    ops = []
    WS_ = 4 * NT

    def act_load():
        k = len(loads)
        if k % 4 == 0:
            a(f"s_add_u32 s25, {s(s_act)}, {k*K}")
        a(f"buffer_load_dwordx4 {v(G_AW + 4*(k % G_NW), 4)}, v2, {XSR}, s25 offen offset:{(k % 4)*K} {ld}")
        loads.append(k)
        ops.append(k)

    lds = []

    def wread(k, t):
        off = addr[k // 4] + ((k % 4) * NT + t) * K
        a(f"ds_read_b128 {v(WB + WS_*(k & 1) + 4*t, 4)}, {v(2 + off // 65536)} offset:{off % 65536}")
        lds.append((k, t))

    for k in range(UP):
        if k in (0, 2, 4, 7):
            a(f"s_setprio {3 - (0, 2, 4, 7).index(k)}")
        act_load()
    a("s_setprio 0")
    a(f"buffer_load_dwordx4 v[8:11], v7, {WSR}, {s(s_st)} offen {ld}")
    a(f"buffer_load_dwordx4 v[12:15], v7, {WSR}, {s(s_st)} offen offset:16 {ld}")
    ops += ["s", "s"]
    assert 0 in bars
    a("s_barrier")
    for t in range(NT):
        wread(0, t)
    fill = list(fill)
    if OPT.get("nofill", 0):
        post = fill
        fill = []
    per = -(-len(fill) // (NT * (37 - UP)))
    for k in range(40):
        last = (k == 39)
        bar = (k % 4 == 3) and not last and ((k + 1) // 4 in bars)
        for t in range(NT):
            nl = min(15, len(lds) - 1 - lds.index((k, t)))
            if t == 0:
                a(f"s_waitcnt vmcnt({len(ops)-1-ops.index(k)}) lgkmcnt({nl})")
            else:
                a(f"s_waitcnt lgkmcnt({nl})")
            A_ = v(WB + WS_ * (k & 1) + 4 * t, 4)
            B_ = v(G_AW + 4 * (k % G_NW), 4)
            if swap:
                A_, B_ = B_, A_
            D_ = v(G_ACC + 16 * t, 16)
            a(f"v_mfma_f32_32x32x16_bf16 {D_}, {A_}, {B_}, {D_ if k else 0}")
            if not last:
                if bar and t == 0:
                    a("s_barrier")
                wread(k + 1, t)
            n = len(loads)
            rp = OPT.get("ramp32", 0)
            if n < 40 and ((t == NT - 1 and n - k <= G_NW) or (rp and t == 0 and n - k < G_NW and k % rp == 0)):
                act_load()
            if k >= UP or (fill and fill[0].startswith("ds_read") and k >= 1):
                for _ in range(per if k >= UP else 1):
                    if fill:
                        x = fill.pop(0)
                        a(x)
                        if x.startswith("ds_"):
                            lds.append("f")
            if last and t == 0 and tail:
                tail()
            if t == 0 and k % 4 == 0:
                stamp(a, f"g{NT}k{k}")
    assert not fill
    if OPT.get("nofill", 0):
        for x in post:
            a(x)
            if x.startswith("ds_"):
                a("s_waitcnt lgkmcnt(0)")


def g32_common(a, X, STAT):
    a(f"s_lshl_b32 s29, {s(S_DOM)}, 2")
    a(f"s_add_u32 s29, s29, {s(S_W)}")
    a("v_lshlrev_b32 v2, 4, v0")
    a("v_and_b32 v5, 31, v0")
    a("v_lshrrev_b32 v6, 5, v0")
    if X is None:
        return
    a("s_and_b32 s28, s29, 7")
    a(f"s_mul_i32 s30, s29, {40*K}")
    a("v_add_u32 v3, 0x10000, v2")
    a("v_add_u32 v4, 0x20000, v2")
    a("v_lshlrev_b32 v7, 6, v5")
    a("v_lshl_add_u32 v7, v6, 5, v7")
    a("s_lshl_b32 s31, s28, 11")
    a(f"s_add_u32 s31, s31, {s(S_SCR)}")
    a(f"s_add_u32 s31, s31, {STAT}")


MLP1_BARS = {0, 3, 6}
QKV_BARS = set(range(10))
MLP2_BARS = {0, 2, 4, 6, 8, 10}


def mlp1_compute(a):
    g32_common(a, 0, R_ST)
    a(f"s_and_b32 s27, {s(S_I)}, 15")
    a("v_lshlrev_b32 v16, 4, v6")
    a(f"v_add_u32 v16, {C1_LDS}, v16")
    CSR = [20 + 4 * (i % 6) for i in range(12)]
    BR = [216 + 4 * i for i in range(10)] + [152, 156]
    BIAS2 = 52
    a("v_lshrrev_b32 v62, 4, v0")
    a("v_lshlrev_b32 v62, 3, v62")
    a(f"s_and_b32 s33, {s(S_I)}, 7")
    a("s_mul_i32 s33, s33, 160")
    a("v_lshrrev_b32 v17, 4, v5")
    a(f"v_mul_u32_u24 v17, {48*K}, v17")
    a("v_and_b32 v18, 15, v5")
    a("v_lshl_add_u32 v17, v18, 4, v17")
    a("v_lshl_add_u32 v17, v6, 8, v17")
    a(f"s_mul_i32 s34, {s(S_W)}, {2*48*K}")
    a(f"s_mul_i32 s35, s27, {3*K}")
    a("s_add_u32 s34, s34, s35")
    a(f"s_mul_i32 s35, {s(S_DOM)}, {DOM_STRIDE}")
    a("s_add_u32 s34, s34, s35")
    a(f"s_add_u32 s34, s34, {KVQ}")
    k0 = -2.0 * math.sqrt(2.0 / math.pi) * math.log2(math.e)
    a(f"s_mov_b32 s36, {fhex(k0)}")
    a(f"s_mov_b32 s37, {fhex(k0)}")
    a(f"v_mov_b32 v18, {fhex(k0*0.044715)}")
    f = Rec()
    for j in range(12):
        f(f"ds_read_b128 {v(BR[j],4)}, v16 offset:{384 + (j//4)*128 + (j%4)*32}")
    for j in range(6):
        f(f"ds_read_b128 {v(CSR[j],4)}, v16 offset:{(j//4)*128 + (j%4)*32}")
    ln_stats(f, 8, True)
    f("v_mul_f32 v8, v8, v9")
    f("v_mov_b32 v10, v9")
    for j in range(12):
        for e in range(4):
            f(f"v_fma_f32 {v(BR[j]+e)}, -v8, {v(CSR[j]+e)}, {v(BR[j]+e)}")
        if j < 6:
            f(f"ds_read_b128 {v(CSR[j],4)}, v16 offset:{((j+6)//4)*128 + ((j+6)%4)*32}")

    def tail():
        for t in range(5):
            a(f"buffer_load_dwordx2 {v(BIAS2+2*t,2)}, v62, s[16:19], s33 offen offset:{t*32}")
    stamp(a, "preS3")
    wait_sync(a, 1, 28)
    stamp(a, "S3")
    gemm32_main(a, 3, W1_ADDR, MLP1_BARS, False, 30, 31, LD, f.l, tail=tail)
    stamp(a, "preE1")
    a("s_barrier")
    stamp(a, "E1")
    a.nop(8)
    TS = [20, 28, 36]
    stages = []
    for g in range(6):
        r = G_ACC + 8 * g
        T = TS[g % 3]
        A_, B_, C_ = [], [], []
        for p in range(4):
            b = BR[2 * g + p // 2] + 2 * (p % 2)
            A_.append(f"v_pk_fma_f32 {v(r+2*p,2)}, {v(r+2*p,2)}, v[10:11], {v(b,2)} op_sel_hi:[1,0,1]")
        for p in range(4):
            A_.append(f"v_pk_mul_f32 {v(T+2*p,2)}, {v(r+2*p,2)}, {v(r+2*p,2)}")
        for p in range(4):
            A_.append(f"v_pk_fma_f32 {v(T+2*p,2)}, {v(T+2*p,2)}, v[18:19], s[36:37] op_sel_hi:[1,0,1]")
        for p in range(4):
            A_.append(f"v_pk_mul_f32 {v(T+2*p,2)}, {v(T+2*p,2)}, {v(r+2*p,2)}")
        for e in range(8):
            A_.append(f"v_exp_f32 {v(T+e)}, {v(T+e)}")
        for p in range(4):
            B_.append(f"v_pk_add_f32 {v(T+2*p,2)}, {v(T+2*p,2)}, 1.0 op_sel_hi:[1,0]")
        for e in range(8):
            B_.append(f"v_rcp_f32 {v(T+e)}, {v(T+e)}")
        for p in range(4):
            C_.append(f"v_pk_mul_f32 {v(r+2*p,2)}, {v(r+2*p,2)}, {v(T+2*p,2)}")
        for p in range(4):
            C_.append(f"v_cvt_pk_bf16_f32 {v(r+p)}, {v(r+2*p)}, {v(r+2*p+1)}")
        C_.append(f"buffer_store_dwordx4 {v(r,4)}, v17, {WSR}, s34 offen offset:{(g//2)*K + (g%2)*512} {'sc1' if OPT.get('hsc1', 1) else ''}")
        stages.append((A_, B_, C_))
    for g in range(6):
        for part in stages[g]:
            for x in part:
                a(x)


def qkv_compute(a, X, STAT, KVO, QO, addr, bars, sync, ld, fin, first=False):
    g32_common(a, X, STAT)
    if first:
        k1_prologue(a)
    CL = K1_CS if first else CQ_LDS
    a(f"s_lshr_b32 s33, {s(S_W)}, 1")
    a(f"s_mul_i32 s32, {s(S_DOM)}, {DOM_STRIDE}")
    a(f"s_add_u32 s32, s32, {KVQ + (16*DOM_STRIDE if OPT.get('kvsep', 0) and not first else 0)}")
    a("s_and_b32 s34, s29, 1")
    vpath = a.label("vpath")
    a("s_cmp_ge_u32 s27, 10")
    a(f"s_cbranch_scc1 {vpath}")
    CR = [216 + 4 * i for i in range(10)] + [48, 52, 56, 60, 24, 28]
    if first:
        CR = [188 + 4 * i for i in range(16)]
    a("v_lshlrev_b32 v16, 4, v6")
    a(f"v_add_u32 v16, {CL}, v16")
    crd = [f"ds_read_b128 {v(CR[i],4)}, v16 offset:{(i//4)*128 + (i%4)*32}" for i in range(16)]
    a("s_cmp_ge_u32 s27, 5")
    a("s_cselect_b32 s35, 5, 0")
    a("s_sub_u32 s35, s27, s35")
    a("s_movk_i32 s36, 5120")
    a(f"s_add_u32 s38, s32, {R_Q}")
    a("s_cmp_ge_u32 s27, 5")
    a("s_cselect_b32 s36, 10240, s36")
    a("s_cselect_b32 s37, s32, s38")
    a(f"s_cselect_b32 s39, 1.0, {fhex(QSCALE)}")
    a("v_and_b32 v17, 0x13, v5")
    a("v_and_b32 v18, 4, v5")
    a("v_lshl_or_b32 v17, v18, 1, v17")
    a("v_and_b32 v18, 8, v5")
    a("v_lshrrev_b32 v18, 1, v18")
    a("v_or_b32 v17, v17, v18")
    a("s_cselect_b32 s40, -1, 0")
    a("s_cselect_b32 s41, -1, 0")
    a("v_cndmask_b32 v17, v5, v17, s[40:41]")
    a("s_mul_i32 s42, s33, 5120")
    a("s_lshl_b32 s43, s34, 10")
    a("s_add_u32 s43, s43, s42")
    a("s_lshl_b32 s44, s34, 8")
    a("s_add_u32 s44, s44, s42")
    a("s_add_u32 s44, s44, 1024")
    a(f"s_mul_i32 s45, {s(S_W)}, 1280")
    a("s_cmp_ge_u32 s27, 5")
    a("s_cselect_b32 s43, s43, s45")
    a("s_cselect_b32 s44, s44, s45")
    a("v_lshlrev_b32 v18, 4, v17")
    a("v_add_u32 v18, s43, v18")
    a("v_lshlrev_b32 v19, 3, v17")
    a("v_add_u32 v19, s44, v19")
    a("s_lshl_b32 s46, s35, 5")
    a("s_mov_b32 s47, 52429")
    a("v_add_u32 v17, s46, v6")
    a("s_lshl_b32 s48, s36, 1")
    a("s_add_u32 s40, s37, s48")
    a("s_add_u32 s41, s40, s48")
    a("s_add_u32 s42, s41, s48")
    SO = [37, 40, 41, 42]
    ad = a
    for i in range(5):
        ad(f"v_add_u32 v20, {2*i}, v17")
        ad("v_mul_u32_u24 v21, s47, v20")
        ad("v_lshrrev_b32 v21, 18, v21")
        ad("v_mul_u32_u24 v22, 5, v21")
        ad("v_sub_u32 v22, v20, v22")
        ad("v_cmp_eq_u32 vcc, 4, v22")
        ad("v_mul_u32_u24 v21, s36, v21")
        ad("v_lshrrev_b32 v23, 1, v22")
        ad("v_cndmask_b32 v20, v18, v19, vcc")
        ad("v_lshl_add_u32 v21, v23, 9, v21")
        ad("v_and_b32 v22, 1, v22")
        ad("v_lshl_add_u32 v21, v22, 3, v21")
        ad(f"v_add_u32 {v(32+i)}, v21, v20")
    f = Rec()
    ln_stats(f, 8, False)
    f("v_mul_f32 v10, s39, v9")
    f("v_mul_f32 v8, v8, v10")
    for i in range(16):
        for e in range(4):
            f(f"v_mul_f32 {v(CR[i]+e)}, -v8, {v(CR[i]+e)}")
    if first:
        sync()
        k1_main(a, False)
        for x in crd + f.l[:-64]:
            a(x)
        a("v_sub_f32 v8, 0, v8")
        a("s_waitcnt lgkmcnt(0)")
        for i in range(16):
            for p in range(2):
                a(f"v_pk_mul_f32 {v(CR[i]+2*p,2)}, {v(CR[i]+2*p,2)}, v[8:9] op_sel_hi:[1,0]")
    else:
        sync()
        gemm32_main(a, 4, addr, bars, False, 30, 31, ld, crd + f.l)
        a.nop(8)
    stamp(a, "qkvmain")
    for i in range(16):
        r = G_ACC + 4 * i
        for p in range(2):
            a(f"v_pk_fma_f32 {v(r+2*p,2)}, {v(r+2*p,2)}, v[10:11], {v(CR[i]+2*p,2)} op_sel_hi:[1,0,1]")
        a(f"v_cvt_pk_bf16_f32 {v(r)}, {v(r)}, {v(r+1)}")
        a(f"v_cvt_pk_bf16_f32 {v(r+1)}, {v(r+2)}, {v(r+3)}")
        a(f"buffer_store_dwordx2 {v(r,2)}, {v(32 + i % 5)}, {WSR}, {s(SO[i // 5])} offen")
    a(f"s_branch {fin}")
    a(f"{vpath}:")
    CV = 40
    RR = 216
    a("v_lshlrev_b32 v16, 2, v5")
    a(f"v_add_u32 v23, {CL}, v16")
    a("s_sub_u32 s35, s27, 10")
    a("s_lshl_b32 s46, s35, 7")
    a("s_mul_i32 s42, s33, 5120")
    a("s_mul_i32 s43, s34, 1280")
    a("s_add_u32 s42, s42, s43")
    a("s_add_u32 s42, s42, s32")
    a("s_add_u32 s42, s42, 2560")
    a("s_mov_b32 s47, 52429")
    a("s_movk_i32 s36, 10240")
    a("v_mul_u32_u24 v17, 320, v6")
    for t in range(4):
        a(f"s_add_u32 s48, s46, {32*t}")
        a("v_add_u32 v20, s48, v5")
        a("v_mul_u32_u24 v21, s47, v20")
        a("v_lshrrev_b32 v21, 20, v21")
        a("v_mul_u32_u24 v22, 20, v21")
        a("v_sub_u32 v22, v20, v22")
        a("v_mul_u32_u24 v21, s36, v21")
        a("v_lshl_add_u32 v21, v22, 4, v21")
        a(f"v_add_u32 {v(32+t)}, v21, v17")
    a(f"s_lshl_b32 s49, {s(S_W)}, 8")
    a(f"s_add_u32 s49, s49, {QKV_SCR}")
    a("v_add_u32 v18, s49, v16")
    a("v_lshlrev_b32 v19, 4, v6")
    a("v_add_u32 v19, s49, v19")
    f = Rec()
    for i in range(4):
        f(f"ds_read_b32 {v(CV+2*i)}, v23 offset:{i*128}")
    ln_stats(f, 8, False)
    f("v_mul_f32 v8, -v8, v9")
    f("ds_write_b32 v18, v9")
    f("ds_write_b32 v18, v8 offset:128")
    for gq in range(4):
        f(f"ds_read_b128 {v(RR+4*gq,4)}, v19 offset:{32*gq}")
        f(f"ds_read_b128 {v(RR+16+4*gq,4)}, v19 offset:{128+32*gq}")
    sync()
    if first:
        k1_main(a, True)
        for x in f.l:
            a(x)
        a("s_waitcnt lgkmcnt(0)")
    else:
        gemm32_main(a, 4, addr, bars, True, 30, 31, ld, f.l)
        a.nop(8)
    stamp(a, "qkvmain")
    for t in range(4):
        r = G_ACC + 16 * t
        for p in range(8):
            a(f"v_pk_mul_f32 {v(r+2*p,2)}, {v(r+2*p,2)}, {v(RR+2*p,2)}")
        for p in range(8):
            a(f"v_pk_fma_f32 {v(r+2*p,2)}, {v(RR+16+2*p,2)}, {v(CV+2*t,2)}, {v(r+2*p,2)} op_sel_hi:[1,0,1]")
        for p in range(8):
            a(f"v_cvt_pk_bf16_f32 {v(r+p)}, {v(r+2*p)}, {v(r+2*p+1)}")
        a(f"buffer_store_dwordx4 {v(r,4)}, {v(32+t)}, {WSR}, s42 offen")
        a(f"buffer_store_dwordx4 {v(r+4,4)}, {v(32+t)}, {WSR}, s42 offen offset:640")


def g16_compute(a, mlp2, fin):
    KS = 48 if mlp2 else 20
    STO = R_ST
    CB = 20 * K
    RED = 100 * K if mlp2 else 128 * K
    ACC, WB, AW, NW = 16, 56, 128, (13 if mlp2 else 10)
    RF = 232 if mlp2 else 96
    RS = RES if mlp2 else RESL
    UP = OPT.get("up2", 6) if mlp2 else OPT.get("upo", 6)
    g16_addr(a, 7, 15, 34, 35, 42)
    a(f"s_and_b32 s27, {s(S_I)}, 7")
    a(f"s_lshr_b32 s30, {s(S_W)}, 1")
    a("s_xor_b32 s31, s34, 1")
    a("s_lshl_b32 s22, s30, 10")
    if mlp2:
        a(f"s_mul_i32 s23, {s(S_DOM)}, {DOM_STRIDE}")
        a("s_add_u32 s22, s22, s23")
        a(f"s_and_b32 s23, {s(S_DOM)}, 1")
        a(f"s_mul_i32 s23, s23, {8*48*K}")
        a(f"s_add_u32 s22, s22, {KVQ}")
        a("s_sub_u32 s22, s22, s23")
    else:
        a(f"s_add_u32 s22, s22, {s(S_SCR)}")
    a(f"s_mul_i32 s32, s34, {KS*K}")
    a("s_add_u32 s32, s32, s22")
    a(f"s_mul_i32 s33, s31, {KS*K}")
    a("s_add_u32 s33, s33, s22")
    a(f"s_mul_i32 s38, s30, {5*K}")
    a("v_add_u32 v12, s38, v2")
    a("v_add_u32 v13, 0x10000, v12")
    a("v_add_u32 v14, 0x20000, v12")
    a(f"s_mul_i32 s39, {s(S_W)}, 5120")
    a(f"s_add_u32 s39, s39, {RED}")
    a("v_add_u32 v3, s39, v2")
    a(f"s_xor_b32 s40, {s(S_W)}, 2")
    a("s_mul_i32 s40, s40, 5120")
    a(f"s_add_u32 s40, s40, {RED}")
    a("v_add_u32 v4, s40, v2")
    a("s_add_u32 s37, s35, 4096")
    a("s_lshl_b32 s43, s34, 10")
    a("s_lshl_b32 s44, s27, 3")
    a("s_add_u32 s43, s43, s44")
    a(f"s_add_u32 s43, s43, {s(S_SCR)}")
    a(f"s_add_u32 s43, s43, {STO}")
    a("s_lshr_b32 s45, s34, 1")
    a("s_lshl_b32 s46, s27, 1")
    a("s_add_u32 s46, s46, s30")
    a("v_lshlrev_b32 v1, 6, v234")
    a("v_and_b32 v236, 1, v235")
    a("v_mul_u32_u24 v5, 1016, v236")
    a("v_add_u32 v5, v5, v7")
    if not mlp2:
        a("v_lshlrev_b32 v6, 8, v235")
        a("v_lshl_add_u32 v6, v234, 3, v6")
    else:
        a("v_mul_u32_u24 v6, 24, v236")
        a("v_add_u32 v6, v6, v15")
    if mlp2:
        a("s_waitcnt vmcnt(6)")
    for jx in range(10):
        a(f"v_lshlrev_b32 {v(RF+2*jx)}, 16, {v(RS+jx)}")
        a(f"v_and_b32 {v(RF+2*jx+1)}, 0xffff0000, {v(RS+jx)}")
        if mlp2:
            a(f"v_lshlrev_b32 v10, 16, {v(52+jx)}")
            a(f"v_and_b32 v11, 0xffff0000, {v(52+jx)}")
            a(f"v_pk_add_f32 {v(RF+2*jx,2)}, {v(RF+2*jx,2)}, v[10:11]")
    if mlp2:
        wait_sync(a, 2, 45)
        stamp(a, "S4")
    else:
        stamp(a, "preS2")
        wait_global(a)
        stamp(a, "S2")
    nk = KS // 2
    loads = []
    ops = []

    def act_load():
        n = len(loads)
        i, tt = n // 2, n % 2
        if i % 2 == 0:
            a(f"s_add_u32 {s(24+tt)}, {s(32+tt)}, {i*2048}")
        r = AW + 8 * (i % NW) + 4 * tt
        if not mlp2 and i >= 8:
            for e in range(2):
                a(f"buffer_load_dwordx2 {v(r+2*e, 2)}, v6, {WSR}, {s(24+tt)} offen offset:{(i % 2)*2048 + e*128} {LD}")
            ops.append((i, tt, 0))
        else:
            a(f"buffer_load_dwordx4 {v(r, 4)}, v2, {WSR}, {s(24+tt)} offen offset:{(i % 2)*2048} {LD}")
        ops.append((i, tt))
        loads.append((i, tt))

    def wread(i, t):
        c = i // 2
        off = (c % 7) * CB + (i % 2) * 10240 + t * K
        a(f"ds_read_b128 {v(WB + 20*(i & 1) + 4*t, 4)}, {v(12 + off // 65536)} offset:{off % 65536}")

    for n in range(2 * UP):
        if n in (0, 2, 4, 8):
            a(f"s_setprio {3 - (0, 2, 4, 8).index(n)}")
        act_load()
    a("s_setprio 0")
    if mlp2:
        a("s_barrier")
    for t in range(5):
        wread(0, t)
    a("v_mov_b32 v8, 0")
    a("v_mov_b32 v9, 0")
    a("v_mov_b32 v11, 0x3f803f80")
    for i in range(nk):
        last = (i == nk - 1)
        bar = mlp2 and (i % 2 == 1) and not last and ((i + 1) // 2 in MLP2_BARS)
        order = [(t, tt) for t in range(5) for tt in range(2)]
        if last:
            order = [(t, 1) for t in range(5)] + [(t, 0) for t in range(5)]
        seen_t, seen_tt = set(), set()
        for t, tt in order:
            w = []
            if tt not in seen_tt:
                after = len(ops) - 1 - ops.index((i, tt))
                w.append(f"vmcnt({min(after,63)})")
                seen_tt.add(tt)
            if t not in seen_t:
                w.append(f"lgkmcnt({4 if not last else 4-t})")
                seen_t.add(t)
            if w:
                a("s_waitcnt " + " ".join(w))
            D_ = v(ACC + 20 * tt + 4 * t, 4)
            C_ = D_ if i else (v(RF + 4 * t, 4) if tt == 0 else "0")
            a(f"v_mfma_f32_16x16x32_bf16 {D_}, {v(WB + 20*(i & 1) + 4*t, 4)}, {v(AW + 8*(i % NW) + 4*tt, 4)}, {C_}")
            if not last and tt == 1:
                if bar and t == 0:
                    stamp(a, f"m2p{(i+1)//2}")
                    a("s_barrier")
                    stamp(a, f"m2b{(i+1)//2}")
                wread(i + 1, t)
                extra = (t == 4 and i % 2 == 0 and OPT.get("ramp", 0))
                if (t in (1, 3) or extra) and len(loads) < 2 * nk and len(loads) // 2 - i < NW:
                    act_load()
    stamp(a, "m2main" if mlp2 else "womain")
    for t in range(5):
        a(f"ds_write_b128 v3, {v(ACC+20+4*t,4)} offset:{t*K}")
    a("s_waitcnt lgkmcnt(0)")
    stamp(a, "preRm" if mlp2 else "preRw")
    a("s_barrier")
    stamp(a, "Rm" if mlp2 else "Rw")
    for t in range(5):
        a(f"ds_read_b128 {v(WB+4*t,4)}, v4 offset:{t*K}")
    lastl = a.label("lastl")
    if mlp2:
        a(f"s_cmp_lg_u32 {s(S_L)}, 0")
        a(f"s_cbranch_scc1 {lastl}")

    def fin_tile(t):
        r = ACC + 4 * t
        a(f"s_waitcnt lgkmcnt({4-t})")
        for p in range(2):
            a(f"v_pk_add_f32 {v(r+2*p,2)}, {v(r+2*p,2)}, {v(WB+4*t+2*p,2)}")
        a(f"v_cvt_pk_bf16_f32 {v(RES+2*t)}, {v(r)}, {v(r+1)}")
        a(f"v_cvt_pk_bf16_f32 {v(RES+2*t+1)}, {v(r+2)}, {v(r+3)}")

    SW = WB + 20

    def widen(p):
        r = RES + 4 * p
        a(f"v_pk_mov_b32 {v(SW+4*p,2)}, {v(r,2)}, {v(r,2)} op_sel:[0,1]")
        a(f"v_pk_mov_b32 {v(SW+4*p+2,2)}, {v(r+2,2)}, {v(r+2,2)} op_sel:[0,1]")
        a.nop(2)
        a(f"v_permlane16_swap_b32 {v(SW+4*p)}, {v(SW+4*p+2)}")
        a(f"v_permlane16_swap_b32 {v(SW+4*p+1)}, {v(SW+4*p+3)}")

    xs = 'sc1' if OPT.get('xsc1', 0) else ''
    for t in range(5):
        fin_tile(t)
        if t % 2:
            widen(t // 2)
            a(f"buffer_store_dwordx4 {v(SW+4*(t//2),4)}, v5, {XSR}, s35 offen offset:{(t-1)*K} {xs}")
        if t == 4:
            a(f"buffer_store_dwordx2 {v(RES+2*t,2)}, v7, {XSR}, s37 offen {xs}")
    for jx in range(10):
        a(f"v_dot2_f32_bf16 v8, {v(RES+jx)}, v11, v8")
        a(f"v_dot2_f32_bf16 v9, {v(RES+jx)}, {v(RES+jx)}, v9")
    a.nop(2)
    a("v_mov_b32 v10, v8")
    a("v_mov_b32 v11, v9")
    a.nop(1)
    a("v_permlane16_swap_b32 v8, v10")
    a("v_permlane16_swap_b32 v9, v11")
    a("v_pk_add_f32 v[8:9], v[8:9], v[10:11]")
    a("v_pk_mov_b32 v[10:11], v[8:9], v[8:9] op_sel:[0,1]")
    a.nop(2)
    a("v_permlane32_swap_b32 v8, v10")
    a("v_permlane32_swap_b32 v9, v11")
    a("v_pk_add_f32 v[8:9], v[8:9], v[10:11]")
    a("s_mov_b64 exec, 0xffff")
    a(f"buffer_store_dwordx2 v[8:9], v1, {WSR}, s43 offen {ST}")
    a("s_mov_b64 exec, -1")

    def last_layer():
        a(f"{lastl}:")
        for t in range(5):
            fin_tile(t)
            if t % 2:
                widen(t // 2)
                a(f"buffer_store_dwordx4 {v(SW+4*(t//2),4)}, v6, s[12:15], s42 offen offset:{(t-1)*32}")
            if t == 4:
                a(f"buffer_store_dwordx2 {v(RES+2*t,2)}, v15, s[12:15], s42 offen offset:{t*32}")
        a(f"s_branch {fin}")
    return last_layer


def helper_chain(a, fin):
    def w2reg(k):
        return 16 + 4 * ((k + 1) % 60)
    WQR = 20
    a(f"s_and_b32 s29, {s(S_W)}, 3")
    a("s_mul_i32 s30, s29, 5120")
    a(f"s_and_b32 s31, {s(S_I)}, 7")
    a(f"s_mul_i32 s31, s31, {240*K}")
    a("s_add_u32 s31, s31, s30")
    a("s_mul_i32 s32, s29, 3072")
    a("s_lshl_b32 s33, s29, 12")
    a(f"s_and_b32 s34, {s(S_I)}, 15")
    a("s_cmp_eq_u32 s34, 15")
    a("s_cselect_b32 s35, 1, 0")
    a(f"s_or_b32 s35, s35, {s(S_L)}")
    a(f"s_mul_i32 s34, s34, {160*K}")
    a("s_add_u32 s34, s34, s33")
    a("s_lshl_b32 s22, s35, 31")
    a("s_or_b32 s38, s34, s22")
    a("v_lshlrev_b32 v12, 2, v0")
    a("v_add_u32 v12, s30, v12")
    a("v_add_u32 v12, 0x10000, v12")
    a("v_lshlrev_b32 v15, 7, v0")
    L = Loader(a)
    n2 = [0]
    nq = [0]

    def w2(n, depth):
        for _ in range(n):
            k = n2[0]
            if k >= 60:
                return
            a(f"s_add_u32 s24, s31, {W2T + (k//5)*20*K + (k % 5)*K}")
            a(f"buffer_load_dwordx4 {v(w2reg(k),4)}, v2, {WSR}, s24 offen")
            L.other(("w2", k))
            if depth:
                a(f"s_waitcnt vmcnt({depth-1})")
            n2[0] += 1

    def wq(n):
        for _ in range(n):
            k = nq[0]
            if k >= 4 * NQS:
                return
            a(f"s_add_u32 s24, s38, {WQT + (k//4)*16*K + (k % 4)*K}")
            a(f"buffer_load_dwordx4 {v(WQR+4*k,4)}, v2, {WSR}, s24 offen")
            L.other(("wq", k))
            nq[0] += 1

    th, tx, ty = [], [], []
    a(f"s_lshl_b32 s39, {s(S_L)}, 31")
    tq = touch_items(a, L, WQT, 2457600, 39, OPT.get("tql", 15), 15, 40, vd=14)

    def run(spec):
        for tok in spec.split():
            body, _, n = tok.partition("*")
            for _ in range(int(n or 1)):
                for ch in body:
                    if ch == "w":
                        w2(1, 0)
                    elif ch == "q":
                        wq(1)
                    elif ch in "hxyt":
                        lst = {"h": th, "x": tx, "y": ty, "t": tq}[ch]
                        if lst:
                            lst.pop(0)()
                    elif ch == "B":
                        lab = a.label("nowb")
                        a(f"s_and_b32 s22, {s(S_I)}, 15")
                        a("s_lshl_b32 s22, s22, 2")
                        a("s_add_u32 s22, s22, s29")
                        a("s_cmp_lg_u32 s22, 63")
                        a(f"s_cbranch_scc1 {lab}")
                        a("buffer_wbl2 sc1")
                        a(f"{lab}:")
                    else:
                        a(f"s_waitcnt vmcnt({ch})")

    run(SCHED["a"])
    stamp(a, "preRw")
    a("s_barrier")
    stamp(a, "Rw")
    run(SCHED["r"])
    assert n2[0] <= 35
    D = Dumper(a, 32)
    for k in range(24):
        D(STG + 4 * k, W1_ADDR[2 + k // 3] + (k % 3) * K)
    a("s_waitcnt lgkmcnt(0)")
    run(SCHED["b"])
    stamp(a, "preS3")
    a("s_barrier")
    stamp(a, "S3")
    run(SCHED["c"])
    gd = a.label("gdone")
    gp = a.label("gpoll")
    a("s_cmp_lg_u32 s29, 0")
    a(f"s_cbranch_scc1 {gd}")
    a("s_mov_b32 s23, 200000")
    a("v_lshlrev_b32 v9, 8, v0")
    a("s_mov_b32 exec_hi, 0")
    a(f"{gp}:")
    a(f"buffer_load_dword v10, v9, {WSR}, {s(S_CNT)} offen sc1")
    a("s_sub_u32 s23, s23, 1")
    a(f"s_cbranch_scc1 {gd}")
    a("s_waitcnt vmcnt(0)")
    a(f"v_cmp_gt_u32 vcc, {32 // NSUB}, v10")
    a(f"s_cbranch_vccnz {gp}")
    a(f"{gd}:")
    a("s_mov_b64 exec, -1")
    a("s_barrier")
    run(SCHED["c3"])
    a("s_barrier")
    run(SCHED["c6"])
    assert n2[0] >= 35
    stamp(a, "preE1")
    a("s_barrier")
    stamp(a, "E1")
    D = Dumper(a, 30)

    def dump2(c):
        L.wait(("w2", 5 * c + 4))
        for jj in range(5):
            D(w2reg(5 * c + jj), (c % 7) * 20 * K + jj * K)

    for c in range(7):
        run(SCHED["e"])
        dump2(c)
    a("s_waitcnt lgkmcnt(0)")
    run(SCHED["f"])
    stamp(a, "sig4")
    a("s_barrier")
    stamp(a, "S4")
    run(SCHED["g0"])
    w2(60, 0)
    a(f"s_setprio {OPT.get('hprio', 0)}")
    for b, (k0, k1) in ((2, (35, 40)), (4, (40, 47)), (6, (47, 54)), (8, (54, 60)), (10, (60, 60))):
        stamp(a, f"m2p{b}")
        a("s_barrier")
        stamp(a, f"m2b{b}")
        if k1 > k0:
            L.wait(("w2", k1 - 1))
        for k in range(k0, k1):
            D(w2reg(k), ((k // 5) % 7) * 20 * K + (k % 5) * K)
        run(SCHED[f"g{b}"])
        a("s_waitcnt lgkmcnt(0)")
    a("s_setprio 0")
    wq(24)
    a("s_barrier")
    a("s_cmp_lg_u32 s35, 0")
    a(f"s_cbranch_scc1 {fin}")
    a("s_waitcnt vmcnt(0)")
    D = Dumper(a, 33)
    for k in range(4 * NQS):
        D(WQR + 4 * k, WQ_ADDR[k // 4] + (k % 4) * K)
    a("s_waitcnt lgkmcnt(0)")
    a("s_barrier")
    L = Loader(a)

    def dq(c):
        if NQS <= c < 10:
            L.dma(("wq", c), 4, WQ_ADDR[c], 34, WQT + c * 16 * K, 33)

    def wt(c):
        if c >= NQS:
            L.wait(("wq", c))
    LEAD = NQS
    for c in range(10):
        if c:
            wt(c)
            a("s_barrier")
        dq(c + LEAD)


def roles(a):
    a(f"s_and_b32 {s(S_X)}, s2, 7")
    a(f"s_lshr_b32 {s(S_I)}, s2, 3")
    a(f"s_lshr_b32 s22, {s(S_I)}, 4")
    a(f"s_lshl_b32 {s(S_DOM)}, {s(S_X)}, 1")
    a(f"s_add_u32 {s(S_DOM)}, {s(S_DOM)}, s22")


def gen_chain(a):
    a(".globl chainb_kernel")
    a(".p2align 8")
    a(".type chainb_kernel,@function")
    a("chainb_kernel:")
    a(f"s_mov_b32 {s(S_L)}, 1")
    a("s_branch L_chain_body")
    a(".globl chaina_kernel")
    a(".p2align 8")
    a(".type chaina_kernel,@function")
    a("chaina_kernel:")
    a(f"s_mov_b32 {s(S_L)}, 0")
    a("L_chain_body:")
    name = "chain"
    if gen1.PROFILE:
        a("s_memrealtime s[96:97]")
        a("s_memtime s[94:95]")
        for i in range(16):
            a(f"s_mov_b32 s{60+2*i}, 0")
    a("s_cmp_ge_u32 s2, 256")
    a(f"s_cbranch_scc1 L_end_{name}")
    gen1.load_srd(a, S_WS, 10, WS_END)
    gen1.load_srd(a, 8, 0, 2621440)
    gen1.load_srd(a, 12, 8, 2621440)
    gen1.load_srd(a, 16, 7, 1280)
    gen1.load_srd(a, S_DBG, 9, 256)
    a("v_lshrrev_b32 v1, 6, v0")
    a("v_and_b32 v0, 63, v0")
    a(f"v_readfirstlane_b32 {s(S_W)}, v1")
    roles(a)
    a(f"s_lshl_b32 {s(S_CNT)}, {s(S_L)}, 15")
    a(f"s_add_u32 {s(S_CNT)}, {s(S_CNT)}, {CNT}")
    a(f"s_mul_i32 {s(S_SCR)}, {s(S_X)}, {SCR_STRIDE}")
    a(f"s_add_u32 {s(S_SCR)}, {s(S_SCR)}, {SCR}")
    slow_path = att_phase(a)
    stamp(a, "ostored")
    signal_global(a, 7)
    stamp(a, "sig2")
    fin = a.label("fin")
    comp = a.label("comp")
    a(f"s_cmp_lt_u32 {s(S_W)}, 4")
    a(f"s_cbranch_scc1 {comp}")
    helper_chain(a, fin)
    a(f"s_branch {fin}")
    slow_path()
    a(f"{comp}:")
    g16_compute(a, False, fin)
    stamp(a, "xstored")
    a(f"s_mul_i32 s32, {s(S_W)}, 3072")
    D = Dumper(a, 32)
    for k in range(6):
        D(STA + 4 * k, W1_ADDR[k // 3] + (k % 3) * K)
    signal(a, 1, 11, 45, 46)
    mlp1_compute(a)
    stamp(a, "hstored")
    signal(a, 2, 15, 28, 27)
    last_layer = g16_compute(a, True, fin)
    sp = a.label("spare5")
    a(f"s_and_b32 s27, {s(S_I)}, 15")
    a("s_cmp_eq_u32 s27, 15")
    a(f"s_cbranch_scc1 {sp}")

    def spare():
        a(f"{sp}:")
        signal(a, 3, 19, 45, 46)
        PENDING[-1]()
        a(f"s_branch {fin}")
    a("s_mov_b32 s26, s45")
    a("s_mov_b32 s101, s46")

    def sync():
        signal(a, 3, 19, 26, 101)
        wait_sync(a, 3, 28)
        stamp(a, "S5")
    qkv_compute(a, 0, R_ST, None, None, WQ_ADDR, QKV_BARS, sync, LD, fin)
    a(f"s_branch {fin}")
    last_layer()
    spare()
    for c in COLD:
        c()
    a(f"{fin}:")
    if gen1.PROFILE:
        a(f"s_lshl_b32 s22, {s(S_L)}, 8")
        a("s_add_u32 s2, s2, s22")
    if OPT.get("dbgout", 0):
        lab = a.label("nodbg")
        a("s_cmp_lg_u32 s2, 256")
        a(f"s_cbranch_scc1 {lab}")
        a(f"s_cmp_lg_u32 {s(S_W)}, 0")
        a(f"s_cbranch_scc1 {lab}")
        a("s_waitcnt vmcnt(0) lgkmcnt(0)")
        a("s_memrealtime s[98:99]")
        a("s_memtime s[92:93]")
        a("v_mov_b32 v1, 0")
        a(f"s_mov_b32 s22, {PROF + 64}")
        a(f"buffer_load_dwordx4 v[4:7], v1, {WSR}, s22 offen")
        a(f"s_mov_b32 s22, {PROF + 256*8*128 + 64}")
        a(f"buffer_load_dwordx4 v[8:11], v1, {WSR}, s22 offen")
        a(f"s_mov_b32 s22, {PROF + 256*8*128}")
        a(f"buffer_load_dwordx4 v[16:19], v1, {WSR}, s22 offen")
        a("s_waitcnt vmcnt(0) lgkmcnt(0)")
        a("v_sub_u32 v20, v6, v5")
        a("v_sub_u32 v21, v9, v5")
        a("v_sub_u32 v22, v10, v5")
        a("v_sub_u32 v23, s96, v5")
        a("v_sub_u32 v24, s98, v5")
        a("v_sub_u32 v25, v4, v7")
        a("v_sub_u32 v26, v8, v11")
        a("s_sub_u32 s22, s92, s94")
        a("v_mov_b32 v28, s22")
        a("v_sub_u32 v29, v16, v11")
        a("s_sub_u32 s22, s60, s94")
        a("v_mov_b32 v30, s22")
        a("v_sub_u32 v31, v17, v11")
        a("s_mov_b64 exec, 1")
        for n, r in enumerate((20, 21, 22, 23, 24, 25, 26)):
            a(f"buffer_store_dword v{r}, v1, {s(S_DBG,4)}, 0 offen offset:{4+4*n}")
        for n, r in enumerate((28, 29, 30, 31)):
            a(f"buffer_store_dword v{r}, v1, {s(S_DBG,4)}, 0 offen offset:{36+4*n}")
        a("s_mov_b64 exec, -1")
        a(f"{lab}:")
    gen1.kernel_tail(a, name, 1)


K1_NW = 20
K1_PC = 128 * K
K1_CS = 144 * K
K1_TA = 48


def tr_addr32(a, dst, t_imm=None, t_sgpr=None):
    a("v_bfe_u32 v24, v0, 2, 2")
    a("v_lshrrev_b32 v25, 5, v0")
    a("v_lshl_add_u32 v25, v25, 3, v24")
    a("v_lshlrev_b32 v25, 8, v25")
    a("v_bfe_u32 v26, v0, 4, 1")
    a("v_lshl_add_u32 v25, v26, 5, v25")
    a("v_and_b32 v26, 3, v0")
    a("v_lshl_add_u32 v25, v26, 3, v25")
    if t_sgpr is not None:
        a(f"v_xor_b32 v26, {s(t_sgpr)}, v24")
        a(f"v_lshl_add_u32 {v(dst)}, v26, 6, v25")
        a(f"v_add_u32 {v(dst+1)}, 0x10000, {v(dst)}")
    else:
        for t in range(4):
            a(f"v_xor_b32 v26, {t}, v24")
            a(f"v_lshl_add_u32 {v(dst+2*t)}, v26, 6, v25")
            a(f"v_add_u32 {v(dst+2*t+1)}, 0x10000, {v(dst+2*t)}")


K1_XB = 64 * K
K1_STX = 145 * K


def x_addr(a, dst, s_tile):
    a("v_and_b32 v24, 31, v0")
    a("v_bfe_u32 v25, v0, 1, 3")
    a("v_lshrrev_b32 v26, 5, v0")
    a("v_xor_b32 v25, v25, v26")
    a("v_lshlrev_b32 v24, 7, v24")
    a(f"s_lshl_b32 s22, {s(s_tile)}, 12")
    a(f"s_add_u32 s22, s22, {K1_XB}")
    a("v_add_u32 v24, s22, v24")
    for ks in range(4):
        a(f"v_xor_b32 v26, {2*ks}, v25")
        a(f"v_lshl_add_u32 {v(dst+ks)}, v26, 4, v24")


def k1_dma_setup(a):
    a("v_lshrrev_b32 v3, 4, v0")
    a("v_lshlrev_b32 v4, 2, v3")
    a("v_and_b32 v60, 15, v0")
    a("v_xor_b32 v60, v60, v4")
    a("v_lshlrev_b32 v60, 4, v60")
    a("v_mul_u32_u24 v4, 3840, v3")
    a("v_add_u32 v60, v60, v4")
    a("v_lshrrev_b32 v5, 3, v0")
    a("v_and_b32 v61, 7, v0")
    a("v_xor_b32 v61, v61, v3")
    a("v_mul_u32_u24 v5, 1280, v5")
    a("v_xor_b32 v62, 4, v61")
    a("v_lshl_add_u32 v61, v61, 4, v5")
    a("v_lshl_add_u32 v62, v62, 4, v5")
    a(f"s_mul_i32 s54, s29, {16*3840}")
    a("s_lshl_b32 s22, s27, 8")
    a("s_add_u32 s54, s54, s22")
    a(f"s_lshl_b32 s55, {s(S_DOM)}, 2")
    a("s_add_u32 s55, s55, s29")
    a(f"s_mul_i32 s55, s55, {32*1280}")
    a("s_lshl_b32 s56, s29, 12")


def k1_dma(a, L, c, js=range(4)):
    for j in js:
        a(f"s_add_u32 m0, s56, {(c % 4)*16*K + j*K}")
        a(f"s_add_u32 s24, s54, {(64*c + 4*j)*3840}")
        a("buffer_load_dwordx4 v60, s[12:15], s24 offen lds")
        a(f"s_add_u32 m0, s56, {K1_XB + (c % 4)*16*K + j*K}")
        a(f"s_add_u32 s24, s55, {128*c + 8*j*1280}")
        a(f"buffer_load_dwordx4 {v(61 + (j & 1))}, s[8:11], s24 offen lds")
        L.other(("w", c))
        L.other(("w", c))


def k1_touch(a):
    a("s_lshl_b32 s22, s2, 2")
    a("s_add_u32 s22, s22, s29")
    a("v_lshlrev_b32 v63, 7, v0")
    a("s_mul_i32 s23, s22, 2560")
    a("s_mul_i32 s22, s22, 2432")
    a("s_mov_b64 exec, 0xfffff")
    a("buffer_load_dword v254, v63, s[8:11], s23 offen")
    a("s_mov_b64 exec, 0x7ffff")
    a("buffer_load_dword v254, v63, s[12:15], s22 offen")
    a("s_mov_b64 exec, -1")


K1_SA = 176
K1_X16 = 168


def k1_prologue(a):
    tr_addr32(a, K1_TA)
    x_addr(a, 56, S_W)
    a("v_and_b32 v24, 15, v0")
    a("v_lshrrev_b32 v25, 4, v0")
    a("v_bfe_u32 v60, v0, 1, 3")
    a("v_xor_b32 v60, v60, v25")
    a("v_xor_b32 v61, 4, v60")
    a("v_lshlrev_b32 v24, 7, v24")
    a("v_add_u32 v24, s22, v24")
    a("v_lshl_add_u32 v60, v60, 4, v24")
    a("v_lshl_add_u32 v61, v61, 4, v24")
    for r in range(4):
        a(f"v_mov_b32 {v(192+r)}, 0x3f803f80")
    for r in range(10, 16):
        a(f"v_mov_b32 {v(r)}, 0")


def k1_main(a, swap):
    lds = []

    def wread(k, t):
        sl = ((k // 4) % 4) * 16 * K
        off = sl + (k % 4) * 4096
        r = G_WB + 16 * (k & 1) + 4 * t
        if t == 0:
            a(f"ds_read_b128 {v(G_AW + 4*(k & 1), 4)}, {v(56 + k % 4)} offset:{sl}")
            lds.append("x")
        a(f"ds_read_b64_tr_b16 {v(r,2)}, {v(K1_TA + 2*t)} offset:{off}")
        a(f"ds_read_b64_tr_b16 {v(r+2,2)}, {v(K1_TA + 2*t)} offset:{off + K}")
        lds.extend(["h", (k, t)])
        if t == 1:
            a(f"ds_read_b128 {v(K1_X16 + 4*(k & 1), 4)}, {v(60 + ((k >> 1) & 1))} offset:{sl + (k & 1)*2048}")
            lds.append("y")

    if OPT.get("k1touch", 2) == 1:
        a(f"s_mov_b32 s28, s29")
        a(f"s_mov_b32 s29, {s(S_W)}")
        k1_touch(a)
        a(f"s_mov_b32 s29, s28")
    stamp(a, "k1p0")
    a("s_barrier")
    stamp(a, "k1b0")
    for t in range(4):
        wread(0, t)
    for k in range(40):
        last = (k == 39)
        for t in range(4):
            a(f"s_waitcnt lgkmcnt({len(lds) - 1 - lds.index((k, t))})")
            A_ = v(G_WB + 16 * (k & 1) + 4 * t, 4)
            B_ = v(G_AW + 4 * (k & 1), 4)
            if swap:
                A_, B_ = B_, A_
            D_ = v(G_ACC + 16 * t, 16)
            a(f"v_mfma_f32_32x32x16_bf16 {D_}, {A_}, {B_}, {D_ if k else 0}")
            if not last:
                if k % 4 == 3 and t == 0:
                    a("s_barrier")
                    stamp(a, f"k1b{(k+1)//4}")
                wread(k + 1, t)
            if t >= 2:
                X_ = v(K1_X16 + 4 * (k & 1), 4)
                D2 = v(K1_SA + 8 * (t - 2) + 4 * (k & 1), 4)
                a(f"v_mfma_f32_16x16x32_bf16 {D2}, {'v[192:195]' if t == 2 else X_}, {X_}, {D2 if k > 1 else 0}")
    a("v_and_b32 v25, 3, v0")
    a("v_and_b32 v26, 15, v0")
    a(f"s_lshl_b32 s22, {s(S_W)}, 8")
    a(f"s_add_u32 s22, s22, {K1_STX}")
    a("v_lshlrev_b32 v26, 3, v26")
    a("v_add_u32 v26, s22, v26")
    a("v_lshlrev_b32 v24, 3, v5")
    a("v_add_u32 v24, s22, v24")
    G0, G1 = K1_SA + 8, K1_SA + 12
    for r in range(1, 4):
        a(f"v_cmp_eq_u32 vcc, {r}, v25")
        a.nop(2)
        a(f"v_cndmask_b32 {v(G0)}, {v(G0)}, {v(G0+r)}, vcc")
        a(f"v_cndmask_b32 {v(G1)}, {v(G1)}, {v(G1+r)}, vcc")
    a(f"v_mov_b32 {v(K1_SA+1)}, {v(G0)}")
    a(f"v_mov_b32 {v(K1_SA+5)}, {v(G1)}")
    a("s_mov_b32 exec_lo, 0x00f0000f")
    a("s_mov_b32 exec_hi, 0xf0000f00")
    a(f"ds_write_b64 v26, {v(K1_SA,2)}")
    a(f"ds_write_b64 v26, {v(K1_SA+4,2)} offset:128")
    a("s_mov_b64 exec, -1")
    a("ds_read_b64 v[8:9], v24")
    a("s_barrier")
    a("s_waitcnt lgkmcnt(0)")
    a("v_mul_f32 v8, 0.5, v8")
    a("v_mul_f32 v9, 0.5, v9")


def code_prefetch(a, idx_sgpr, va=24, vd=255):
    here = a.label("pc")
    a("s_getpc_b64 s[22:23]")
    a(f"{here}:")
    a(f"s_sub_u32 s22, s22, {here}-L_text_begin")
    a("s_subb_u32 s23, s23, 0")
    a(f"s_mul_i32 s24, {s(idx_sgpr)}, 128*((L_text_end-L_text_begin+4095)/4096)")
    a(f"v_lshlrev_b32 {v(va)}, 7, v0")
    a(f"v_add_u32 {v(va)}, s24, {v(va)}")
    a(f"v_min_u32 {v(va)}, L_text_end-L_text_begin-4, {v(va)}")
    a("v_cmp_gt_u32 vcc, (L_text_end-L_text_begin+4095)/4096, v0")
    a("s_and_saveexec_b64 s[24:25], vcc")
    a(f"global_load_dword {v(vd)}, {v(va)}, s[22:23]")
    a("s_mov_b64 exec, -1")


PIECES = [(0, 200, 16, 1280, 10, 16, True, WOT, 20, 5), (200, 480, 40, 1280, 10, 16, True, W2T, 48, 5),
          (680, 480, 36, 3072, 24, 32, False, W1T, 40, 3)]


def piece_dispatch(a, s_pid, fn):
    end = a.label("pend")
    for P in PIECES:
        nxt = a.label("pnext")
        a(f"s_cmp_ge_u32 {s(s_pid)}, {P[0]+P[1]}")
        a(f"s_cbranch_scc1 {nxt}")
        a(f"s_sub_u32 s23, {s(s_pid)}, {P[0]}")
        a(f"s_mov_b32 s24, {magic(P[4])}")
        a("s_mul_hi_u32 s25, s23, s24")
        a(f"s_mul_i32 s26, s25, {P[4]}")
        a("s_sub_u32 s26, s23, s26")
        fn(P)
        a(f"s_branch {end}")
        a(f"{nxt}:")
    a(f"{end}:")


def t_layout(a, r):
    a(f"v_permlane32_swap_b32 {v(r)}, {v(r+2)}")
    a(f"v_permlane32_swap_b32 {v(r+1)}, {v(r+3)}")
    a.nop(2)
    a(f"v_permlane16_swap_b32 {v(r)}, {v(r+1)}")
    a(f"v_permlane16_swap_b32 {v(r+2)}, {v(r+3)}")


def piece_load(a, s_pid, s_lds):
    def fn(P):
        RS = P[3]
        a("s_lshl_b32 s26, s26, 7")
        a("v_lshrrev_b32 v20, 3, v0")
        a("v_and_b32 v21, 7, v0")

        def go(rows_kb, base, rowj):
            a(f"s_mul_i32 s25, s25, {rows_kb*RS}")
            a("s_add_u32 s25, s25, s26")
            a(f"v_mul_u32_u24 v20, {RS}, v20")
            a("v_lshl_add_u32 v20, v21, 4, v20")
            for j in range(4):
                a(f"s_add_u32 m0, {s(s_lds)}, {j*K}")
                a(f"s_add_u32 s24, s25, {(base + rowj[j])*RS}")
                a(f"buffer_load_dwordx4 v20, {s(P[2],4)}, s24 offen lds")
        if P[7] != WOT:
            go(32, 0, [0, 8, 16, 24])
        else:
            hi = a.label("wohi")
            dn = a.label("wodn")
            a("s_cmp_ge_u32 s25, 16")
            a(f"s_cbranch_scc1 {hi}")
            go(40, 0, [0, 8, 20, 28])
            a(f"s_branch {dn}")
            a(f"{hi}:")
            a("s_sub_u32 s25, s25, 16")
            a("v_lshrrev_b32 v22, 2, v20")
            a("v_mul_u32_u24 v22, 36, v22")
            a("v_add_u32 v20, v20, v22")
            go(160, 16, [0, 20, 80, 100])
            a(f"{dn}:")
    piece_dispatch(a, s_pid, fn)


def piece_finish(a, s_pid, s_lds):
    def fn(P):
        typ, perm, outbase, nks, ntile = P[5:]
        a("v_lshrrev_b32 v21, 4, v0")
        a("v_bfe_u32 v22, v0, 2, 2")
        a("v_and_b32 v23, 3, v0")
        if typ == 16:
            if perm:
                a("v_lshrrev_b32 v24, 1, v21")
                a("v_lshlrev_b32 v24, 4, v24")
                a("v_and_b32 v25, 1, v21")
                a("v_lshl_add_u32 v24, v25, 2, v24")
                second = 8
            else:
                a("v_lshlrev_b32 v24, 3, v21")
                second = 4
            a("v_add_u32 v24, v24, v22")
            a("v_lshlrev_b32 v24, 7, v24")
            a("v_lshl_add_u32 v24, v23, 3, v24")
            frs = [(ft * 32, ft, 0) for ft in range(4)]
        else:
            a("v_lshrrev_b32 v24, 1, v21")
            a("v_lshlrev_b32 v24, 3, v24")
            a("v_add_u32 v24, v24, v22")
            a("v_lshlrev_b32 v24, 7, v24")
            a("v_lshl_add_u32 v24, v23, 3, v24")
            a("v_and_b32 v25, 1, v21")
            a("v_lshl_add_u32 v24, v25, 5, v24")
            second = 4
            frs = [(ks * 16 * 128 + ft * 64, ft, ks) for ft in range(2) for ks in range(2)]
        a(f"v_add_u32 v24, {s(s_lds)}, v24")
        tl = outbase != WOT
        if tl:
            a("v_and_b32 v20, 15, v0")
            a("v_lshl_add_u32 v20, v20, 2, v21")
            a("v_lshlrev_b32 v20, 4, v20")
        else:
            a("v_lshlrev_b32 v20, 4, v0")
        for i, (off, ft, ks) in enumerate(frs):
            a(f"ds_read_b64_tr_b16 {v(28+4*i,2)}, v24 offset:{off}")
            a(f"ds_read_b64_tr_b16 {v(30+4*i,2)}, v24 offset:{off+second*128}")
        for i, (off, ft, ks) in enumerate(frs):
            if typ == 16:
                a("s_lshl_b32 s23, s26, 2")
                a(f"s_add_u32 s23, s23, {ft}")
                a("s_mov_b32 s28, s25")
            else:
                a("s_lshl_b32 s23, s26, 1")
                a(f"s_add_u32 s23, s23, {ft}")
                a("s_lshl_b32 s28, s25, 1")
                a(f"s_add_u32 s28, s28, {ks}")
            a(f"s_mov_b32 s24, {magic(ntile)}")
            a("s_mul_hi_u32 s24, s23, s24")
            a(f"s_mul_i32 s22, s24, {ntile}")
            a("s_sub_u32 s23, s23, s22")
            a(f"s_mul_i32 s24, s24, {nks}")
            a("s_add_u32 s24, s24, s28")
            a(f"s_mul_i32 s24, s24, {ntile}")
            a("s_add_u32 s24, s24, s23")
            a("s_lshl_b32 s24, s24, 10")
            a(f"s_add_u32 s24, s24, {outbase}")
            a(f"s_waitcnt lgkmcnt({2*(3-i)})")
            if tl:
                t_layout(a, 28 + 4 * i)
            a(f"buffer_store_dwordx4 {v(28+4*i,4)}, v20, {WSR}, s24 offen")
    piece_dispatch(a, s_pid, fn)


def k1_helper(a):
    L = Loader(a)
    k1_dma_setup(a)
    a("s_waitcnt lgkmcnt(0)")
    NF = OPT.get("k1first", 2)
    for c in range(NF):
        k1_dma(a, L, c)
    a("s_setprio 2")
    tr_addr32(a, 8, t_sgpr=29)
    a("v_and_b32 v5, 15, v0")
    a("v_lshrrev_b32 v6, 4, v0")
    a("v_xor_b32 v18, v5, v6")
    a("v_and_b32 v18, 1, v18")
    a("v_cmp_eq_u32 vcc, 0, v18")
    a("v_mov_b32 v12, 0x3f803f80")
    a("v_lshlrev_b32 v10, 4, v0")
    for r in range(4):
        a(f"v_cndmask_b32 {v(116+r)}, 0, v12, vcc")
    a("v_lshl_add_u32 v11, v5, 2, v6")
    a("v_lshlrev_b32 v11, 4, v11")
    a(f"s_mul_i32 s32, s27, {160*K}")
    a("s_lshl_b32 s22, s29, 10")
    a("s_add_u32 s32, s32, s22")
    a(f"s_add_u32 s32, s32, {WQT}")
    a(f"s_mul_i32 s34, {s(S_DOM)}, 15")
    a("s_add_u32 s34, s34, s27")
    a("s_lshl_b32 s34, s34, 2")
    a("s_add_u32 s34, s34, s29")
    a(f"s_add_u32 s35, s56, {K1_PC}")
    a(f"s_lshr_b32 s30, {s(S_DOM)}, 2")
    a(f"s_and_b32 s31, {s(S_DOM)}, 3")
    a("s_lshl_b32 s22, s31, 12")
    a("s_add_u32 s32, s32, s22")
    a("v_add_u32 v9, s22, v8")
    for c in range(10):
        L.wait(("w", c))
        a("s_barrier")
        off = (c % 4) * 16 * K
        for ks in range(4):
            a(f"ds_read_b64_tr_b16 {v(80+4*ks,2)}, v8 offset:{off + ks*4096}")
            a(f"ds_read_b64_tr_b16 {v(82+4*ks,2)}, v8 offset:{off + ks*4096 + K}")
        nost = a.label("nost")
        a(f"s_cmp_lg_u32 s30, {c % 4}")
        a(f"s_cbranch_scc1 {nost}")
        a(f"ds_read_b64_tr_b16 v[96:97], v9 offset:{off}")
        a(f"ds_read_b64_tr_b16 v[98:99], v9 offset:{off + K}")
        a(f"s_add_u32 s24, s32, {c*16*K}")
        a("s_waitcnt lgkmcnt(0)")
        if c < NQS:
            t_layout(a, 96)
        a(f"buffer_store_dwordx4 v[96:99], {'v11' if c < NQS else 'v10'}, {WSR}, s24 offen")
        a(f"{nost}:")
        cn = c + 2 if (c + 2 >= NF and c + 2 < 10) else None
        if c == 0 and NF == 3:
            cn = 3
        if c == 1 and NF == 3:
            cn = None
        for ks in range(4):
            if cn is not None:
                k1_dma(a, L, cn, [ks])
            a(f"s_waitcnt lgkmcnt({6-2*ks})")
            a(f"v_mfma_f32_16x16x32_bf16 v[56:59], {v(80+4*ks,4)}, v[116:119], {'v[56:59]' if c or ks else 0}")
        if c == OPT.get("k1pc", 8):
            piece_load(a, 34, 35)
            for _ in range(4):
                L.other("pc")
    a("v_lshlrev_b32 v3, 6, v5")
    a("v_lshl_add_u32 v3, v6, 4, v3")
    a("s_lshl_b32 s22, s29, 7")
    a("v_add_u32 v3, s22, v3")
    a(f"v_add_u32 v4, {K1_CS}, v3")
    a("s_lshl_b32 s22, s27, 9")
    a(f"s_add_u32 s22, s22, {CSQ}")
    a("s_mov_b32 exec_lo, 0x00030003")
    a("s_mov_b32 exec_hi, 0x00030003")
    a("ds_write_b128 v4, v[56:59]")
    lab = a.label("nocs")
    a(f"s_cmp_lg_u32 {s(S_DOM)}, 0")
    a(f"s_cbranch_scc1 {lab}")
    a(f"buffer_store_dwordx4 v[56:59], v3, {WSR}, s22 offen")
    a(f"{lab}:")
    a("s_mov_b64 exec, -1")
    a("s_waitcnt lgkmcnt(0)")
    a("s_barrier")
    a("s_waitcnt vmcnt(0)")
    piece_finish(a, 34, 35)


def k1_spare(a):
    a(f"s_lshl_b32 s34, {s(S_DOM)}, 3")
    a(f"s_add_u32 s34, s34, {s(S_W)}")
    a("s_lshl_b32 s34, s34, 1")
    a("s_add_u32 s34, s34, 960")
    a("s_add_u32 s33, s34, 1")
    a(f"s_lshl_b32 s35, {s(S_W)}, 13")
    a(f"s_add_u32 s35, s35, {64*K}")
    a("s_add_u32 s32, s35, 4096")
    a("v_mul_u32_u24 v2, 43, v0")
    a("v_lshrrev_b32 v2, 9, v2")
    a("v_mul_u32_u24 v3, 12, v2")
    a("v_sub_u32 v3, v0, v3")
    a("v_mul_u32_u24 v4, 3072, v2")
    a("v_lshl_add_u32 v4, v3, 4, v4")
    a(f"s_mul_i32 s30, {s(S_W)}, {80*3072}")
    a(f"s_mul_i32 s31, {s(S_DOM)}, 192")
    a("s_add_u32 s30, s30, s31")
    a("s_mov_b32 exec_hi, 0x0fffffff")
    for i in range(16):
        a(f"s_add_u32 s24, s30, {5*i*3072}")
        a(f"buffer_load_dwordx4 {v(64+4*i,4)}, v4, s[36:39], s24 offen")
    a("s_mov_b64 exec, -1")
    piece_load(a, 34, 35)
    piece_load(a, 33, 32)
    for j in range(8):
        a(f"v_mov_b32 {v(8+j)}, 0")
    a("v_mov_b32 v16, 0x00003f80")
    a("v_mov_b32 v17, 0x3f800000")
    a(f"s_mul_i32 s22, {s(S_W)}, {5*384}")
    a("v_mul_u32_u24 v5, 384, v2")
    a("v_lshl_add_u32 v5, v3, 5, v5")
    a("v_add_u32 v5, s22, v5")
    a("s_waitcnt vmcnt(0)")
    for i in range(16):
        for j in range(4):
            a(f"v_dot2_f32_bf16 {v(8+2*j)}, {v(64+4*i+j)}, v16, {v(8+2*j)}")
            a(f"v_dot2_f32_bf16 {v(9+2*j)}, {v(64+4*i+j)}, v17, {v(9+2*j)}")
    a("s_mov_b32 exec_hi, 0x0fffffff")
    a.nop(3)
    a("ds_write_b128 v5, v[8:11]")
    a("ds_write_b128 v5, v[12:15] offset:16")
    a("s_mov_b64 exec, -1")
    a("s_waitcnt lgkmcnt(0)")
    a("s_barrier")
    lab = a.label("nored")
    a(f"s_cmp_ge_u32 {s(S_W)}, 2")
    a(f"s_cbranch_scc1 {lab}")
    a(f"s_mul_i32 s22, {s(S_W)}, 48")
    a("v_add_u32 v6, s22, v0")
    a("v_lshlrev_b32 v7, 2, v6")
    a("v_lshlrev_b32 v18, 1, v6")
    a("s_mov_b32 exec_hi, 0xffff")
    a(f"buffer_load_ushort v19, v18, s[44:47], s31 offen")
    for i in range(40):
        a(f"ds_read_b32 {v(64+i)}, v7 offset:{384*i}")
        if i % 10 == 9:
            a("s_waitcnt lgkmcnt(0)")
    for i in range(1, 40):
        a(f"v_add_f32 v64, v64, {v(64+i)}")
    a(f"s_mul_i32 s22, {s(S_DOM)}, 768")
    a(f"s_add_u32 s23, s22, {CS1}")
    a(f"s_add_u32 s22, s22, {CS1+384}")
    a(f"buffer_store_dword v64, v7, {WSR}, s23 offen")
    a("s_waitcnt vmcnt(1)")
    a("v_lshlrev_b32 v19, 16, v19")
    a(f"buffer_store_dword v19, v7, {WSR}, s22 offen")
    a("s_mov_b64 exec, -1")
    a(f"{lab}:")
    piece_finish(a, 34, 35)
    a.nop(2)
    piece_finish(a, 33, 32)


def gen_k1(a):
    name = "first_kernel"
    gen1.kernel_head(a, name, 256, [(8, 0, 2621440), (12, 1, 2457600), (16, 2, 819200), (36, 4, 1966080),
                                    (40, 6, 1966080), (44, 5, 3072)])
    a.lines.pop()
    lab = a.label("nocp")
    a(f"s_cmp_lg_u32 {s(S_W)}, 3")
    a(f"s_cbranch_scc1 {lab}")
    a("s_lshr_b32 s26, s2, 3")
    if OPT.get("cpf", 1):
        code_prefetch(a, 26)
    a(f"{lab}:")
    a("s_and_b32 s22, s2, 7")
    a("s_lshr_b32 s23, s2, 3")
    a("s_lshr_b32 s24, s22, 1")
    a("s_lshl_b32 s24, s24, 2")
    a("s_lshr_b32 s25, s23, 3")
    a(f"s_add_u32 {s(S_DOM)}, s24, s25")
    a("s_and_b32 s27, s22, 1")
    a("s_lshl_b32 s27, s27, 3")
    a("s_and_b32 s23, s23, 7")
    a("s_add_u32 s27, s27, s23")
    a(f"s_and_b32 s29, {s(S_W)}, 3")
    fin = a.label("fin")
    comp = a.label("comp")
    spare = a.label("spare")
    a("s_cmp_eq_u32 s27, 15")
    a(f"s_cbranch_scc1 {spare}")
    a(f"s_cmp_lt_u32 {s(S_W)}, 4")
    a(f"s_cbranch_scc1 {comp}")
    k1_helper(a)
    a(f"s_branch {fin}")
    a(f"{comp}:")
    a("s_waitcnt lgkmcnt(0)")
    if OPT.get("k1touch", 2) == 2:
        k1_touch(a)
    qkv_compute(a, None, None, None, None, None, None, lambda: None, "", fin, first=True)
    a(f"s_branch {fin}")
    a(f"{spare}:")
    a("s_waitcnt lgkmcnt(0)")
    if OPT.get("k1touch", 2):
        k1_touch(a)
    k1_spare(a)
    a("v_lshlrev_b32 v2, 3, v0")
    a("v_mov_b32 v4, 0")
    a("v_mov_b32 v5, 0")
    a(f"s_lshl_b32 s22, {s(S_DOM)}, 3")
    a(f"s_add_u32 s22, s22, {s(S_W)}")
    a("s_lshl_b32 s22, s22, 9")
    a(f"s_add_u32 s22, s22, {CNT}")
    a(f"buffer_store_dwordx2 v[4:5], v2, {WSR}, s22 offen")
    a(f"{fin}:")
    gen1.kernel_tail(a, name, 0)
    return name


def generate(profile=False):
    gen1.PROFILE = profile
    a = Asm()
    a("L_text_begin:")
    names = [gen_k1(a)]
    gen_chain(a)
    a("L_text_end:")
    names += ["chaina_kernel", "chainb_kernel"]
    body = a.text()
    probs = check_hazards(body)
    hdr = open("cdna_kernels/" + NAME + ".s.ref").read().split("; Override launch")[0]
    out = hdr
    for n in names:
        lds = {"pre": 32768}.get(n[:3], 163840)
        out += f"; @launch kernel={n} grid=(256,1,1) block=(512,1,1) lds={lds}\n"
    out += '.amdgcn_target "amdgcn-amd-amdhsa--gfx950"\n.text\n' + body
    out += '.section .rodata,"a"\n'
    for n in names:
        out += ".p2align 6\n" + gen1.descriptor(n)
    return out, probs


if __name__ == "__main__":
    prof = "--profile" in sys.argv
    for arg in sys.argv[2:]:
        if arg.startswith("st="):
            ACTIVE.extend(arg[3:].split(","))
        elif arg.startswith("s."):
            kk, vv = arg[2:].split("=")
            SCHED[kk] = vv.replace(",", " ")
        elif "=" in arg:
            OPT[arg.split("=")[0]] = int(arg.split("=")[1])
    if not ACTIVE:
        ACTIVE.extend("P0,B1,B4,B7,preRa,S2,womain,sig3,S3,E1,sig4,S4,m2main,sig5,S5,qkvmain".split(","))
    out, probs = generate(prof)
    for p in probs[:50]:
        print("HAZARD", p)
    print("hazards:", len(probs))
    path = sys.argv[1]
    if prof:
        out = "; stamps: " + ",".join(ACTIVE) + "\n" + out
    open(path, "w").write(out)
    print("wrote", path, len(out), "bytes")
```

```python
import math
import struct
import sys
from asmlib import Asm, v, s, check_hazards
import gen1
from gen1 import fhex, magic, sum_xor16, sum_xor32, ln_stats, EPS, QSCALE, NAME

K = 1024
WOT = 0
W1T = 800 * K
W2T = W1T + 1920 * K
WQT = W2T + 1920 * K
CSQ = WQT + 2560 * K
CP1 = CSQ + 8 * K
CNT = CP1 + 120 * K
SCR = CNT + 64 * K
SCR_STRIDE = 336 * K
R_O = 0
R_ST = 320 * K
KVQ = SCR + 8 * SCR_STRIDE
DOM_STRIDE = 480 * K
R_Q = 320 * K
B1SR = "s[88:91]"
XSR = "s[12:15]"
PROF = gen1.PROF
WS_END = gen1.WS_END

S_WS = 4
S_W = 20
S_X = 21
S_L = 50
S_I = 51
S_CNT = 52
S_DOM = 53
S_PURE = 54
S_XCC = 55
S_DBG = 56
S_SCR = 3
FORCE_IMPURE = False
WSR = s(S_WS, 4)

SYNC_LDS = 159 * K
ST = ""
LD = "sc1"
OPT = {}


ACTIVE = []
SCHED = {'a': 'w2*22', 'r': '', 'b': 'www', 'c': '', 'c3': 'w2*4', 'c6': 'w3*10', 'e': 'ww2', 'f': '', 'g0': '', 'g2': '', 'g4': '', 'g6': '', 'g8': '', 'g10': ''}


def stamp(a, name):
    if name in ACTIVE[:14]:
        gen1.stamp(a, ACTIVE.index(name))


def KVF():
    return "sc1" if OPT.get("kvsc1", 1) else ""


class Loader:
    def __init__(self, a):
        self.a = a
        self.ops = []

    def dma(self, tag, n, lds, s_src, src_off, s_ldsw, j0=0):
        a = self.a
        for j in range(n):
            if j % 4 == 0:
                a(f"s_add_u32 m0, {s(s_ldsw)}, {lds + (j0+j)*K}")
                a(f"s_add_u32 s24, {s(s_src)}, {src_off + (j0+j)*K}")
            fl = KVF() if (tag in ("p0b", "p1", "p2", "p3") or tag[0] == "c") else ""
            a(f"buffer_load_dwordx4 v2, {WSR}, s24 offen offset:{(j % 4)*K} {fl} lds")
            self.ops.append(tag)

    def other(self, tag):
        self.ops.append(tag)

    def wait(self, tag):
        last = max(i for i, t in enumerate(self.ops) if t == tag)
        n = len(self.ops) - 1 - last
        self.a(f"s_waitcnt vmcnt({min(n, 63)})")


def touch_items(a, L, base, nbytes, s_base, lines, vaddr, s_tmp, flags="", vd=28):
    pw = nbytes // 128
    assert pw % 128 == 0
    items = []
    off = 0
    while off < pw:
        n = min(lines, (pw - off) // 128)

        def f(off=off, n=n):
            if off == 0:
                a(f"s_lshl_b32 {s(s_tmp)}, {s(S_I)}, 2")
                a(f"s_add_u32 {s(s_tmp)}, {s(s_tmp)}, s29")
                a(f"s_mul_i32 {s(s_tmp)}, {s(s_tmp)}, {pw}")
                if s_base is not None:
                    a(f"s_add_u32 {s(s_tmp)}, {s(s_tmp)}, {s(s_base)}")
            a(f"s_add_u32 s24, {s(s_tmp)}, {base + off}")
            if n < 64:
                a(f"s_mov_b64 exec, {hex((1 << n) - 1)}" if n <= 31 else f"s_mov_b32 exec_hi, {hex((1 << (n-32)) - 1)}")
            a(f"buffer_load_dword {v(vd)}, {v(vaddr)}, {WSR}, s24 offen {flags}")
            L.other("pf")
            if n < 64:
                a("s_mov_b64 exec, -1")
        items.append(f)
        off += n * 128
    return items


FLG = 0x1000
COLD = []
PENDING = []


def flag_base(a, phase, s_tile, dst):
    a(f"s_lshl_b32 {s(dst)}, {s(S_X)}, 3")
    a(f"s_add_u32 {s(dst)}, {s(dst)}, {s(s_tile)}")
    a(f"s_lshl_b32 {s(dst)}, {s(dst)}, 6")
    a(f"s_add_u32 {s(dst)}, {s(dst)}, {s(S_CNT)}")
    a(f"s_add_u32 {s(dst)}, {s(dst)}, {phase*8192 + FLG}")


def signal(a, phase, last_count, s_tile, s_slot):
    imp = a.label("sigimp")
    back = a.label("sigback")
    flag_base(a, phase, s_tile, 100)
    a(f"s_lshl_b32 s23, {s(s_slot)}, 2")
    a("s_add_u32 s100, s100, s23")

    def fire():
        a("v_mov_b32 v8, 0")
        a("v_mov_b32 v9, 1")
        a(f"s_cmp_eq_u32 {s(S_PURE)}, 0")
        a("s_mov_b64 exec, 1")
        a("s_waitcnt vmcnt(0)")
        a(f"s_cbranch_scc1 {imp}")
        a(f"buffer_store_dword v9, v8, {WSR}, s100 offen")
        a(f"{back}:")
        a("s_mov_b64 exec, -1")
        stamp(a, f"sig{phase+2}")
    PENDING.append(fire)

    def cold():
        a(f"{imp}:")
        a(f"v_mov_b32 v8, {SYNC_LDS}")
        a(f"s_lshl_b32 s22, {s(S_DOM)}, 8")
        a(f"s_add_u32 s22, s22, {s(S_CNT)}")
        a(f"s_add_u32 s22, s22, {phase*8192}")
        a("ds_add_rtn_u32 v10, v8, v9")
        a("v_mov_b32 v8, 0")
        a("s_waitcnt lgkmcnt(0)")
        a(f"v_cmp_ne_u32 vcc, {last_count}, v10")
        a(f"s_cbranch_vccnz {back}")
        a("buffer_wbl2 sc1")
        a("s_waitcnt vmcnt(0)")
        a(f"buffer_atomic_add v9, v8, {WSR}, s22 offen sc1")
        a(f"s_branch {back}")
    COLD.append(cold)


NSUB = 4


def signal_global(a, last_count):
    skip = a.label("nosig")
    a(f"v_mov_b32 v8, {SYNC_LDS}")
    a("v_mov_b32 v9, 1")
    a(f"s_and_b32 s22, {s(S_I)}, 7")
    a(f"s_mul_i32 s22, s22, {NSUB}")
    a(f"s_and_b32 s23, {s(S_X)}, {NSUB-1}")
    a("s_add_u32 s22, s22, s23")
    a("s_lshl_b32 s22, s22, 8")
    a(f"s_add_u32 s22, s22, {s(S_CNT)}")
    a("s_mov_b64 exec, 1")
    a("s_waitcnt vmcnt(0)")
    a("ds_add_rtn_u32 v10, v8, v9")
    a("v_mov_b32 v8, 0")
    a("s_waitcnt lgkmcnt(0)")
    a(f"v_cmp_ne_u32 vcc, {last_count}, v10")
    a(f"s_cbranch_vccnz {skip}")
    a(f"buffer_atomic_add v9, v8, {WSR}, s22 offen sc1")
    a(f"{skip}:")
    a("s_mov_b64 exec, -1")


def wait_global(a):
    oth = a.label("spin")
    done = a.label("go")
    poll = a.label("poll")
    out = a.label("polled")
    a(f"v_mov_b32 v8, {SYNC_LDS+4}")
    a(f"s_cmp_lg_u32 {s(S_W)}, 0")
    a(f"s_cbranch_scc1 {oth}")
    a(f"s_mul_i32 s22, {s(S_X)}, {NSUB*256}")
    a(f"s_add_u32 s22, s22, {s(S_CNT)}")
    a("s_mov_b32 s23, 200000")
    a("v_lshlrev_b32 v9, 8, v0")
    a(f"s_mov_b64 exec, {(1 << NSUB) - 1}")
    a(f"{poll}:")
    a(f"buffer_load_dword v10, v9, {WSR}, s22 offen sc1")
    a("s_sub_u32 s23, s23, 1")
    a(f"s_cbranch_scc1 {out}")
    a("s_waitcnt vmcnt(0)")
    a(f"v_cmp_gt_u32 vcc, {32 // NSUB}, v10")
    a(f"s_cbranch_vccnz {poll}")
    a(f"{out}:")
    a("v_mov_b32 v9, 1")
    a("ds_write_b32 v8, v9")
    a(f"s_branch {done}")
    a(f"{oth}:")
    a("s_mov_b64 exec, 1")
    a("s_mov_b32 s23, 8000000")
    sp = a.label("sp")
    a(f"{sp}:")
    a("ds_read_b32 v9, v8")
    a("s_sub_u32 s23, s23, 1")
    a(f"s_cbranch_scc1 {done}")
    a("s_waitcnt lgkmcnt(0)")
    a("v_cmp_gt_u32 vcc, 1, v9")
    a(f"s_cbranch_vccnz {sp}")
    a(f"{done}:")
    a("s_waitcnt lgkmcnt(0)")
    a("s_mov_b64 exec, -1")


def wait_sync(a, phase, s_tile):
    poll = a.label("poll")
    out = a.label("polled")
    imp = a.label("pollimp")
    PENDING[-1]()
    flag_base(a, phase, s_tile, 22)
    a("s_mov_b32 s23, 200000")
    a("v_lshlrev_b32 v9, 2, v0")
    a(f"s_cmp_eq_u32 {s(S_PURE)}, 0")
    a(f"s_cbranch_scc1 {imp}")
    a("s_mov_b64 exec, 0xffff")
    a(f"{poll}:")
    a(f"buffer_load_dword v10, v9, {WSR}, s22 offen sc1")
    a("s_sub_u32 s23, s23, 1")
    a(f"s_cbranch_scc1 {out}")
    a("s_waitcnt vmcnt(0)")
    a("v_cmp_ne_u32 vcc, 1, v10")
    a(f"s_cbranch_vccnz {poll}")
    a(f"{out}:")
    a("s_waitcnt lgkmcnt(0)")
    a("s_mov_b64 exec, -1")

    def cold():
        poll2 = a.label("poll2")
        out2 = a.label("polled2")
        a(f"{imp}:")
        a(f"s_lshl_b32 s22, {s(S_DOM)}, 8")
        a(f"s_add_u32 s22, s22, {s(S_CNT)}")
        a(f"s_add_u32 s22, s22, {phase*8192}")
        a("s_mov_b64 exec, 1")
        a(f"{poll2}:")
        a(f"buffer_load_dword v10, v9, {WSR}, s22 offen sc1")
        a("s_sub_u32 s23, s23, 1")
        a(f"s_cbranch_scc1 {out2}")
        a("s_waitcnt vmcnt(0)")
        a("v_cmp_gt_u32 vcc, 16, v10")
        a(f"s_cbranch_vccnz {poll2}")
        a(f"{out2}:")
        a("s_waitcnt vmcnt(0)")
        a("buffer_inv sc1")
        a("s_waitcnt vmcnt(0)")
        a(f"s_branch {out}")
    COLD.append(cold)


def xcc_value(a):
    a(f"s_getreg_b32 {s(S_XCC)}, hwreg(HW_REG_XCC_ID)")
    a(f"s_and_b32 {s(S_XCC)}, {s(S_XCC)}, 7")
    a(f"s_mul_i32 s22, {s(S_XCC)}, {s(S_XCC)}")
    a("s_lshl_b32 s22, s22, 8")
    a(f"s_add_u32 s22, s22, {s(S_XCC)}")
    a("s_lshl_b32 s22, s22, 8")
    a(f"s_add_u32 {s(S_XCC)}, s22, 1")
    a(f"s_lshl_b32 s22, {s(S_X)}, 5")
    a("v_mov_b32 v26, s22")


def publish_xcc(a):
    lab = a.label("nopub")
    a(f"s_or_b32 s22, {s(S_W)}, {s(S_L)}")
    a(f"s_cbranch_scc1 {lab}")
    a(f"v_mov_b32 v8, {s(S_XCC)}")
    a("s_mov_b64 exec, 1")
    a(f"buffer_atomic_add v8, v26, {s(S_DBG,4)}, 0 offen sc1")
    a("s_mov_b64 exec, -1")
    a(f"{lab}:")


def purity_load(a):
    a(f"buffer_load_dword v27, v26, {s(S_DBG,4)}, 0 offen sc1")


def purity_check(a):
    lp = a.label("pur")
    ok = a.label("purok")
    a("s_mov_b32 s23, 200000")
    a(f"{lp}:")
    a("v_readfirstlane_b32 s22, v27")
    a("s_and_b32 s24, s22, 0xff")
    a("s_cmp_eq_u32 s24, 32")
    a(f"s_cbranch_scc1 {ok}")
    a(f"buffer_load_dword v27, v26, {s(S_DBG,4)}, 0 offen sc1")
    a("s_waitcnt vmcnt(0)")
    a("s_sub_u32 s23, s23, 1")
    a(f"s_cbranch_scc0 {lp}")
    a(f"{ok}:")
    a(f"s_lshl_b32 s24, {s(S_XCC)}, 5")
    a("s_cmp_eq_u32 s24, s22")
    a(f"s_cselect_b32 {s(S_PURE)}, {0 if FORCE_IMPURE else 1}, 0")


RB = 100 * K


STG = 160
W1_ADDR = [c * 12 * K for c in range(10)]
STA = 208
RESL = 240
C1_LDS = 158 * K
CQ_LDS = 153 * K
NQS = int(__import__('os').environ.get('NQS', 4))


def att_phase(a):
    SX, SY, O0, O1, VB, K16, K4, Q4, QA, IDX = 32, 64, 96, 112, 128, 144, 148, 150, 152, 30
    a(f"s_lshr_b32 s48, {s(S_I)}, 3")
    a(f"s_lshl_b32 s22, {s(S_X)}, 2")
    a("s_add_u32 s48, s48, s22")
    a(f"s_and_b32 s49, {s(S_I)}, 7")
    a("s_mul_i32 s26, s48, 10240")
    a(f"s_add_u32 s26, s26, {KVQ}")
    a("v_lshlrev_b32 v2, 4, v0")
    a(f"s_and_b32 s29, {s(S_W)}, 3")
    a(f"s_lshr_b32 s33, {s(S_W)}, 2")
    a("s_lshl_b32 s27, s29, 1")
    a("s_lshl_b32 s22, s49, 1")
    a("s_lshr_b32 s23, s29, 1")
    a("s_add_u32 s22, s22, s23")
    a(f"s_mul_i32 s22, s22, {DOM_STRIDE}")
    a("s_mul_i32 s28, s48, 5120")
    a("s_add_u32 s28, s28, s22")
    a("s_and_b32 s22, s29, 1")
    a("s_mul_i32 s22, s22, 2560")
    a("s_add_u32 s28, s28, s22")
    a(f"s_add_u32 s28, s28, {KVQ + R_Q}")
    a("s_mul_i32 s22, s33, 1280")
    a("s_add_u32 s36, s28, s22")
    a("s_sub_u32 s37, s28, s22")
    a("v_and_b32 v5, 31, v0")
    a("v_lshrrev_b32 v6, 5, v0")
    a("v_xor_b32 v7, s33, v6")
    a("v_mul_u32_u24 v7, 1280, v7")
    a("v_lshl_add_u32 v7, v5, 3, v7")
    LA, LB = Loader(a), Loader(a)
    for L in (LA, LB):
        for _ in range(4):
            L.other("q")

    def pair(L, tag, d, js):
        for jj in js:
            if jj < 2:
                a(f"s_lshl_b32 s30, s29, 10")
            else:
                a("s_and_b32 s30, s29, 1")
                a("s_lshl_b32 s30, s30, 10")
            a("s_add_u32 s31, s26, s30")
            L.dma(tag, 1, RB + d * 10240 + jj * 4 * K, 31, d * DOM_STRIDE + jj * 4 * K, 30)

    def first_loads(L):
        a(f"s_lshl_b32 s30, {s(S_W)}, 10")
        a(f"s_add_u32 m0, s30, {RB}")
        a("s_add_u32 s31, s26, s30")
        a(f"buffer_load_dwordx4 v2, {WSR}, s31 offen {KVF()} lds")
        a(f"buffer_load_dwordx4 {v(QA,4)}, v2, {WSR}, s36 offen {KVF()}")
        a(f"buffer_load_dwordx4 {v(QA+4,4)}, v2, {WSR}, s37 offen offset:1280 {KVF()}")
        a(f"buffer_load_dwordx2 {v(Q4,2)}, v7, {WSR}, s28 offen offset:1024 {KVF()}")
        lab = a.label("nl")
        a(f"s_cmp_lt_u32 {s(S_W)}, 4")
        a(f"s_cbranch_scc1 {lab}")
        pair(L, "p0b", 0, [2])
        a(f"{lab}:")

    def s1_sync(role):
        skip = a.label("nos1")
        a(f"s_cmp_eq_u32 {s(S_L)}, 0")
        a(f"s_cbranch_scc1 {skip}")
        S1C = CNT + 0x8000 + 3 * 8192
        if role == 0:
            ns = a.label("nsig1")
            a(f"v_mov_b32 v8, {SYNC_LDS+8}")
            a("v_mov_b32 v9, 1")
            a(f"s_and_b32 s22, {s(S_I)}, 15")
            a("s_lshl_b32 s22, s22, 8")
            a(f"s_add_u32 s22, s22, {S1C}")
            a("s_mov_b64 exec, 1")
            a("s_waitcnt vmcnt(0)")
            stamp(a, "drain1")
            a("ds_add_rtn_u32 v10, v8, v9")
            a("v_mov_b32 v8, 0")
            a("s_waitcnt lgkmcnt(0)")
            a("v_cmp_ne_u32 vcc, 3, v10")
            a(f"s_cbranch_vccnz {ns}")
            a(f"buffer_atomic_add v9, v8, {WSR}, s22 offen sc1")
            a(f"{ns}:")
            a("s_mov_b64 exec, -1")
            a("s_barrier")
        else:
            a("s_barrier")
            np_, pl = a.label("nopoll1"), a.label("poll1")
            a("s_cmp_lg_u32 s29, 0")
            a(f"s_cbranch_scc1 {np_}")
            a("s_mov_b32 s23, 200000")
            a(f"s_mov_b32 s22, {S1C}")
            a("s_mov_b64 exec, 15")
            a(f"{pl}:")
            a(f"buffer_load_dword v10, v31, {WSR}, s22 offen sc1")
            a("s_sub_u32 s23, s23, 1")
            a(f"s_cbranch_scc1 {np_}")
            a("s_waitcnt vmcnt(0)")
            a("v_cmp_gt_u32 vcc, 16, v10")
            a(f"s_cbranch_vccnz {pl}")
            a(f"{np_}:")
            a("s_mov_b64 exec, -1")
        a("s_barrier")
        stamp(a, "S1")
        first_loads(Loader(a))
        a(f"{skip}:")

    def steady():
        a("s_lshr_b32 s30, s29, 1")
        a(f"s_mul_i32 s31, s30, {DOM_STRIDE}")
        a("s_and_b32 s30, s29, 1")
        a("s_mul_i32 s30, s30, 5120")
        a("s_add_u32 s31, s31, s30")
        a("s_add_u32 s31, s31, s26")
        a("s_mul_i32 s30, s29, 5120")

    lab = a.label("l1st")
    a(f"s_cmp_lg_u32 {s(S_L)}, 0")
    a(f"s_cbranch_scc1 {lab}")
    a("s_waitcnt lgkmcnt(0)")
    first_loads(LB)
    a(f"{lab}:")
    a("v_mov_b32 v31, 0")
    for ln, (mul, add, sh, off) in enumerate(((43, 0, 8, 0), (43, 32 * 43, 8, 0), (20, 0, 7, 11), (20, 19, 7, 11))):
        a(f"s_mul_i32 s22, s48, {mul}")
        a(f"s_add_u32 s22, s22, {add}")
        a(f"s_lshr_b32 s22, s22, {sh}")
        a(f"s_add_u32 s22, s22, {off}")
        a("s_lshl_b32 s22, s22, 8")
        a(f"v_writelane_b32 v31, s22, {ln}")
    a("s_add_u32 s27, s27, s33")
    a("s_mov_b32 s34, 0")
    a("s_lshl_b32 s22, s33, 10")
    a(f"s_add_u32 s22, s22, {RB}")
    a("v_add_u32 v11, s22, v2")
    a("s_lshl_b32 s22, s33, 8")
    a(f"s_add_u32 s22, s22, {RB+2048}")
    a("v_mul_u32_u24 v3, 5120, v6")
    a("v_lshl_add_u32 v3, v5, 3, v3")
    a("v_add_u32 v3, s22, v3")
    a("s_mul_i32 s22, s33, 1280")
    a(f"s_add_u32 s22, s22, {RB+2560}")
    a("v_mul_u32_u24 v4, 320, v6")
    a("v_lshl_add_u32 v4, v5, 4, v4")
    a("v_add_u32 v4, s22, v4")
    a(f"v_mov_b32 {v(IDX)}, 0xdddddddd")
    a("v_mov_b32 v8, 0x3f803f80")
    a("v_cmp_eq_u32 vcc, 20, v5")
    a("s_mov_b32 s40, 0x000fffff")
    a("s_mov_b32 s41, 0x000fffff")
    for j in range(16):
        a(f"v_cndmask_b32 {v(VB+j)}, 0, v8, vcc")
    for j in range(32):
        a(f"v_mov_b32 {v(O0+j)}, 0")
    a(f"s_and_b32 s39, {s(S_I)}, 15")
    a(f"s_mul_i32 s39, s39, {120*K}")
    a("s_mul_i32 s22, s29, 3072")
    a("s_add_u32 s39, s39, s22")
    xcc_value(a)
    for reg, x in ((12, 0), (13, 4)):
        a(f"s_xor_b32 s24, {s(S_W)}, {x}")
        a("s_mul_i32 s22, s24, 3072")
        a("s_cmp_ge_u32 s24, 6")
        a(f"s_cselect_b32 s24, {22*K}, 0")
        a("s_add_u32 s22, s22, s24")
        a(f"s_add_u32 s22, s22, {RB}")
        a(f"v_add_u32 {v(reg)}, s22, v2")
    a(f"s_lshl_b32 s22, {s(S_W)}, 2")
    a(f"s_add_u32 s22, s22, {SYNC_LDS+64}")
    a("v_mov_b32 v23, s22")
    a("v_and_b32 v24, 7, v0")
    a("v_lshlrev_b32 v24, 2, v24")
    a(f"v_add_u32 v24, {SYNC_LDS+64}, v24")
    a(f"v_mov_b32 v25, {fhex(2.0**64)}")
    a("v_lshlrev_b32 v29, 7, v0")
    a("v_lshrrev_b32 v9, 4, v5")
    a(f"v_mul_u32_u24 v9, {20*K}, v9")
    a("v_and_b32 v10, 3, v5")
    a("v_bfe_u32 v17, v5, 2, 1")
    a("v_lshl_add_u32 v10, v17, 3, v10")
    a("v_bfe_u32 v17, v5, 3, 1")
    a("v_lshl_add_u32 v10, v17, 2, v10")
    a("v_lshl_add_u32 v20, v10, 4, v9")
    a("v_lshl_add_u32 v20, v6, 8, v20")
    a("s_lshl_b32 s22, s48, 9")
    a("v_add_u32 v20, s22, v20")
    a("v_lshl_add_u32 v21, v10, 3, v9")
    a("s_lshl_b32 s22, s48, 7")
    a(f"s_add_u32 s22, s22, {16*K}")
    a("v_add_u32 v21, s22, v21")
    a(f"s_mul_i32 s38, s27, {2*20*K}")
    a(f"s_mul_i32 s22, s49, {SCR_STRIDE}")
    a("s_add_u32 s38, s38, s22")
    a(f"s_add_u32 s38, s38, {SCR + R_O}")
    for r in range(16, 20):
        a(f"v_mov_b32 {v(r)}, 0")

    def sbase(j):
        return ((j // 4) % 3) * 20480 + (j % 4) * 5120

    def readK(j):
        if j % 2 == 0 or j == 1:
            a(f"ds_read_b64 {v(K4,2)}, v3 offset:{sbase(j & ~1)}")
        a(f"ds_read_b128 {v(K16,4)}, v11 offset:{sbase(j)}")

    def readV(j):
        a("s_mov_b64 exec, s[40:41]")
        for u in range(2):
            a(f"ds_read_b128 {v(VB+8*(j & 1)+4*u,4)}, v4 offset:{sbase(j)+640*u}")
        a("s_mov_b64 exec, -1")

    def qk2b(Y, j, C="0"):
        a(f"v_mfma_f32_32x32x4_2b_bf16 {v(Y,32)}, {v(K4,2)}, {v(Q4,2)}, {C} cbsz:1 abid:{j & 1}")

    def qk16(Y, t):
        a(f"v_mfma_f32_32x32x16_bf16 {v(Y+16*t,16)}, {v(K16,4)}, {v(QA+4*t,4)}, {v(Y+16*t,16)}")

    def pv(j, X, u):
        a(f"v_smfmac_f32_32x32x32_bf16 {v(O0+16*(u >> 1),16)}, {v(VB+8*(j & 1)+4*(u & 1),4)}, {v(X+8*u,8)}, {v(IDX)}")

    def w1_item(L, c, reg):
        def f():
            a(f"s_add_u32 s24, s39, {W1T + c*12*K}")
            for jj in range(3):
                a(f"buffer_load_dwordx4 {v(reg+4*jj,4)}, v2, {WSR}, s24 offen offset:{jj*K}")
                L.other("w1")
        return f

    def main(role):
        L = LB if role else LA
        sched = {}

        def at(j, slot, f, kind=None):
            if kind and OPT.get("dbg_no" + kind, 0):
                return
            sched.setdefault((j, slot), []).append(f)

        if role:
            at(-1, 0, lambda: pair(L, "p1", 1, [0, 1, 2]))
            at(-1, 1, lambda: pair(L, "p2", 2, [0, 1, 2]))
            at(0, 1, lambda: pair(L, "p3", 3, [0, 1, 2]))
            at(1, 0, steady)
            at(1, 0, lambda: L.dma(("c", 2), 3, RB + 2 * 20480, 31, 4 * DOM_STRIDE, 30))
            at(1, 1, lambda: L.dma(("c", 2), 2, RB + 2 * 20480, 31, 4 * DOM_STRIDE, 30, 3))
            for c in range(3, 8):
                j = 4 * (c - 2) - 2
                at(j, 1, lambda c=c: L.dma(("c", c), 3, RB + (c % 3) * 20480, 31, 2 * c * DOM_STRIDE, 30))
                at(j + 1, 0, lambda c=c: L.dma(("c", c), 2, RB + (c % 3) * 20480, 31, 2 * c * DOM_STRIDE, 30, 3))
            j0 = OPT.get("w1s", 4)
            steps = [j for j in range(j0, 30) if j % 4 in (0, 1)]
            for n in range(8):
                at(steps[n], 0, w1_item(L, 2 + n, STG + 12 * n), 'w1')

            def consts():
                a(f"s_and_b32 s22, {s(S_I)}, 15")
                a("s_lshl_b32 s24, s22, 9")
                a(f"s_add_u32 s24, s24, {CSQ}")
                a(f"s_mov_b32 m0, {CQ_LDS}")
                a("s_mov_b32 exec_hi, 0")
                a(f"buffer_load_dwordx4 v2, {WSR}, s24 offen lds")
                a("s_mov_b64 exec, -1")
                L.other("k")
            at(27, 0, consts)
        else:
            def wo_setup():
                a("s_mul_i32 s30, s29, 5120")
                a(f"s_and_b32 s32, {s(S_I)}, 7")
                a(f"s_mul_i32 s32, s32, {100*K}")
                a("s_add_u32 s32, s32, s30")
                a(f"s_lshl_b32 s42, {s(S_I)}, 2")
                a("s_add_u32 s42, s42, s29")
                a("s_lshl_b32 s44, s42, 7")
                a(f"s_add_u32 s44, s44, {s(S_SCR)}")
                a(f"s_add_u32 s44, s44, {R_ST}")
                a(f"s_lshl_b32 s22, {s(S_X)}, 7")
                a("s_add_u32 s42, s42, s22")
                a("s_mul_i32 s42, s42, 2560")
                a(f"s_lshl_b32 s22, {s(S_L)}, 31")
                a("s_or_b32 s42, s42, s22")
                a("s_or_b32 s44, s44, s22")
            at(0, 0, wo_setup)
            if OPT.get("cpf", 1):
                def cp():
                    lab = a.label("ncp")
                    a(f"s_cmp_lg_u32 {s(S_W)}, 3")
                    a(f"s_cbranch_scc1 {lab}")
                    code_prefetch(a, S_I, 31, 28)
                    a(f"{lab}:")
                at(OPT.get("cpfs", 24), 1, cp)
            j0 = OPT.get("wos", 1)
            for c in range(5):
                at(j0 + 2 * c, 0, lambda c=c: L.dma("wo", 2, c * 20480, 32, WOT + c * 20480, 30))
                at(j0 + 2 * c, 1, lambda c=c: L.dma("wo", 1, c * 20480, 32, WOT + c * 20480, 30, 2))
                at(j0 + 2 * c + 1, 0, lambda c=c: L.dma("wo", 2, c * 20480, 32, WOT + c * 20480, 30, 3))
            if OPT.get("warm", 1):
                for n in range(4):
                    def z(n=n):
                        if n >= 2:
                            a("s_mov_b64 exec, 0xff" if n == 3 else "s_mov_b32 exec_hi, 0")
                        if n < 3:
                            a(f"buffer_store_dwordx4 v[16:19], v2, {XSR}, s42 offen offset:{n*K} sc1")
                        else:
                            a(f"buffer_store_dwordx4 v[16:19], v2, {WSR}, s44 offen sc1")
                        if n >= 2:
                            a("s_mov_b64 exec, -1")
                        L.other("z")
                    at(OPT.get("zs", 6) + 2 * n, 1, z)
            at(12, 0, w1_item(L, 0, STA))
            at(14, 0, w1_item(L, 1, STA + 12))

            def resid():
                l1 = a.label("res1")
                lj = a.label("resj")
                a(f"s_cmp_lg_u32 {s(S_L)}, 0")
                a(f"s_cbranch_scc1 {l1}")
                for t in range(5):
                    a(f"buffer_load_dwordx2 {v(RESL+2*t,2)}, v233, s[8:11], s47 offen offset:{t*32}")
                a(f"s_branch {lj}")
                a(f"{l1}:")
                for t in range(5):
                    a(f"s_add_u32 s24, s46, {t*K}")
                    a(f"buffer_load_dwordx2 {v(RESL+2*t,2)}, v232, {XSR}, s24 offen sc1")
                a(f"{lj}:")
                for t in range(5):
                    L.other("r")
            at(16, 0, resid)
            a("v_and_b32 v172, 15, v0")
            a("v_min_u32 v172, 11, v172")
            a("v_lshrrev_b32 v173, 4, v0")
            a(f"v_mul_u32_u24 v173, {5*6144}, v173")
            a("v_lshl_add_u32 v173, v172, 3, v173")
            a("v_lshlrev_b32 v174, 2, v172")
            a("s_mul_i32 s22, s29, 96")
            a(f"s_add_u32 s22, s22, {C1_LDS}")
            a("v_lshl_add_u32 v172, v172, 3, s22")

            def c1load():
                a(f"s_and_b32 s22, {s(S_I)}, 15")
                a("s_lshl_b32 s22, s22, 2")
                a("s_add_u32 s22, s22, s29")
                a("s_mul_i32 s23, s22, 48")
                a("s_mul_i32 s22, s22, 96")
                a(f"buffer_load_dword v170, v174, s[96:99], s23 offen" if False else f"buffer_load_dword v170, v174, {B1SR}, s23 offen")
                L.other("c1")
                for n in range(5):
                    a(f"s_add_u32 s24, s22, {CP1 + n*6144}")
                    a(f"buffer_load_dwordx2 {v(160+2*n,2)}, v173, {WSR}, s24 offen")
                    L.other("c1")
            at(17, 1, c1load)

            def c1sum():
                L.wait("c1")
                for n in range(1, 5):
                    a(f"v_add_f32 v160, v160, {v(160+2*n)}")
                    a(f"v_add_f32 v161, v161, {v(161+2*n)}")
                a("v_and_b32 v171, 0xffff0000, v170")
                a("v_lshlrev_b32 v170, 16, v170")
                for sw in ("16", "32"):
                    a("v_mov_b32 v162, v160")
                    a("v_mov_b32 v163, v161")
                    a.nop(1)
                    a(f"v_permlane{sw}_swap_b32 v160, v162")
                    a(f"v_permlane{sw}_swap_b32 v161, v163")
                    a("v_add_f32 v160, v160, v162")
                    a("v_add_f32 v161, v161, v163")
                a("ds_write_b64 v172, v[160:161]")
                a("ds_write_b64 v172, v[170:171] offset:384")
                a("s_waitcnt lgkmcnt(0)")
            at(27, 0, c1sum)

            def tflag():
                a("v_lshrrev_b32 v31, 2, v0")
                a("v_lshlrev_b32 v31, 13, v31")
                a("v_and_b32 v27, 3, v0")
                a("v_lshl_add_u32 v31, v27, 7, v31")
                a(f"s_lshl_b32 s24, {s(S_X)}, 9")
                a(f"s_add_u32 s24, s24, {s(S_CNT)}")
                a(f"s_add_u32 s24, s24, {8192 + FLG}")
                a("s_mov_b64 exec, 0xfff")
                a(f"buffer_load_dword v28, v31, {WSR}, s24 offen sc1")
                a("s_mov_b64 exec, -1")
                L.other("pf")
            if OPT.get("tflag", 1):
                at(29, 0, tflag)
            g16_addr(a, 232, 233, 45, 46, 47)
            for n, f in enumerate(touch_items(a, L, W2T, 1966080, None, 12, 29, 43)):
                at(OPT.get("w2s", 18) + n, 0, f, 'w2')

        if OPT.get("warm", 1):
            def zo():
                a(f"s_lshl_b32 s24, {s(S_L)}, 31")
                a("s_or_b32 s24, s24, s38")
                a(f"buffer_store_dwordx4 v[16:19], v20, {WSR}, s24 offen sc1")
                a(f"buffer_store_dwordx2 v[16:17], v21, {WSR}, s24 offen sc1")
                L.other("zo")
                L.other("zo")
            at(3, 1, zo)

        def run(j, slot):
            for f in sched.pop((j, slot), []):
                f()

        s1_sync(role)
        L.wait("q")
        stamp(a, "P0")
        a("s_barrier")
        stamp(a, "P0b")
        readK(0)
        readV(0)
        run(-1, 0)
        a("s_waitcnt lgkmcnt(2)")
        qk2b(SX, 0)
        a.nop(18)
        qk16(SX, 0)
        qk16(SX, 1)
        if role:
            L.wait("p0b")
        a("s_barrier")
        readK(1)
        run(-1, 1)
        a.nop(9)
        for j in range(32):
            X, Y = (SX, SY) if j % 2 == 0 else (SY, SX)
            e = [0]
            flip = 16 if j == 31 else 0

            def E(n):
                for _ in range(n):
                    r = X + (e[0] ^ flip)
                    a(f"v_exp_f32 {v(r)}, {v(r)}")
                    e[0] += 1

            if j >= 7:
                a(f"s_setprio {3 - ((j+1) % 4)}")
            else:
                a(f"s_setprio {j % 2}")
            nxt = j < 31
            E(2)
            if j > 0:
                pv(j - 1, Y, 3)
            E(1)
            if nxt:
                readV(j + 1)
            E(2)
            if nxt:
                a("s_waitcnt lgkmcnt(2)")
                qk2b(Y, j + 1)
            E(8)
            if not nxt:
                a("s_waitcnt lgkmcnt(0)")
            pv(j, X, 0 if nxt else 2)
            E(1)
            run(j, 0)
            E(4)
            pv(j, X, 1 if nxt else 3)
            E(3)
            if nxt:
                qk16(Y, 1 if j == 30 else 0)
            E(3)
            if nxt:
                qk16(Y, 0 if j == 30 else 1)
            E(1)
            if j + 2 < 32:
                tag = {0: "p1", 2: "p2", 4: "p3"}.get(j)
                if tag is None and (j + 2) % 4 == 0:
                    tag = ("c", (j + 2) // 4)
                if tag is not None:
                    if role:
                        L.wait(tag)
                    elif j == 22 and OPT.get("warm", 1):
                        L.wait("z")
                    if (j + 2) % 4 == 0:
                        a("s_waitcnt lgkmcnt(0)")
                    a("s_barrier")
                    stamp(a, f"B{(j+2)//4}" if (j + 2) % 4 == 0 else f"b{j}")
                    if j == 22 and not role:
                        publish_xcc(a)
                    if j == 26 and role:
                        a(f"v_mov_b32 v8, {SYNC_LDS}")
                        a("ds_write_b128 v8, v[16:19]")
                        a("s_waitcnt lgkmcnt(0)")
                readK(j + 2)
            run(j, 1)
            if j == 29:
                purity_load(a)
            E(2)
            pv(j, X, 2 if nxt else 0)
            if nxt:
                E(5)
            else:
                E(3)
                for t in range(3):
                    a(f"ds_write_b128 v12, {v(O1+4*t,4)} offset:{t*K}")
                E(2)
            assert e[0] == 32
        assert not sched, sched.keys()
        a(f"v_cmp_nle_f32 vcc, {fhex(2.0**-64)}, {v(O1+8)}")
        a(f"v_cmp_nle_f32 s[36:37], {v(O1+8)}, v25")
        pv(31, SY, 1)
        a("s_setprio 0")
        stamp(a, "attend")

    red = a.label("red")
    rb = a.label("roleb")
    a(f"s_cmp_ge_u32 {s(S_W)}, 4")
    a(f"s_cbranch_scc1 {rb}")
    main(0)
    a(f"s_branch {red}")
    a(f"{rb}:")
    main(1)
    a(f"{red}:")
    a("s_or_b32 s35, vcc_hi, s37")
    a("s_waitcnt vmcnt(0)")
    purity_check(a)
    a.nop(3)
    a(f"v_cmp_nle_f32 vcc, {fhex(2.0**-64)}, {v(O0+8)}")
    a(f"v_cmp_nle_f32 s[36:37], {v(O0+8)}, v25")
    a("s_or_b32 s35, s35, vcc_hi")
    a("s_or_b32 s35, s35, s37")
    a("v_mov_b32 v8, s35")
    a("ds_write_b32 v23, v8")
    a("s_waitcnt lgkmcnt(0)")
    stamp(a, "preRa")
    a("s_barrier")
    stamp(a, "Ra")
    a("ds_read_b32 v8, v24")
    for t in (2, 0, 1):
        a(f"ds_read_b128 {v(O1+4*t,4)}, v13 offset:{t*K}")
    epi = a.label("epi")
    slow = a.label("slow")
    a("s_waitcnt lgkmcnt(3)")
    a("v_cmp_ne_u32 vcc, 0, v8")
    a(f"s_cbranch_vccnz {slow}")
    a(f"{epi}:")
    a("s_waitcnt lgkmcnt(2)")
    for p in (4, 5):
        a(f"v_pk_add_f32 {v(O0+2*p,2)}, {v(O0+2*p,2)}, {v(O1+2*p,2)}")
    a(f"v_mov_b32 v8, {v(O0+8)}")
    a(f"v_mov_b32 v10, {v(O0+8)}")
    a("s_waitcnt lgkmcnt(0)")
    for p in range(2):
        a(f"v_pk_add_f32 {v(O0+2*p,2)}, {v(O0+2*p,2)}, {v(O1+2*p,2)}")
    a("v_permlane32_swap_b32 v8, v10")
    a("v_rcp_f32 v10, v10")
    for p in range(2, 4):
        a(f"v_pk_add_f32 {v(O0+2*p,2)}, {v(O0+2*p,2)}, {v(O1+2*p,2)}")
    for p in range(6):
        a(f"v_pk_mul_f32 {v(O0+2*p,2)}, {v(O0+2*p,2)}, v[10:11] op_sel_hi:[1,0]")
    for p in range(6):
        a(f"v_cvt_pk_bf16_f32 {v(O0+p)}, {v(O0+2*p)}, {v(O0+2*p+1)}")
    a(f"buffer_store_dwordx4 {v(O0,4)}, v20, {WSR}, s38 offen sc1")
    a("s_mov_b32 exec_hi, 0")
    a(f"buffer_store_dwordx2 {v(O0+4,2)}, v21, {WSR}, s38 offen sc1")
    a("s_mov_b64 exec, -1")

    def slow_path():
        a(f"{slow}:")
        a("s_cmp_lg_u32 s34, 0")
        a(f"s_cbranch_scc1 {epi}")
        a("s_mov_b32 s34, 1")
        a("v_mov_b32 v14, 0xff800000")
        a("v_mov_b32 v15, 0xff800000")
        a("v_lshlrev_b32 v16, 3, v0")
        a("s_mov_b32 s36, s26")
        a("s_mov_b32 s37, 32")
        lp = a.label("maxloop")
        a(f"{lp}:")
        a(f"buffer_load_dwordx2 {v(K4,2)}, v16, {WSR}, s36 offen offset:2048 sc1")
        for kt in range(2):
            a(f"buffer_load_dwordx4 {v(K16,4)}, v2, {WSR}, s36 offen offset:{kt*K} sc1")
            a("s_waitcnt vmcnt(0)")
            qk2b(SX, kt)
            a.nop(18)
            qk16(SX, 0)
            qk16(SX, 1)
            a.nop(12)
            for j in range(8):
                a(f"v_max3_f32 v14, {v(SX+2*j)}, {v(SX+2*j+1)}, v14")
                a(f"v_max3_f32 v15, {v(SX+16+2*j)}, {v(SX+16+2*j+1)}, v15")
        a("s_bitcmp1_b32 s37, 0")
        a(f"s_cselect_b32 s22, {DOM_STRIDE - 10240}, 0")
        a("s_add_u32 s36, s36, s22")
        a("s_add_u32 s36, s36, 5120")
        a("s_sub_u32 s37, s37, 1")
        a("s_cmp_lg_u32 s37, 0")
        a(f"s_cbranch_scc1 {lp}")
        for r in (14, 15):
            a(f"v_mov_b32 v16, {v(r)}")
            a.nop(2)
            a(f"v_permlane32_swap_b32 {v(r)}, v16")
            a(f"v_max_f32 {v(r)}, {v(r)}, v16")
        a("s_waitcnt lgkmcnt(0)")
        for j in range(32):
            a(f"v_sub_f32 {v(SY+j)}, 0, {v(14 + j//16)}")
            a(f"v_mov_b32 {v(O0+j)}, 0")
        a(f"v_subrev_u32 v14, {RB}, v11")
        a(f"v_subrev_u32 v15, {RB}, v4")
        a("s_lshl_b32 s22, s33, 8")
        a("v_lshlrev_b32 v16, 3, v5")
        a("v_add_u32 v16, s22, v16")
        a("s_mov_b32 s36, s26")
        a("s_mov_b32 s37, 32")
        lp = a.label("pass2")
        a(f"{lp}:")
        a(f"buffer_load_dwordx2 {v(K4,2)}, v16, {WSR}, s36 offen offset:2048 sc1")
        a(f"buffer_load_dwordx4 {v(K16,4)}, v14, {WSR}, s36 offen sc1")
        a("s_mov_b64 exec, s[40:41]")
        a(f"buffer_load_dwordx4 {v(VB,4)}, v15, {WSR}, s36 offen sc1")
        a(f"buffer_load_dwordx4 {v(VB+4,4)}, v15, {WSR}, s36 offen offset:640 sc1")
        a("s_mov_b64 exec, -1")
        a("s_waitcnt vmcnt(0)")
        qk2b(SX, 0, v(SY, 32))
        a.nop(18)
        qk16(SX, 0)
        qk16(SX, 1)
        a.nop(12)
        for j in range(32):
            a(f"v_exp_f32 {v(SX+j)}, {v(SX+j)}")
        a.nop(2)
        for u in range(4):
            pv(0, SX, u)
        a("s_bitcmp1_b32 s37, 0")
        a(f"s_cselect_b32 s22, {DOM_STRIDE - 10240}, 0")
        a("s_add_u32 s36, s36, s22")
        a("s_add_u32 s36, s36, 5120")
        a("s_sub_u32 s37, s37, 1")
        a("s_cmp_lg_u32 s37, 0")
        a(f"s_cbranch_scc1 {lp}")
        a.nop(12)
        a("s_barrier")
        for t in range(3):
            a(f"ds_write_b128 v12, {v(O1+4*t,4)} offset:{t*K}")
        a(f"s_branch {red}")
    return slow_path


class Dumper:
    def __init__(self, a, s_part):
        self.a = a
        self.s_part = s_part
        self.m0 = None

    def reset(self):
        self.m0 = None

    def __call__(self, reg, addr):
        a = self.a
        if addr + K > 49152 + 65536:
            for r in range(4):
                a(f"ds_write_b32 v12, {v(reg+r)} offset:{addr - 65536 + 256*r}")
            return
        base = 0 if addr + K <= 65536 else 49152
        if self.m0 != base:
            a(f"s_add_u32 m0, {s(self.s_part)}, {base}")
            a("s_nop 0")
            self.m0 = base
        for r in range(4):
            a(f"ds_write_addtid_b32 {v(reg+r)} offset:{addr - base + 256*r}")


def g16_addr(a, vx, vr, s_tb, s_x, s_rm):
    a(f"s_lshr_b32 s22, {s(S_I)}, 3")
    a("s_lshl_b32 s22, s22, 2")
    a(f"s_and_b32 s23, {s(S_W)}, 1")
    a("s_lshl_b32 s23, s23, 1")
    a("s_add_u32 s22, s22, s23")
    a(f"s_lshr_b32 s23, {s(S_W)}, 1")
    a(f"s_add_u32 {s(s_tb)}, s22, s23")
    a(f"s_lshr_b32 {s(s_x)}, {s(s_tb)}, 1")
    a(f"s_mul_i32 {s(s_x)}, {s(s_x)}, {40*K}")
    a(f"s_and_b32 s22, {s(s_tb)}, 1")
    a("s_lshl_b32 s22, s22, 8")
    a(f"s_add_u32 {s(s_x)}, {s(s_x)}, s22")
    a(f"s_and_b32 s23, {s(S_I)}, 7")
    a(f"s_mul_i32 s22, s23, {5*K}")
    a(f"s_add_u32 {s(s_x)}, {s(s_x)}, s22")
    a(f"s_mul_i32 s22, {s(S_X)}, {320*K}")
    a(f"s_add_u32 {s(s_x)}, {s(s_x)}, s22")
    a(f"s_lshl_b32 {s(s_rm)}, {s(S_X)}, 4")
    a(f"s_add_u32 {s(s_rm)}, {s(s_rm)}, {s(s_tb)}")
    a(f"s_mul_i32 {s(s_rm)}, {s(s_rm)}, {16*1280}")
    a("s_mul_i32 s22, s23, 160")
    a(f"s_add_u32 {s(s_rm)}, {s(s_rm)}, s22")
    a("v_and_b32 v234, 15, v0")
    a("v_lshrrev_b32 v235, 4, v0")
    a("v_lshrrev_b32 v236, 5, v0")
    a("v_lshlrev_b32 v236, 9, v236")
    a(f"v_lshl_add_u32 {v(vx)}, v234, 4, v236")
    a("v_and_b32 v236, 1, v235")
    a(f"v_lshl_add_u32 {v(vx)}, v236, 3, {v(vx)}")
    a(f"v_mul_u32_u24 {v(vr)}, 1280, v234")
    a(f"v_lshl_add_u32 {v(vr)}, v235, 3, {v(vr)}")


G_ACC = 64
G_WB = 128
G_AW = 160
G_NW = 14
G_CR = 216
RES = 112
WQ_ADDR = [c * 16 * K for c in range(6)] + [120 * K, 136 * K, 100 * K, 0]
QKV_SCR = 152 * K


class Rec:
    def __init__(self):
        self.l = []

    def __call__(self, t):
        self.l.append(t)

    def nop(self, n):
        self.l.append(f"s_nop {n-1}")


def gemm32_main(a, NT, addr, bars, swap, s_act, s_st, ld, fill, WB=G_WB, tail=None):
    UP = OPT.get("up1", 8) if NT == 3 else OPT.get("upq", 12)
    loads = []
    ops = []
    WS_ = 4 * NT

    def act_load():
        k = len(loads)
        if k % 4 == 0:
            a(f"s_add_u32 s25, {s(s_act)}, {k*K}")
        a(f"buffer_load_dwordx4 {v(G_AW + 4*(k % G_NW), 4)}, v2, {XSR}, s25 offen offset:{(k % 4)*K} {ld}")
        loads.append(k)
        ops.append(k)

    lds = []

    def wread(k, t):
        off = addr[k // 4] + ((k % 4) * NT + t) * K
        a(f"ds_read_b128 {v(WB + WS_*(k & 1) + 4*t, 4)}, {v(2 + off // 65536)} offset:{off % 65536}")
        lds.append((k, t))

    for k in range(UP):
        if k in (0, 2, 4, 7):
            a(f"s_setprio {3 - (0, 2, 4, 7).index(k)}")
        act_load()
    a("s_setprio 0")
    a(f"buffer_load_dwordx4 v[8:11], v7, {WSR}, {s(s_st)} offen {ld}")
    a(f"buffer_load_dwordx4 v[12:15], v7, {WSR}, {s(s_st)} offen offset:16 {ld}")
    ops += ["s", "s"]
    assert 0 in bars
    a("s_barrier")
    for t in range(NT):
        wread(0, t)
    fill = list(fill)
    if OPT.get("nofill", 0):
        post = fill
        fill = []
    per = -(-len(fill) // (NT * (37 - UP)))
    for k in range(40):
        last = (k == 39)
        bar = (k % 4 == 3) and not last and ((k + 1) // 4 in bars)
        for t in range(NT):
            nl = min(15, len(lds) - 1 - lds.index((k, t)))
            if t == 0:
                a(f"s_waitcnt vmcnt({len(ops)-1-ops.index(k)}) lgkmcnt({nl})")
            else:
                a(f"s_waitcnt lgkmcnt({nl})")
            A_ = v(WB + WS_ * (k & 1) + 4 * t, 4)
            B_ = v(G_AW + 4 * (k % G_NW), 4)
            if swap:
                A_, B_ = B_, A_
            D_ = v(G_ACC + 16 * t, 16)
            a(f"v_mfma_f32_32x32x16_bf16 {D_}, {A_}, {B_}, {D_ if k else 0}")
            if not last:
                if bar and t == 0:
                    a("s_barrier")
                wread(k + 1, t)
            n = len(loads)
            rp = OPT.get("ramp32", 0)
            if n < 40 and ((t == NT - 1 and n - k <= G_NW) or (rp and t == 0 and n - k < G_NW and k % rp == 0)):
                act_load()
            if k >= UP or (fill and fill[0].startswith("ds_read") and k >= 1):
                for _ in range(per if k >= UP else 1):
                    if fill:
                        x = fill.pop(0)
                        a(x)
                        if x.startswith("ds_"):
                            lds.append("f")
            if last and t == 0 and tail:
                tail()
            if t == 0 and k % 4 == 0:
                stamp(a, f"g{NT}k{k}")
    assert not fill
    if OPT.get("nofill", 0):
        for x in post:
            a(x)
            if x.startswith("ds_"):
                a("s_waitcnt lgkmcnt(0)")


def g32_common(a, X, STAT):
    a(f"s_lshl_b32 s29, {s(S_DOM)}, 2")
    a(f"s_add_u32 s29, s29, {s(S_W)}")
    a("v_lshlrev_b32 v2, 4, v0")
    a("v_and_b32 v5, 31, v0")
    a("v_lshrrev_b32 v6, 5, v0")
    if X is None:
        return
    a("s_and_b32 s28, s29, 7")
    a(f"s_mul_i32 s30, s29, {40*K}")
    a("v_add_u32 v3, 0x10000, v2")
    a("v_add_u32 v4, 0x20000, v2")
    a("v_lshlrev_b32 v7, 6, v5")
    a("v_lshl_add_u32 v7, v6, 5, v7")
    a("s_lshl_b32 s31, s28, 11")
    a(f"s_add_u32 s31, s31, {s(S_SCR)}")
    a(f"s_add_u32 s31, s31, {STAT}")


MLP1_BARS = {0, 3, 6}
QKV_BARS = set(range(10))
MLP2_BARS = {0, 2, 4, 6, 8, 10}


def mlp1_compute(a):
    g32_common(a, 0, R_ST)
    a(f"s_and_b32 s27, {s(S_I)}, 15")
    a("v_lshlrev_b32 v16, 4, v6")
    a(f"v_add_u32 v16, {C1_LDS}, v16")
    CSR = [20 + 4 * (i % 6) for i in range(12)]
    BR = [216 + 4 * i for i in range(10)] + [152, 156]
    BIAS2 = 52
    a("v_lshrrev_b32 v62, 4, v0")
    a("v_lshlrev_b32 v62, 3, v62")
    a(f"s_and_b32 s33, {s(S_I)}, 7")
    a("s_mul_i32 s33, s33, 160")
    a("v_lshrrev_b32 v17, 4, v5")
    a(f"v_mul_u32_u24 v17, {48*K}, v17")
    a("v_and_b32 v18, 15, v5")
    a("v_lshl_add_u32 v17, v18, 4, v17")
    a("v_lshl_add_u32 v17, v6, 8, v17")
    a(f"s_mul_i32 s34, {s(S_W)}, {2*48*K}")
    a(f"s_mul_i32 s35, s27, {3*K}")
    a("s_add_u32 s34, s34, s35")
    a(f"s_mul_i32 s35, {s(S_DOM)}, {DOM_STRIDE}")
    a("s_add_u32 s34, s34, s35")
    a(f"s_add_u32 s34, s34, {KVQ}")
    k0 = -2.0 * math.sqrt(2.0 / math.pi) * math.log2(math.e)
    a(f"s_mov_b32 s36, {fhex(k0)}")
    a(f"s_mov_b32 s37, {fhex(k0)}")
    a(f"v_mov_b32 v18, {fhex(k0*0.044715)}")
    f = Rec()
    for j in range(12):
        f(f"ds_read_b128 {v(BR[j],4)}, v16 offset:{384 + (j//4)*128 + (j%4)*32}")
    for j in range(6):
        f(f"ds_read_b128 {v(CSR[j],4)}, v16 offset:{(j//4)*128 + (j%4)*32}")
    ln_stats(f, 8, True)
    f("v_mul_f32 v8, v8, v9")
    f("v_mov_b32 v10, v9")
    for j in range(12):
        for e in range(4):
            f(f"v_fma_f32 {v(BR[j]+e)}, -v8, {v(CSR[j]+e)}, {v(BR[j]+e)}")
        if j < 6:
            f(f"ds_read_b128 {v(CSR[j],4)}, v16 offset:{((j+6)//4)*128 + ((j+6)%4)*32}")

    def tail():
        for t in range(5):
            a(f"buffer_load_dwordx2 {v(BIAS2+2*t,2)}, v62, s[16:19], s33 offen offset:{t*32}")
    stamp(a, "preS3")
    wait_sync(a, 1, 28)
    stamp(a, "S3")
    gemm32_main(a, 3, W1_ADDR, MLP1_BARS, False, 30, 31, LD, f.l, tail=tail)
    stamp(a, "preE1")
    a("s_barrier")
    stamp(a, "E1")
    a.nop(8)
    TS = [20, 28, 36]
    stages = []
    for g in range(6):
        r = G_ACC + 8 * g
        T = TS[g % 3]
        A_, B_, C_ = [], [], []
        for p in range(4):
            b = BR[2 * g + p // 2] + 2 * (p % 2)
            A_.append(f"v_pk_fma_f32 {v(r+2*p,2)}, {v(r+2*p,2)}, v[10:11], {v(b,2)} op_sel_hi:[1,0,1]")
        for p in range(4):
            A_.append(f"v_pk_mul_f32 {v(T+2*p,2)}, {v(r+2*p,2)}, {v(r+2*p,2)}")
        for p in range(4):
            A_.append(f"v_pk_fma_f32 {v(T+2*p,2)}, {v(T+2*p,2)}, v[18:19], s[36:37] op_sel_hi:[1,0,1]")
        for p in range(4):
            A_.append(f"v_pk_mul_f32 {v(T+2*p,2)}, {v(T+2*p,2)}, {v(r+2*p,2)}")
        for e in range(8):
            A_.append(f"v_exp_f32 {v(T+e)}, {v(T+e)}")
        for p in range(4):
            B_.append(f"v_pk_add_f32 {v(T+2*p,2)}, {v(T+2*p,2)}, 1.0 op_sel_hi:[1,0]")
        for e in range(8):
            B_.append(f"v_rcp_f32 {v(T+e)}, {v(T+e)}")
        for p in range(4):
            C_.append(f"v_pk_mul_f32 {v(r+2*p,2)}, {v(r+2*p,2)}, {v(T+2*p,2)}")
        for p in range(4):
            C_.append(f"v_cvt_pk_bf16_f32 {v(r+p)}, {v(r+2*p)}, {v(r+2*p+1)}")
        C_.append(f"buffer_store_dwordx4 {v(r,4)}, v17, {WSR}, s34 offen offset:{(g//2)*K + (g%2)*512} {'sc1' if OPT.get('hsc1', 1) else ''}")
        stages.append((A_, B_, C_))
    for g in range(6):
        for part in stages[g]:
            for x in part:
                a(x)


def qkv_compute(a, X, STAT, addr, bars, sync, ld, fin, first=False, st=""):
    g32_common(a, X, STAT)
    CL = K1_CS if first else CQ_LDS
    a(f"s_lshr_b32 s33, {s(S_W)}, 1")
    a(f"s_mul_i32 s32, {s(S_DOM)}, {DOM_STRIDE}")
    a(f"s_add_u32 s32, s32, {KVQ}")
    a("s_and_b32 s34, s29, 1")
    vpath = a.label("vpath")
    a("s_cmp_ge_u32 s27, 11")
    a(f"s_cbranch_scc1 {vpath}")
    if first:
        k1_prologue(a, True)
    CR = [216 + 4 * i for i in range(10)] + [48, 52, 56, 60, 24]
    if first:
        CR = [188 + 4 * i for i in range(15)]
    a("v_lshlrev_b32 v16, 4, v6")
    a(f"v_add_u32 v16, {CL}, v16")
    crd = [f"ds_read_b128 {v(CR[i],4)}, v16 offset:{(i//4)*128 + (i%4)*32}" for i in range(15)]
    a("v_and_b32 v17, 0x13, v5")
    a("v_bfe_u32 v18, v5, 2, 1")
    a("v_lshl_add_u32 v17, v18, 3, v17")
    a("v_bfe_u32 v18, v5, 3, 1")
    a("v_lshl_add_u32 v17, v18, 2, v17")
    a("v_lshlrev_b32 v32, 4, v17")
    a("v_lshl_add_u32 v32, v6, 9, v32")
    a("v_lshlrev_b32 v17, 3, v17")
    a("s_mul_i32 s22, s33, 5120")
    a("s_add_u32 s22, s22, s32")
    a(f"s_sub_u32 s22, s22, {32*10240}")
    a("s_lshl_b32 s23, s34, 10")
    a("s_add_u32 s35, s22, s23")
    a("s_lshl_b32 s23, s34, 8")
    a("s_add_u32 s36, s22, s23")
    a("s_add_u32 s36, s36, 2048")
    a(f"s_mul_i32 s37, {s(S_W)}, 1280")
    a("s_add_u32 s37, s37, s32")
    a(f"s_add_u32 s37, s37, {R_Q}")
    a("s_add_u32 s38, s37, 1024")
    SA, SB, SC = [39, 42, 45], [41, 44, 47], [33, 34, 48]
    for g in range(3):
        a("s_mul_i32 s22, s27, 6")
        a(f"s_add_u32 s22, s22, {2*g}")
        a("s_movk_i32 s23, 5120")
        a("s_cmp_ge_u32 s22, 32")
        a("s_cselect_b32 s23, 10240, s23")
        a(f"s_cselect_b32 {s(SA[g])}, s35, s37")
        a(f"s_cselect_b32 {s(SB[g])}, s36, s38")
        a(f"s_cselect_b32 {s(SC[g])}, 1.0, {fhex(QSCALE)}")
        a("s_mul_i32 s24, s22, s23")
        a("s_cmp_ge_u32 s22, 64")
        a("s_cselect_b32 s24, 0x80000000, s24")
        a(f"s_add_u32 {s(SA[g])}, {s(SA[g])}, s24")
        a(f"s_add_u32 {s(SA[g]+1)}, {s(SA[g])}, s23")
        a(f"s_add_u32 {s(SB[g])}, {s(SB[g])}, s24")
        a(f"v_mad_u32_u24 {v(33+g)}, v6, s23, v17")

    def pr(i):
        return i // 4 if i < 12 else i - 12
    f = Rec()
    ln_stats(f, 8, False)
    for g in range(3):
        f(f"v_mul_f32 {v(36+2*g)}, {s(SC[g])}, v9")
        f(f"v_mul_f32 {v(42+2*g)}, -v8, {v(36+2*g)}")
    for i in range(15):
        for e in range(4):
            f(f"v_mul_f32 {v(CR[i]+e)}, {v(42+2*pr(i))}, {v(CR[i]+e)}")
    if first:
        sync()
        k1_main(a, False)
        for x in crd + f.l[:-60]:
            a(x)
        a("s_waitcnt lgkmcnt(0)")
        for i in range(15):
            for p in range(2):
                a(f"v_pk_mul_f32 {v(CR[i]+2*p,2)}, {v(CR[i]+2*p,2)}, {v(42+2*pr(i),2)} op_sel_hi:[1,0]")
    else:
        sync()
        gemm32_main(a, 4, addr, bars, False, 30, 31, ld, crd + f.l)
        a.nop(8)
    stamp(a, "qkvmain")
    for i in range(15):
        r = G_ACC + 4 * i
        d = G_ACC + 8 * (i // 2) + 2 * (i % 2) if i < 12 else r
        for p in range(2):
            a(f"v_pk_fma_f32 {v(r+2*p,2)}, {v(r+2*p,2)}, {v(36+2*pr(i),2)}, {v(CR[i]+2*p,2)} op_sel_hi:[1,0,1]")
        a(f"v_cvt_pk_bf16_f32 {v(d)}, {v(r)}, {v(r+1)}")
        a(f"v_cvt_pk_bf16_f32 {v(d+1)}, {v(r+2)}, {v(r+3)}")
        if i < 12 and i % 2:
            a(f"buffer_store_dwordx4 {v(d-2,4)}, v32, {WSR}, {s(SA[i//4] + (i//2) % 2)} offen {st}")
        elif i >= 12:
            a(f"buffer_store_dwordx2 {v(d,2)}, {v(33+i-12)}, {WSR}, {s(SB[i-12])} offen {st}")
    a(f"s_branch {fin}")
    a(f"{vpath}:")
    if first:
        k1_prologue(a, False)
    CV = 40
    RR = 216
    a("v_lshlrev_b32 v16, 2, v5")
    a(f"v_add_u32 v23, {CL}, v16")
    a("s_sub_u32 s35, s27, 11")
    a("s_lshl_b32 s46, s35, 7")
    a("s_mul_i32 s42, s33, 5120")
    a("s_mul_i32 s43, s34, 1280")
    a("s_add_u32 s42, s42, s43")
    a("s_add_u32 s42, s42, s32")
    a("s_add_u32 s42, s42, 2560")
    a("s_mov_b32 s47, 52429")
    a("s_movk_i32 s36, 10240")
    a("v_mul_u32_u24 v17, 320, v6")
    for t in range(4):
        a(f"s_add_u32 s48, s46, {32*t}")
        a("v_add_u32 v20, s48, v5")
        a("v_mul_u32_u24 v21, s47, v20")
        a("v_lshrrev_b32 v21, 20, v21")
        a("v_mul_u32_u24 v22, 20, v21")
        a("v_sub_u32 v22, v20, v22")
        a("v_mul_u32_u24 v21, s36, v21")
        a("v_lshl_add_u32 v21, v22, 4, v21")
        a(f"v_add_u32 {v(32+t)}, v21, v17")
    a(f"s_lshl_b32 s49, {s(S_W)}, 8")
    a(f"s_add_u32 s49, s49, {QKV_SCR}")
    a("v_add_u32 v18, s49, v16")
    a("v_lshlrev_b32 v19, 4, v6")
    a("v_add_u32 v19, s49, v19")
    f = Rec()
    for i in range(4):
        f(f"ds_read_b32 {v(CV+2*i)}, v23 offset:{i*128}")
    ln_stats(f, 8, False)
    f("v_mul_f32 v8, -v8, v9")
    f("ds_write_b32 v18, v9")
    f("ds_write_b32 v18, v8 offset:128")
    for gq in range(4):
        f(f"ds_read_b128 {v(RR+4*gq,4)}, v19 offset:{32*gq}")
        f(f"ds_read_b128 {v(RR+16+4*gq,4)}, v19 offset:{128+32*gq}")
    sync()
    if first:
        k1_main(a, True)
        for x in f.l:
            a(x)
        a("s_waitcnt lgkmcnt(0)")
    else:
        gemm32_main(a, 4, addr, bars, True, 30, 31, ld, f.l)
        a.nop(8)
    stamp(a, "qkvmain")
    for t in range(4):
        r = G_ACC + 16 * t
        for p in range(8):
            a(f"v_pk_mul_f32 {v(r+2*p,2)}, {v(r+2*p,2)}, {v(RR+2*p,2)}")
        for p in range(8):
            a(f"v_pk_fma_f32 {v(r+2*p,2)}, {v(RR+16+2*p,2)}, {v(CV+2*t,2)}, {v(r+2*p,2)} op_sel_hi:[1,0,1]")
        for p in range(8):
            a(f"v_cvt_pk_bf16_f32 {v(r+p)}, {v(r+2*p)}, {v(r+2*p+1)}")
        a(f"buffer_store_dwordx4 {v(r,4)}, {v(32+t)}, {WSR}, s42 offen {st}")
        a(f"buffer_store_dwordx4 {v(r+4,4)}, {v(32+t)}, {WSR}, s42 offen offset:640 {st}")


def g16_compute(a, mlp2, fin):
    KS = 48 if mlp2 else 20
    STO = R_ST
    CB = 20 * K
    RED = 100 * K if mlp2 else 128 * K
    ACC, WB, AW, NW = 16, 56, 128, (13 if mlp2 else 10)
    RF = 232 if mlp2 else 96
    RS = RES if mlp2 else RESL
    UP = OPT.get("up2", 6) if mlp2 else OPT.get("upo", 6)
    g16_addr(a, 7, 15, 34, 35, 42)
    a(f"s_and_b32 s27, {s(S_I)}, 7")
    a(f"s_lshr_b32 s30, {s(S_W)}, 1")
    a("s_xor_b32 s31, s34, 1")
    a("s_lshl_b32 s22, s30, 10")
    if mlp2:
        a(f"s_mul_i32 s23, {s(S_DOM)}, {DOM_STRIDE}")
        a("s_add_u32 s22, s22, s23")
        a(f"s_and_b32 s23, {s(S_DOM)}, 1")
        a(f"s_mul_i32 s23, s23, {8*48*K}")
        a(f"s_add_u32 s22, s22, {KVQ}")
        a("s_sub_u32 s22, s22, s23")
    else:
        a(f"s_add_u32 s22, s22, {s(S_SCR)}")
    a(f"s_mul_i32 s32, s34, {KS*K}")
    a("s_add_u32 s32, s32, s22")
    a(f"s_mul_i32 s33, s31, {KS*K}")
    a("s_add_u32 s33, s33, s22")
    a(f"s_mul_i32 s38, s30, {5*K}")
    a("v_add_u32 v12, s38, v2")
    a("v_add_u32 v13, 0x10000, v12")
    a("v_add_u32 v14, 0x20000, v12")
    a(f"s_mul_i32 s39, {s(S_W)}, 5120")
    a(f"s_add_u32 s39, s39, {RED}")
    a("v_add_u32 v3, s39, v2")
    a(f"s_xor_b32 s40, {s(S_W)}, 2")
    a("s_mul_i32 s40, s40, 5120")
    a(f"s_add_u32 s40, s40, {RED}")
    a("v_add_u32 v4, s40, v2")
    a("s_add_u32 s37, s35, 4096")
    a("s_lshl_b32 s43, s34, 10")
    a("s_lshl_b32 s44, s27, 3")
    a("s_add_u32 s43, s43, s44")
    a(f"s_add_u32 s43, s43, {s(S_SCR)}")
    a(f"s_add_u32 s43, s43, {STO}")
    a("s_lshr_b32 s45, s34, 1")
    a("s_lshl_b32 s46, s27, 1")
    a("s_add_u32 s46, s46, s30")
    a("v_lshlrev_b32 v1, 6, v234")
    a("v_and_b32 v236, 1, v235")
    a("v_mul_u32_u24 v5, 1016, v236")
    a("v_add_u32 v5, v5, v7")
    if not mlp2:
        a("v_lshlrev_b32 v6, 8, v235")
        a("v_lshl_add_u32 v6, v234, 3, v6")
    else:
        a("v_mul_u32_u24 v6, 24, v236")
        a("v_add_u32 v6, v6, v15")
    if mlp2:
        a("s_waitcnt vmcnt(6)")
    for jx in range(10):
        a(f"v_lshlrev_b32 {v(RF+2*jx)}, 16, {v(RS+jx)}")
        a(f"v_and_b32 {v(RF+2*jx+1)}, 0xffff0000, {v(RS+jx)}")
        if mlp2:
            a(f"v_lshlrev_b32 v10, 16, {v(52+jx)}")
            a(f"v_and_b32 v11, 0xffff0000, {v(52+jx)}")
            a(f"v_pk_add_f32 {v(RF+2*jx,2)}, {v(RF+2*jx,2)}, v[10:11]")
    if mlp2:
        wait_sync(a, 2, 45)
        stamp(a, "S4")
    else:
        stamp(a, "preS2")
        wait_global(a)
        stamp(a, "S2")
    nk = KS // 2
    loads = []
    ops = []

    def act_load():
        n = len(loads)
        i, tt = n // 2, n % 2
        if i % 2 == 0:
            a(f"s_add_u32 {s(24+tt)}, {s(32+tt)}, {i*2048}")
        r = AW + 8 * (i % NW) + 4 * tt
        if not mlp2 and i >= 8:
            for e in range(2):
                a(f"buffer_load_dwordx2 {v(r+2*e, 2)}, v6, {WSR}, {s(24+tt)} offen offset:{(i % 2)*2048 + e*128} {LD}")
            ops.append((i, tt, 0))
        else:
            a(f"buffer_load_dwordx4 {v(r, 4)}, v2, {WSR}, {s(24+tt)} offen offset:{(i % 2)*2048} {LD}")
        ops.append((i, tt))
        loads.append((i, tt))

    def wread(i, t):
        c = i // 2
        off = (c % 7) * CB + (i % 2) * 10240 + t * K
        a(f"ds_read_b128 {v(WB + 20*(i & 1) + 4*t, 4)}, {v(12 + off // 65536)} offset:{off % 65536}")

    for n in range(2 * UP):
        if n in (0, 2, 4, 8):
            a(f"s_setprio {3 - (0, 2, 4, 8).index(n)}")
        act_load()
    a("s_setprio 0")
    if mlp2:
        a("s_barrier")
    for t in range(5):
        wread(0, t)
    a("v_mov_b32 v8, 0")
    a("v_mov_b32 v9, 0")
    a("v_mov_b32 v11, 0x3f803f80")
    for i in range(nk):
        last = (i == nk - 1)
        bar = mlp2 and (i % 2 == 1) and not last and ((i + 1) // 2 in MLP2_BARS)
        order = [(t, tt) for t in range(5) for tt in range(2)]
        if last:
            order = [(t, 1) for t in range(5)] + [(t, 0) for t in range(5)]
        seen_t, seen_tt = set(), set()
        for t, tt in order:
            w = []
            if tt not in seen_tt:
                after = len(ops) - 1 - ops.index((i, tt))
                w.append(f"vmcnt({min(after,63)})")
                seen_tt.add(tt)
            if t not in seen_t:
                w.append(f"lgkmcnt({4 if not last else 4-t})")
                seen_t.add(t)
            if w:
                a("s_waitcnt " + " ".join(w))
            D_ = v(ACC + 20 * tt + 4 * t, 4)
            C_ = D_ if i else (v(RF + 4 * t, 4) if tt == 0 else "0")
            a(f"v_mfma_f32_16x16x32_bf16 {D_}, {v(WB + 20*(i & 1) + 4*t, 4)}, {v(AW + 8*(i % NW) + 4*tt, 4)}, {C_}")
            if not last and tt == 1:
                if bar and t == 0:
                    stamp(a, f"m2p{(i+1)//2}")
                    a("s_barrier")
                    stamp(a, f"m2b{(i+1)//2}")
                wread(i + 1, t)
                extra = (t == 4 and i % 2 == 0 and OPT.get("ramp", 0))
                if (t in (1, 3) or extra) and len(loads) < 2 * nk and len(loads) // 2 - i < NW:
                    act_load()
    stamp(a, "m2main" if mlp2 else "womain")
    for t in range(5):
        a(f"ds_write_b128 v3, {v(ACC+20+4*t,4)} offset:{t*K}")
    a("s_waitcnt lgkmcnt(0)")
    stamp(a, "preRm" if mlp2 else "preRw")
    a("s_barrier")
    stamp(a, "Rm" if mlp2 else "Rw")
    for t in range(5):
        a(f"ds_read_b128 {v(WB+4*t,4)}, v4 offset:{t*K}")
    lastl = a.label("lastl")
    if mlp2:
        a(f"s_cmp_lg_u32 {s(S_L)}, 0")
        a(f"s_cbranch_scc1 {lastl}")

    def fin_tile(t):
        r = ACC + 4 * t
        a(f"s_waitcnt lgkmcnt({4-t})")
        for p in range(2):
            a(f"v_pk_add_f32 {v(r+2*p,2)}, {v(r+2*p,2)}, {v(WB+4*t+2*p,2)}")
        a(f"v_cvt_pk_bf16_f32 {v(RES+2*t)}, {v(r)}, {v(r+1)}")
        a(f"v_cvt_pk_bf16_f32 {v(RES+2*t+1)}, {v(r+2)}, {v(r+3)}")

    SW = WB + 20

    def widen(p):
        r = RES + 4 * p
        a(f"v_pk_mov_b32 {v(SW+4*p,2)}, {v(r,2)}, {v(r,2)} op_sel:[0,1]")
        a(f"v_pk_mov_b32 {v(SW+4*p+2,2)}, {v(r+2,2)}, {v(r+2,2)} op_sel:[0,1]")
        a.nop(2)
        a(f"v_permlane16_swap_b32 {v(SW+4*p)}, {v(SW+4*p+2)}")
        a(f"v_permlane16_swap_b32 {v(SW+4*p+1)}, {v(SW+4*p+3)}")

    xs = 'sc1' if OPT.get('xsc1', 0) else ''
    for t in range(5):
        fin_tile(t)
        if t % 2:
            widen(t // 2)
            a(f"buffer_store_dwordx4 {v(SW+4*(t//2),4)}, v5, {XSR}, s35 offen offset:{(t-1)*K} {xs}")
        if t == 4:
            a(f"buffer_store_dwordx2 {v(RES+2*t,2)}, v7, {XSR}, s37 offen {xs}")
    for jx in range(10):
        a(f"v_dot2_f32_bf16 v8, {v(RES+jx)}, v11, v8")
        a(f"v_dot2_f32_bf16 v9, {v(RES+jx)}, {v(RES+jx)}, v9")
    a.nop(2)
    a("v_mov_b32 v10, v8")
    a("v_mov_b32 v11, v9")
    a.nop(1)
    a("v_permlane16_swap_b32 v8, v10")
    a("v_permlane16_swap_b32 v9, v11")
    a("v_pk_add_f32 v[8:9], v[8:9], v[10:11]")
    a("v_pk_mov_b32 v[10:11], v[8:9], v[8:9] op_sel:[0,1]")
    a.nop(2)
    a("v_permlane32_swap_b32 v8, v10")
    a("v_permlane32_swap_b32 v9, v11")
    a("v_pk_add_f32 v[8:9], v[8:9], v[10:11]")
    a("s_mov_b64 exec, 0xffff")
    a(f"buffer_store_dwordx2 v[8:9], v1, {WSR}, s43 offen {ST}")
    a("s_mov_b64 exec, -1")

    def last_layer():
        a(f"{lastl}:")
        for t in range(5):
            fin_tile(t)
            if t % 2:
                widen(t // 2)
                a(f"buffer_store_dwordx4 {v(SW+4*(t//2),4)}, v6, s[12:15], s42 offen offset:{(t-1)*32}")
            if t == 4:
                a(f"buffer_store_dwordx2 {v(RES+2*t,2)}, v15, s[12:15], s42 offen offset:{t*32}")
        a(f"s_branch {fin}")
    return last_layer


def helper_chain(a, fin):
    def w2reg(k):
        return 16 + 4 * ((k + 1) % 60)
    WQR = 20
    a(f"s_and_b32 s29, {s(S_W)}, 3")
    a("s_mul_i32 s30, s29, 5120")
    a(f"s_and_b32 s31, {s(S_I)}, 7")
    a(f"s_mul_i32 s31, s31, {240*K}")
    a("s_add_u32 s31, s31, s30")
    a("s_mul_i32 s32, s29, 3072")
    a("s_lshl_b32 s33, s29, 12")
    a(f"s_and_b32 s34, {s(S_I)}, 15")
    a(f"s_mov_b32 s35, {s(S_L)}")
    a(f"s_mul_i32 s34, s34, {160*K}")
    a("s_add_u32 s34, s34, s33")
    a("s_lshl_b32 s22, s35, 31")
    a("s_or_b32 s38, s34, s22")
    a("v_lshlrev_b32 v12, 2, v0")
    a("v_add_u32 v12, s30, v12")
    a("v_add_u32 v12, 0x10000, v12")
    a("v_lshlrev_b32 v15, 7, v0")
    L = Loader(a)
    n2 = [0]
    nq = [0]

    def w2(n, depth):
        for _ in range(n):
            k = n2[0]
            if k >= 60:
                return
            a(f"s_add_u32 s24, s31, {W2T + (k//5)*20*K + (k % 5)*K}")
            a(f"buffer_load_dwordx4 {v(w2reg(k),4)}, v2, {WSR}, s24 offen")
            L.other(("w2", k))
            if depth:
                a(f"s_waitcnt vmcnt({depth-1})")
            n2[0] += 1

    def wq(n):
        for _ in range(n):
            k = nq[0]
            if k >= 4 * NQS:
                return
            a(f"s_add_u32 s24, s38, {WQT + (k//4)*16*K + (k % 4)*K}")
            a(f"buffer_load_dwordx4 {v(WQR+4*k,4)}, v2, {WSR}, s24 offen")
            L.other(("wq", k))
            nq[0] += 1

    th, tx, ty = [], [], []
    a(f"s_lshl_b32 s39, {s(S_L)}, 31")
    tq = touch_items(a, L, WQT, 2560 * K, 39, OPT.get("tql", 15), 15, 40, vd=14)

    def run(spec):
        for tok in spec.split():
            body, _, n = tok.partition("*")
            for _ in range(int(n or 1)):
                for ch in body:
                    if ch == "w":
                        w2(1, 0)
                    elif ch == "q":
                        wq(1)
                    elif ch in "hxyt":
                        lst = {"h": th, "x": tx, "y": ty, "t": tq}[ch]
                        if lst:
                            lst.pop(0)()
                    elif ch == "B":
                        lab = a.label("nowb")
                        a(f"s_and_b32 s22, {s(S_I)}, 15")
                        a("s_lshl_b32 s22, s22, 2")
                        a("s_add_u32 s22, s22, s29")
                        a("s_cmp_lg_u32 s22, 63")
                        a(f"s_cbranch_scc1 {lab}")
                        a("buffer_wbl2 sc1")
                        a(f"{lab}:")
                    else:
                        a(f"s_waitcnt vmcnt({ch})")

    run(SCHED["a"])
    stamp(a, "preRw")
    a("s_barrier")
    stamp(a, "Rw")
    run(SCHED["r"])
    assert n2[0] <= 35
    D = Dumper(a, 32)
    for k in range(24):
        D(STG + 4 * k, W1_ADDR[2 + k // 3] + (k % 3) * K)
    a("s_waitcnt lgkmcnt(0)")
    run(SCHED["b"])
    stamp(a, "preS3")
    a("s_barrier")
    stamp(a, "S3")
    run(SCHED["c"])
    gd = a.label("gdone")
    gp = a.label("gpoll")
    a("s_cmp_lg_u32 s29, 0")
    a(f"s_cbranch_scc1 {gd}")
    a("s_mov_b32 s23, 200000")
    a("v_lshlrev_b32 v9, 8, v0")
    a("s_mov_b32 exec_hi, 0")
    a(f"{gp}:")
    a(f"buffer_load_dword v10, v9, {WSR}, {s(S_CNT)} offen sc1")
    a("s_sub_u32 s23, s23, 1")
    a(f"s_cbranch_scc1 {gd}")
    a("s_waitcnt vmcnt(0)")
    a(f"v_cmp_gt_u32 vcc, {32 // NSUB}, v10")
    a(f"s_cbranch_vccnz {gp}")
    a(f"{gd}:")
    a("s_mov_b64 exec, -1")
    a("s_barrier")
    run(SCHED["c3"])
    a("s_barrier")
    run(SCHED["c6"])
    assert n2[0] >= 35
    stamp(a, "preE1")
    a("s_barrier")
    stamp(a, "E1")
    D = Dumper(a, 30)

    def dump2(c):
        L.wait(("w2", 5 * c + 4))
        for jj in range(5):
            D(w2reg(5 * c + jj), (c % 7) * 20 * K + jj * K)

    for c in range(7):
        run(SCHED["e"])
        dump2(c)
    a("s_waitcnt lgkmcnt(0)")
    run(SCHED["f"])
    stamp(a, "sig4")
    a("s_barrier")
    stamp(a, "S4")
    run(SCHED["g0"])
    w2(60, 0)
    a(f"s_setprio {OPT.get('hprio', 0)}")
    for b, (k0, k1) in ((2, (35, 40)), (4, (40, 47)), (6, (47, 54)), (8, (54, 60)), (10, (60, 60))):
        stamp(a, f"m2p{b}")
        a("s_barrier")
        stamp(a, f"m2b{b}")
        if k1 > k0:
            L.wait(("w2", k1 - 1))
        for k in range(k0, k1):
            D(w2reg(k), ((k // 5) % 7) * 20 * K + (k % 5) * K)
        run(SCHED[f"g{b}"])
        a("s_waitcnt lgkmcnt(0)")
    a("s_setprio 0")
    wq(24)
    a("s_barrier")
    a("s_cmp_lg_u32 s35, 0")
    a(f"s_cbranch_scc1 {fin}")
    a("s_waitcnt vmcnt(0)")
    D = Dumper(a, 33)
    for k in range(4 * NQS):
        D(WQR + 4 * k, WQ_ADDR[k // 4] + (k % 4) * K)
    a("s_waitcnt lgkmcnt(0)")
    a("s_barrier")
    L = Loader(a)

    def dq(c):
        if NQS <= c < 10:
            L.dma(("wq", c), 4, WQ_ADDR[c], 34, WQT + c * 16 * K, 33)

    def wt(c):
        if c >= NQS:
            L.wait(("wq", c))
    LEAD = NQS
    for c in range(10):
        if c:
            wt(c)
            a("s_barrier")
        dq(c + LEAD)
    if not OPT.get("kvsc1", 1):
        lab = a.label("noinv")
        a("s_cmp_lg_u32 s29, 3")
        a(f"s_cbranch_scc1 {lab}")
        a("buffer_inv sc1")
        a("s_waitcnt vmcnt(0)")
        a(f"{lab}:")


def roles(a):
    a(f"s_and_b32 {s(S_X)}, s2, 7")
    a(f"s_lshr_b32 {s(S_I)}, s2, 3")
    a(f"s_lshr_b32 s22, {s(S_I)}, 4")
    a(f"s_lshl_b32 {s(S_DOM)}, {s(S_X)}, 1")
    a(f"s_add_u32 {s(S_DOM)}, {s(S_DOM)}, s22")


def prof_dump(a, kidx):
    if not gen1.PROFILE:
        return
    a("s_memrealtime s[98:99]")
    a("s_memtime s[92:93]")
    a("s_waitcnt lgkmcnt(0)")
    a("v_mov_b32 v9, 0")
    for i in range(16):
        a(f"v_writelane_b32 v9, s{60+2*i}, {i}")
    a("v_writelane_b32 v9, s92, 16")
    a("v_writelane_b32 v9, s96, 17")
    a("v_writelane_b32 v9, s98, 18")
    a("v_writelane_b32 v9, s94, 19")
    a("s_lshl_b32 s22, s2, 3")
    a(f"s_add_u32 s22, s22, {s(S_W)}")
    a("s_lshl_b32 s22, s22, 7")
    a(f"s_add_u32 s22, s22, {PROF + kidx*256*8*128}")
    a("v_lshlrev_b32 v8, 2, v0")
    a("s_mov_b32 exec_hi, 0")
    a(f"buffer_store_dword v9, v8, {WSR}, s22 offen")
    a("s_mov_b64 exec, -1")
    a("s_mov_b32 s96, s98")
    for i in range(14):
        a(f"s_mov_b32 s{60+2*i}, 0")


def gen_chain(a):
    a(".globl chain_kernel")
    a(".p2align 8")
    a(".type chain_kernel,@function")
    a("chain_kernel:")
    a(f"s_mov_b32 {s(S_L)}, 0")
    name = "chain"
    if gen1.PROFILE:
        a("s_memrealtime s[96:97]")
        a("s_memtime s[94:95]")
        for i in range(16):
            a(f"s_mov_b32 s{60+2*i}, 0")
    a("s_cmp_ge_u32 s2, 256")
    a(f"s_cbranch_scc1 L_end_{name}")
    gen1.load_srd(a, S_WS, 10, WS_END)
    gen1.load_srd(a, 8, 0, 2621440)
    gen1.load_srd(a, 12, 8, 2621440)
    gen1.load_srd(a, 16, 7, 1280)
    gen1.load_srd(a, S_DBG, 9, 256)
    gen1.load_srd(a, 88, 5, 3072)
    a("v_lshrrev_b32 v1, 6, v0")
    a("v_and_b32 v0, 63, v0")
    a(f"v_readfirstlane_b32 {s(S_W)}, v1")
    roles(a)
    a(f"s_mov_b32 {s(S_CNT)}, {CNT}")
    a(f"s_mul_i32 {s(S_SCR)}, {s(S_X)}, {SCR_STRIDE}")
    a(f"s_add_u32 {s(S_SCR)}, {s(S_SCR)}, {SCR}")
    a("L_layer:")
    slow_path = att_phase(a)
    stamp(a, "ostored")
    signal_global(a, 7)
    stamp(a, "sig2")
    fin = a.label("fin")
    comp = a.label("comp")
    a(f"s_cmp_lt_u32 {s(S_W)}, 4")
    a(f"s_cbranch_scc1 {comp}")
    helper_chain(a, fin)
    a("s_branch L_next")
    slow_path()
    a(f"{comp}:")
    g16_compute(a, False, fin)
    stamp(a, "xstored")
    a(f"s_mul_i32 s32, {s(S_W)}, 3072")
    D = Dumper(a, 32)
    for k in range(6):
        D(STA + 4 * k, W1_ADDR[k // 3] + (k % 3) * K)
    signal(a, 1, 11, 45, 46)
    mlp1_compute(a)
    stamp(a, "hstored")
    signal(a, 2, 15, 28, 27)
    last_layer = g16_compute(a, True, fin)
    a(f"s_and_b32 s27, {s(S_I)}, 15")
    a("s_mov_b32 s26, s45")
    a("s_mov_b32 s101, s46")

    def sync():
        signal(a, 3, 19, 26, 101)
        wait_sync(a, 3, 28)
        stamp(a, "S5")
    qkv_compute(a, 0, R_ST, WQ_ADDR, QKV_BARS, sync, LD, "L_next", st="sc1")
    a("L_next:")
    prof_dump(a, 1)
    a(f"s_mov_b32 {s(S_L)}, 1")
    a(f"s_mov_b32 {s(S_CNT)}, {CNT + 0x8000}")
    a("s_branch L_layer")
    last_layer()
    for c in COLD:
        c()
    a(f"{fin}:")
    gen1.kernel_tail(a, name, 2)


K1_NW = 20
K1_PC = 128 * K
K1_CS = 148 * K
K1_TA = 48


def tr_coef(qk, t):
    if not qk:
        return 64 * t, 32, 8
    return (80 * t, 40, 8) if t < 3 else (32, 160, 40)


def tr_addr32(a, dst, qk=None, sc=None):
    a("v_bfe_u32 v24, v0, 2, 2")
    a("v_lshrrev_b32 v25, 5, v0")
    a("v_lshl_add_u32 v25, v25, 3, v24")
    a("v_lshlrev_b32 v25, 8, v25")
    a("v_lshlrev_b32 v24, 6, v24")
    a("v_bfe_u32 v26, v0, 4, 1")
    a("v_and_b32 v27, 3, v0")
    for t in range(4 if sc is None else 1):
        A_, B_, C_ = tr_coef(qk, t) if sc is None else (s(sc), s(sc + 1), s(sc + 2))
        a(f"v_mul_u32_u24 v28, {B_}, v26")
        a(f"v_add_u32 v28, {A_}, v28")
        a(f"v_mul_u32_u24 {v(dst+2*t)}, {C_}, v27")
        a(f"v_add_u32 v28, v28, {v(dst+2*t)}")
        a("v_and_b32 v28, 0xff, v28")
        a("v_xor_b32 v28, v28, v24")
        a(f"v_add_u32 {v(dst+2*t)}, v28, v25")


K1_XB = 64 * K
K1_STX = 149 * K


def x_addr(a, dst, s_tile):
    a("v_and_b32 v24, 31, v0")
    a("v_bfe_u32 v25, v0, 1, 3")
    a("v_lshrrev_b32 v26, 5, v0")
    a("v_xor_b32 v25, v25, v26")
    a("v_lshlrev_b32 v24, 7, v24")
    a(f"s_lshl_b32 s22, {s(s_tile)}, 12")
    a(f"s_add_u32 s22, s22, {K1_XB}")
    a("v_add_u32 v24, s22, v24")
    for ks in range(4):
        a(f"v_xor_b32 v26, {2*ks}, v25")
        a(f"v_lshl_add_u32 {v(dst+ks)}, v26, 4, v24")


def k1_dma_setup(a):
    a("v_lshrrev_b32 v3, 4, v0")
    a("v_lshlrev_b32 v4, 2, v3")
    a("v_and_b32 v60, 15, v0")
    a("v_xor_b32 v60, v60, v4")
    a("v_lshlrev_b32 v60, 4, v60")
    a("v_mul_u32_u24 v4, 3840, v3")
    a("v_add_u32 v60, v60, v4")
    a("v_lshrrev_b32 v5, 3, v0")
    a("v_and_b32 v61, 7, v0")
    a("v_xor_b32 v61, v61, v3")
    a("v_mul_u32_u24 v5, 1280, v5")
    a("v_xor_b32 v62, 4, v61")
    a("v_lshl_add_u32 v61, v61, 4, v5")
    a("v_lshl_add_u32 v62, v62, 4, v5")
    a(f"s_mul_i32 s54, s29, {16*3840}")
    a("s_mul_i32 s22, s27, 240")
    a("s_lshl_b32 s23, s27, 8")
    a("s_sub_u32 s23, s23, 256")
    a("s_cmp_ge_u32 s27, 11")
    a("s_cselect_b32 s22, s23, s22")
    a("s_add_u32 s54, s54, s22")
    a(f"s_lshl_b32 s55, {s(S_DOM)}, 2")
    a("s_add_u32 s55, s55, s29")
    a(f"s_mul_i32 s55, s55, {32*1280}")
    a("s_lshl_b32 s56, s29, 12")


def k1_dma(a, L, c, js=range(4)):
    for j in js:
        a(f"s_add_u32 m0, s56, {(c % 4)*16*K + j*K}")
        a(f"s_add_u32 s24, s54, {(64*c + 4*j)*3840}")
        a("buffer_load_dwordx4 v60, s[12:15], s24 offen lds")
        a(f"s_add_u32 m0, s56, {K1_XB + (c % 4)*16*K + j*K}")
        a(f"s_add_u32 s24, s55, {128*c + 8*j*1280}")
        a(f"buffer_load_dwordx4 {v(61 + (j & 1))}, s[8:11], s24 offen lds")
        L.other(("w", c))
        L.other(("w", c))


def k1_touch(a):
    a("s_lshl_b32 s22, s2, 2")
    a("s_add_u32 s22, s22, s29")
    a("v_lshlrev_b32 v63, 7, v0")
    a("s_mul_i32 s23, s22, 2560")
    a("s_mul_i32 s22, s22, 2432")
    if OPT.get("k1tm", 3) & 1:
        a("s_mov_b64 exec, 0xfffff")
        a("buffer_load_dword v254, v63, s[8:11], s23 offen")
    if OPT.get("k1tm", 3) & 2:
        a("s_mov_b64 exec, 0x7ffff")
        a("buffer_load_dword v254, v63, s[12:15], s22 offen")
    a("s_mov_b64 exec, -1")


K1_SA = 176
K1_X16 = 168


def k1_prologue(a, qk):
    tr_addr32(a, K1_TA, qk=qk)
    x_addr(a, 56, S_W)
    a("v_and_b32 v24, 15, v0")
    a("v_lshrrev_b32 v25, 4, v0")
    a("v_bfe_u32 v60, v0, 1, 3")
    a("v_xor_b32 v60, v60, v25")
    a("v_xor_b32 v61, 4, v60")
    a("v_lshlrev_b32 v24, 7, v24")
    a("v_add_u32 v24, s22, v24")
    a("v_lshl_add_u32 v60, v60, 4, v24")
    a("v_lshl_add_u32 v61, v61, 4, v24")
    for r in range(4):
        a(f"v_mov_b32 {v(192+r)}, 0x3f803f80")
    for r in range(10, 16):
        a(f"v_mov_b32 {v(r)}, 0")


def k1_main(a, swap):
    lds = []

    def wread(k, t):
        sl = ((k // 4) % 4) * 16 * K
        off = sl + (k % 4) * 4096
        r = G_WB + 16 * (k & 1) + 4 * t
        if t == 0:
            a(f"ds_read_b128 {v(G_AW + 4*(k & 1), 4)}, {v(56 + k % 4)} offset:{sl}")
            lds.append("x")
        a(f"ds_read_b64_tr_b16 {v(r,2)}, {v(K1_TA + 2*t)} offset:{off}")
        a(f"ds_read_b64_tr_b16 {v(r+2,2)}, {v(K1_TA + 2*t)} offset:{off + K}")
        lds.extend(["h", (k, t)])
        if t == 1:
            a(f"ds_read_b128 {v(K1_X16 + 4*(k & 1), 4)}, {v(60 + ((k >> 1) & 1))} offset:{sl + (k & 1)*2048}")
            lds.append("y")

    if OPT.get("k1touch", 0) == 1:
        a(f"s_mov_b32 s28, s29")
        a(f"s_mov_b32 s29, {s(S_W)}")
        k1_touch(a)
        a(f"s_mov_b32 s29, s28")
    stamp(a, "k1p0")
    a("s_barrier")
    stamp(a, "k1b0")
    for t in range(4):
        wread(0, t)
    for k in range(40):
        last = (k == 39)
        for t in range(4):
            a(f"s_waitcnt lgkmcnt({len(lds) - 1 - lds.index((k, t))})")
            A_ = v(G_WB + 16 * (k & 1) + 4 * t, 4)
            B_ = v(G_AW + 4 * (k & 1), 4)
            if swap:
                A_, B_ = B_, A_
            D_ = v(G_ACC + 16 * t, 16)
            a(f"v_mfma_f32_32x32x16_bf16 {D_}, {A_}, {B_}, {D_ if k else 0}")
            if not last:
                if k % 4 == 3 and t == 0:
                    a("s_barrier")
                    stamp(a, f"k1b{(k+1)//4}")
                wread(k + 1, t)
            if t >= 2:
                X_ = v(K1_X16 + 4 * (k & 1), 4)
                D2 = v(K1_SA + 8 * (t - 2) + 4 * (k & 1), 4)
                a(f"v_mfma_f32_16x16x32_bf16 {D2}, {'v[192:195]' if t == 2 else X_}, {X_}, {D2 if k > 1 else 0}")
    a("v_and_b32 v25, 3, v0")
    a("v_and_b32 v26, 15, v0")
    a(f"s_lshl_b32 s22, {s(S_W)}, 8")
    a(f"s_add_u32 s22, s22, {K1_STX}")
    a("v_lshlrev_b32 v26, 3, v26")
    a("v_add_u32 v26, s22, v26")
    a("v_lshlrev_b32 v24, 3, v5")
    a("v_add_u32 v24, s22, v24")
    G0, G1 = K1_SA + 8, K1_SA + 12
    for r in range(1, 4):
        a(f"v_cmp_eq_u32 vcc, {r}, v25")
        a.nop(2)
        a(f"v_cndmask_b32 {v(G0)}, {v(G0)}, {v(G0+r)}, vcc")
        a(f"v_cndmask_b32 {v(G1)}, {v(G1)}, {v(G1+r)}, vcc")
    a(f"v_mov_b32 {v(K1_SA+1)}, {v(G0)}")
    a(f"v_mov_b32 {v(K1_SA+5)}, {v(G1)}")
    a("s_mov_b32 exec_lo, 0x00f0000f")
    a("s_mov_b32 exec_hi, 0xf0000f00")
    a(f"ds_write_b64 v26, {v(K1_SA,2)}")
    a(f"ds_write_b64 v26, {v(K1_SA+4,2)} offset:128")
    a("s_mov_b64 exec, -1")
    a("ds_read_b64 v[8:9], v24")
    a("s_barrier")
    a("s_waitcnt lgkmcnt(0)")
    a("v_mul_f32 v8, 0.5, v8")
    a("v_mul_f32 v9, 0.5, v9")


def code_prefetch(a, idx_sgpr, va=24, vd=255):
    here = a.label("pc")
    a("s_getpc_b64 s[22:23]")
    a(f"{here}:")
    a(f"s_sub_u32 s22, s22, {here}-L_text_begin")
    a("s_subb_u32 s23, s23, 0")
    a(f"s_mul_i32 s24, {s(idx_sgpr)}, 128*((L_text_end-L_text_begin+4095)/4096)")
    a(f"v_lshlrev_b32 {v(va)}, 7, v0")
    a(f"v_add_u32 {v(va)}, s24, {v(va)}")
    a(f"v_min_u32 {v(va)}, L_text_end-L_text_begin-4, {v(va)}")
    a("v_cmp_gt_u32 vcc, (L_text_end-L_text_begin+4095)/4096, v0")
    a("s_and_saveexec_b64 s[24:25], vcc")
    a(f"global_load_dword {v(vd)}, {v(va)}, s[22:23]")
    a("s_mov_b64 exec, -1")


def t_layout(a, r):
    a(f"v_permlane32_swap_b32 {v(r)}, {v(r+2)}")
    a(f"v_permlane32_swap_b32 {v(r+1)}, {v(r+3)}")
    a.nop(2)
    a(f"v_permlane16_swap_b32 {v(r)}, {v(r+1)}")
    a(f"v_permlane16_swap_b32 {v(r+2)}, {v(r+3)}")


def piece_load(a, L):
    w1, w2, hi, go, dn = (a.label(x) for x in ("pw1", "pw2", "phi", "pgo", "pdn"))
    a("s_cmp_ge_u32 s34, 544")
    a(f"s_cbranch_scc1 {w1}")
    a("s_lshr_b32 s25, s34, 3")
    a("s_cmp_ge_u32 s34, 160")
    a(f"s_cbranch_scc1 {w2}")
    a("s_mov_b64 s[40:41], s[16:17]")
    a("s_mov_b32 s42, 819200")
    a("s_cmp_ge_u32 s34, 128")
    a(f"s_cbranch_scc1 {hi}")
    a("s_mul_i32 s25, s25, 40")
    a("s_mov_b32 s44, 4")
    a("s_mov_b32 s45, 0")
    a("s_mov_b32 s46, 0")
    a(f"s_branch {go}")
    a(f"{hi}:")
    a("s_mul_i32 s25, s25, 160")
    a(f"s_sub_u32 s25, s25, {16*160 - 16}")
    a("s_mov_b32 s44, 64")
    a("s_mov_b32 s45, 36")
    a("s_mov_b32 s46, 12")
    a(f"s_branch {go}")
    a(f"{w2}:")
    a("s_sub_u32 s25, s25, 20")
    a("s_lshl_b32 s25, s25, 5")
    a("s_mov_b32 s44, 0")
    a("s_mov_b32 s45, 0")
    a("s_mov_b32 s46, 0")
    a(f"{go}:")
    a("s_mul_i32 s25, s25, 1280")
    a("s_and_b32 s26, s34, 7")
    a("s_mul_i32 s26, s26, 160")
    a("s_add_u32 s25, s25, s26")
    for j in range(5):
        a(f"v_add_u32 v20, {64*j}, v0")
        a("v_mul_u32_u24 v21, 205, v20")
        a("v_lshrrev_b32 v21, 11, v21")
        a("v_mul_u32_u24 v22, 10, v21")
        a("v_sub_u32 v20, v20, v22")
        a("v_lshrrev_b32 v22, 4, v21")
        a("v_mad_u32_u24 v23, v22, s44, v21")
        a("v_bfe_u32 v22, v21, 2, 1")
        a("v_mad_u32_u24 v23, v22, s45, v23")
        a("v_bfe_u32 v22, v21, 3, 1")
        a("v_mad_u32_u24 v23, v22, s46, v23")
        a("v_mul_u32_u24 v23, 1280, v23")
        a(f"s_add_u32 m0, s35, {j*K}")
        a("v_lshl_add_u32 v20, v20, 4, v23")
        a("buffer_load_dwordx4 v20, s[40:43], s25 offen lds")
    a(f"s_branch {dn}")
    a(f"{w1}:")
    a("s_sub_u32 s23, s34, 544")
    a(f"s_mov_b32 s24, {magic(24)}")
    a("s_mul_hi_u32 s25, s23, s24")
    a("s_mul_i32 s26, s25, 24")
    a("s_sub_u32 s26, s23, s26")
    a(f"s_mul_i32 s25, s25, {32*3072}")
    a("s_lshl_b32 s26, s26, 7")
    a("s_add_u32 s25, s25, s26")
    a("v_lshrrev_b32 v20, 3, v0")
    a("v_and_b32 v21, 7, v0")
    a("v_mul_u32_u24 v20, 3072, v20")
    a("v_lshl_add_u32 v20, v21, 4, v20")
    for j in range(4):
        a(f"s_add_u32 m0, s35, {j*K}")
        a(f"s_add_u32 s24, s25, {8*j*3072}")
        a("buffer_load_dwordx4 v20, s[36:39], s24 offen lds")
    a("buffer_load_dword v21, v20, s[36:39], s24 offen")
    a(f"{dn}:")
    for _ in range(5):
        L.other("pc")


def piece_finish(a):
    w1, dn = a.label("fw1"), a.label("fdn")
    a("v_lshrrev_b32 v21, 4, v0")
    a("v_bfe_u32 v22, v0, 2, 2")
    a("v_and_b32 v23, 3, v0")
    a("v_lshrrev_b32 v24, 1, v21")
    a("v_and_b32 v25, 1, v21")
    a("s_cmp_ge_u32 s34, 544")
    a(f"s_cbranch_scc1 {w1}")
    a("v_lshlrev_b32 v24, 4, v24")
    a("v_lshl_add_u32 v24, v25, 2, v24")
    a("v_add_u32 v24, v24, v22")
    a("v_mul_u32_u24 v24, 160, v24")
    a("v_lshl_add_u32 v24, v23, 3, v24")
    a("v_add_u32 v24, s35, v24")
    for t in range(5):
        a(f"ds_read_b64_tr_b16 {v(28+4*t,2)}, v24 offset:{32*t}")
        a(f"ds_read_b64_tr_b16 {v(30+4*t,2)}, v24 offset:{32*t + 8*160}")
    a("s_lshr_b32 s25, s34, 3")
    a("s_and_b32 s26, s34, 7")
    wo = a.label("fwo")
    a("s_cmp_lt_u32 s34, 160")
    a(f"s_cbranch_scc1 {wo}")
    a("s_mul_i32 s26, s26, 48")
    a("s_add_u32 s25, s25, s26")
    a("s_mul_i32 s25, s25, 5120")
    a(f"s_add_u32 s25, s25, {W2T - 20*5120}")
    a("s_add_u32 s26, s25, 4096")
    for t in range(5):
        a(f"s_waitcnt lgkmcnt({2*(4-t)})")
        t_layout(a, 28 + 4 * t)
        a(f"buffer_store_dwordx4 {v(28+4*t,4)}, v11, {WSR}, {'s25' if t < 4 else 's26'} offen offset:{(t % 4)*K}")
    a(f"s_branch {dn}")
    a(f"{wo}:")
    a("s_mul_i32 s26, s26, 20")
    a("s_add_u32 s25, s25, s26")
    a("s_mul_i32 s25, s25, 5120")
    a(f"s_add_u32 s25, s25, {WOT}")
    a("s_add_u32 s26, s25, 4096")
    for t in range(5):
        a(f"s_waitcnt lgkmcnt({2*(4-t)})")
        a(f"buffer_store_dwordx4 {v(28+4*t,4)}, v10, {WSR}, {'s25' if t < 4 else 's26'} offen offset:{(t % 4)*K}")
    a(f"s_branch {dn}")
    a(f"{w1}:")
    a("v_lshl_add_u32 v24, v24, 3, v22")
    a("v_lshlrev_b32 v24, 7, v24")
    a("v_lshl_add_u32 v24, v23, 3, v24")
    a("v_lshl_add_u32 v24, v25, 5, v24")
    a("v_add_u32 v24, s35, v24")
    frs = [(ks * 16 * 128 + ft * 64, ft, ks) for ft in range(2) for ks in range(2)]
    for i, (off, ft, ks) in enumerate(frs):
        a(f"ds_read_b64_tr_b16 {v(28+4*i,2)}, v24 offset:{off}")
        a(f"ds_read_b64_tr_b16 {v(30+4*i,2)}, v24 offset:{off+512}")
    a("s_sub_u32 s23, s34, 544")
    a(f"s_mov_b32 s24, {magic(24)}")
    a("s_mul_hi_u32 s25, s23, s24")
    a("s_mul_i32 s26, s25, 24")
    a("s_sub_u32 s26, s23, s26")
    for i, (off, ft, ks) in enumerate(frs):
        a("s_lshl_b32 s23, s26, 1")
        a(f"s_add_u32 s23, s23, {ft}")
        a("s_lshl_b32 s28, s25, 1")
        a(f"s_add_u32 s28, s28, {ks}")
        a(f"s_mov_b32 s24, {magic(3)}")
        a("s_mul_hi_u32 s24, s23, s24")
        a("s_mul_i32 s22, s24, 3")
        a("s_sub_u32 s23, s23, s22")
        a("s_mul_i32 s24, s24, 40")
        a("s_add_u32 s24, s24, s28")
        a("s_mul_i32 s24, s24, 3")
        a("s_add_u32 s24, s24, s23")
        a("s_lshl_b32 s24, s24, 10")
        a(f"s_add_u32 s24, s24, {W1T}")
        a(f"s_waitcnt lgkmcnt({2*(3-i)})")
        a(f"v_mfma_f32_16x16x32_bf16 {v(48+4*ft,4)}, {v(28+4*i,4)}, v[116:119], {v(48+4*ft,4) if ks else 0}")
        t_layout(a, 28 + 4 * i)
        a(f"buffer_store_dwordx4 {v(28+4*i,4)}, v11, {WSR}, s24 offen")
    a("s_mul_i32 s25, s25, 6144")
    a("s_lshl_b32 s26, s26, 8")
    a("s_add_u32 s25, s25, s26")
    a(f"s_add_u32 s25, s25, {CP1}")
    a("s_mov_b32 exec_lo, 0x00030003")
    a("s_mov_b32 exec_hi, 0x00030003")
    a(f"buffer_store_dwordx4 v[48:51], v3, {WSR}, s25 offen")
    a(f"buffer_store_dwordx4 v[52:55], v3, {WSR}, s25 offen offset:128")
    a("s_mov_b64 exec, -1")
    a(f"{dn}:")


def k1_helper(a):
    L = Loader(a)
    k1_dma_setup(a)
    a("s_waitcnt lgkmcnt(0)")
    NF = OPT.get("k1first", 2)
    for c in range(NF):
        k1_dma(a, L, c)
    a("s_setprio 2")
    a("s_lshl_b32 s44, s29, 6")
    a("s_mov_b32 s45, 32")
    a("s_mov_b32 s46, 8")
    lab = a.label("vco")
    a("s_cmp_ge_u32 s27, 11")
    a(f"s_cbranch_scc1 {lab}")
    a("s_mul_i32 s44, s29, 80")
    a("s_cmp_eq_u32 s29, 3")
    a("s_cselect_b32 s44, 32, s44")
    a("s_cselect_b32 s45, 160, 40")
    a("s_cselect_b32 s46, 40, 8")
    a(f"{lab}:")
    tr_addr32(a, 8, sc=44)
    a("v_and_b32 v5, 15, v0")
    a("v_lshrrev_b32 v6, 4, v0")
    a("v_xor_b32 v18, v5, v6")
    a("v_and_b32 v18, 1, v18")
    a("v_cmp_eq_u32 vcc, 0, v18")
    a("v_mov_b32 v12, 0x3f803f80")
    a("v_lshlrev_b32 v10, 4, v0")
    for r in range(4):
        a(f"v_cndmask_b32 {v(116+r)}, 0, v12, vcc")
    a("v_lshl_add_u32 v11, v5, 2, v6")
    a("v_lshlrev_b32 v11, 4, v11")
    a(f"s_mul_i32 s32, s27, {160*K}")
    a("s_lshl_b32 s22, s29, 10")
    a("s_add_u32 s32, s32, s22")
    a(f"s_add_u32 s32, s32, {WQT}")
    a("s_lshl_b32 s34, s2, 2")
    a("s_add_u32 s34, s34, s29")
    a("s_mul_i32 s35, s29, 5120")
    a(f"s_add_u32 s35, s35, {K1_PC}")
    a(f"s_lshr_b32 s30, {s(S_DOM)}, 2")
    a(f"s_and_b32 s31, {s(S_DOM)}, 3")
    a("s_lshl_b32 s22, s31, 12")
    a("s_add_u32 s32, s32, s22")
    a("v_add_u32 v9, s22, v8")
    for c in range(10):
        L.wait(("w", c))
        a("s_barrier")
        off = (c % 4) * 16 * K
        for ks in range(4):
            a(f"ds_read_b64_tr_b16 {v(80+4*ks,2)}, v8 offset:{off + ks*4096}")
            a(f"ds_read_b64_tr_b16 {v(82+4*ks,2)}, v8 offset:{off + ks*4096 + K}")
        nost = a.label("nost")
        a(f"s_cmp_lg_u32 s30, {c % 4}")
        a(f"s_cbranch_scc1 {nost}")
        a(f"ds_read_b64_tr_b16 v[96:97], v9 offset:{off}")
        a(f"ds_read_b64_tr_b16 v[98:99], v9 offset:{off + K}")
        a(f"s_add_u32 s24, s32, {c*16*K}")
        a("s_waitcnt lgkmcnt(0)")
        if c < NQS:
            t_layout(a, 96)
        a(f"buffer_store_dwordx4 v[96:99], {'v11' if c < NQS else 'v10'}, {WSR}, s24 offen")
        a(f"{nost}:")
        cn = c + 2 if (c + 2 >= NF and c + 2 < 10) else None
        if c == 0 and NF == 3:
            cn = 3
        if c == 1 and NF == 3:
            cn = None
        for ks in range(4):
            if cn is not None:
                k1_dma(a, L, cn, [ks])
            a(f"s_waitcnt lgkmcnt({6-2*ks})")
            a(f"v_mfma_f32_16x16x32_bf16 v[56:59], {v(80+4*ks,4)}, v[116:119], {'v[56:59]' if c or ks else 0}")
        if c == OPT.get("k1pc", 8):
            piece_load(a, L)
    a("v_lshlrev_b32 v3, 6, v5")
    a("v_lshl_add_u32 v3, v6, 4, v3")
    a("s_lshl_b32 s23, s29, 7")
    a(f"s_add_u32 s22, s23, {K1_CS}")
    a("v_add_u32 v4, s22, v3")
    a("s_lshl_b32 s22, s27, 9")
    a("s_add_u32 s22, s22, s23")
    a(f"s_add_u32 s22, s22, {CSQ}")
    a("s_mov_b32 exec_lo, 0x00030003")
    a("s_mov_b32 exec_hi, 0x00030003")
    a("ds_write_b128 v4, v[56:59]")
    lab = a.label("nocs")
    a(f"s_cmp_lg_u32 {s(S_DOM)}, 0")
    a(f"s_cbranch_scc1 {lab}")
    a(f"buffer_store_dwordx4 v[56:59], v3, {WSR}, s22 offen")
    a(f"{lab}:")
    a("s_mov_b64 exec, -1")
    a("s_waitcnt lgkmcnt(0)")
    pf = OPT.get("k1pf", 0)
    if pf:
        a("s_waitcnt vmcnt(0)")
        piece_finish(a)
    stamp(a, "hb")
    a("s_barrier")
    if not pf:
        a("s_waitcnt vmcnt(0)")
        stamp(a, "hl")
        piece_finish(a)
    stamp(a, "hs")


def gen_k1(a):
    name = "first_kernel"
    gen1.kernel_head(a, name, 256, [(8, 0, 2621440), (12, 1, 2457600), (16, 2, 819200), (36, 4, 1966080),
                                    (40, 6, 1966080)])
    a.lines.pop()
    lab = a.label("nocp")
    a(f"s_cmp_lg_u32 {s(S_W)}, 3")
    a(f"s_cbranch_scc1 {lab}")
    a("s_lshr_b32 s26, s2, 3")
    if OPT.get("cpf", 1):
        code_prefetch(a, 26)
    a(f"{lab}:")
    a("s_and_b32 s22, s2, 7")
    a("s_lshr_b32 s23, s2, 3")
    a("s_lshr_b32 s24, s22, 1")
    a("s_lshl_b32 s24, s24, 2")
    a("s_lshr_b32 s25, s23, 3")
    a(f"s_add_u32 {s(S_DOM)}, s24, s25")
    a("s_and_b32 s27, s22, 1")
    a("s_lshl_b32 s27, s27, 3")
    a("s_and_b32 s23, s23, 7")
    a("s_add_u32 s27, s27, s23")
    a(f"s_and_b32 s29, {s(S_W)}, 3")
    fin = a.label("fin")
    comp = a.label("comp")
    a(f"s_cmp_lt_u32 {s(S_W)}, 4")
    a(f"s_cbranch_scc1 {comp}")
    k1_helper(a)
    a(f"s_branch {fin}")
    a(f"{comp}:")
    a("s_waitcnt lgkmcnt(0)")
    if OPT.get("k1touch", 0) == 2:
        k1_touch(a)
    a("v_mov_b32 v4, 0")
    a("s_lshl_b32 s22, s2, 2")
    a("s_add_u32 s22, s22, s29")
    a("s_lshl_b32 s22, s22, 6")
    a(f"s_add_u32 s22, s22, {CNT}")
    a(f"buffer_store_byte v4, v0, {WSR}, s22 offen")
    qkv_compute(a, None, None, None, None, lambda: None, "", fin, first=True)
    a(f"{fin}:")
    gen1.kernel_tail(a, name, 0)
    return name


def generate(profile=False):
    gen1.PROFILE = profile
    a = Asm()
    a("L_text_begin:")
    names = [gen_k1(a)]
    gen_chain(a)
    a("L_text_end:")
    names += ["chain_kernel"]
    body = a.text()
    probs = check_hazards(body)
    hdr = open("cdna_kernels/" + NAME + ".s.ref").read().split("; Override launch")[0]
    out = hdr
    for n in names:
        lds = {"pre": 32768}.get(n[:3], 163840)
        out += f"; @launch kernel={n} grid=(256,1,1) block=(512,1,1) lds={lds}\n"
    out += '.amdgcn_target "amdgcn-amd-amdhsa--gfx950"\n.text\n' + body
    out += '.section .rodata,"a"\n'
    for n in names:
        out += ".p2align 6\n" + gen1.descriptor(n)
    return out, probs


if __name__ == "__main__":
    prof = "--profile" in sys.argv
    for arg in sys.argv[2:]:
        if arg.startswith("st="):
            ACTIVE.extend(arg[3:].split(","))
        elif arg.startswith("s."):
            kk, vv = arg[2:].split("=")
            SCHED[kk] = vv.replace(",", " ")
        elif "=" in arg:
            OPT[arg.split("=")[0]] = int(arg.split("=")[1])
    if not ACTIVE:
        ACTIVE.extend("P0,B1,B4,B7,preRa,S2,womain,sig3,S3,E1,sig4,S4,m2main,sig5,S5,qkvmain".split(","))
    out, probs = generate(prof)
    for p in probs[:50]:
        print("HAZARD", p)
    print("hazards:", len(probs))
    path = sys.argv[1]
    if prof:
        out = "; stamps: " + ",".join(ACTIVE) + "\n" + out
    open(path, "w").write(out)
    print("wrote", path, len(out), "bytes")
```

```python
import math
import struct
import sys
from asmlib import Asm, v, s, check_hazards
import gen1
from gen1 import fhex, magic, sum_xor16, sum_xor32, ln_stats, EPS, QSCALE, NAME

K = 1024
WOT = 0
W1T = 800 * K
W2T = W1T + 1920 * K
WQT = W2T + 1920 * K
CSQ = WQT + 2560 * K
CP1 = CSQ + 8 * K
CNT = CP1 + 120 * K
SCR = CNT + 64 * K
SCR_STRIDE = 336 * K
R_O = 0
R_ST = 320 * K
KVQ = SCR + 8 * SCR_STRIDE
DOM_STRIDE = 480 * K
R_Q = 320 * K
B1SR = "s[88:91]"
XSR = "s[12:15]"
PROF = gen1.PROF
WS_END = gen1.WS_END

S_WS = 4
S_W = 20
S_X = 21
S_L = 50
S_I = 51
S_CNT = 52
S_DOM = 53
S_PURE = 54
S_XCC = 55
S_DBG = 56
S_SCR = 3
FORCE_IMPURE = False
WSR = s(S_WS, 4)

SYNC_LDS = 159 * K
ST = ""
LD = "sc1"
OPT = {}


ACTIVE = []
SCHED = {'a': 'w2*22', 'r': '', 'b': 'www', 'c': '', 'c3': 'w2*4', 'c6': 'w3*10', 'e': 'ww2', 'f': '', 'g0': '', 'g2': '', 'g4': '', 'g6': '', 'g8': '', 'g10': ''}


LEAK = {}


def stamp(a, name):
    if LEAK:
        op = "s_memtime" if LEAK.get("cyc") else "s_memrealtime"
        if name == LEAK["a"]:
            a(f"{op} s[84:85]")
        if name == LEAK["b"]:
            a(f"{op} s[86:87]")
        return
    if name in ACTIVE[:14]:
        gen1.stamp(a, ACTIVE.index(name))


def KVF():
    return "sc1" if OPT.get("kvsc1", 1) else ""


class Loader:
    def __init__(self, a):
        self.a = a
        self.ops = []

    def dma(self, tag, n, lds, s_src, src_off, s_ldsw, j0=0):
        a = self.a
        for j in range(n):
            if j % 4 == 0:
                a(f"s_add_u32 m0, {s(s_ldsw)}, {lds + (j0+j)*K}")
                a(f"s_add_u32 s24, {s(s_src)}, {src_off + (j0+j)*K}")
            fl = KVF() if (tag in ("p0b", "p1", "p2", "p3") or tag[0] == "c") else ""
            a(f"buffer_load_dwordx4 v2, {WSR}, s24 offen offset:{(j % 4)*K} {fl} lds")
            self.ops.append(tag)

    def other(self, tag):
        self.ops.append(tag)

    def wait(self, tag):
        last = max(i for i, t in enumerate(self.ops) if t == tag)
        n = len(self.ops) - 1 - last
        self.a(f"s_waitcnt vmcnt({min(n, 63)})")


def touch_items(a, L, base, nbytes, s_base, lines, vaddr, s_tmp, flags="", vd=28):
    pw = nbytes // 128
    assert pw % 128 == 0
    items = []
    off = 0
    while off < pw:
        n = min(lines, (pw - off) // 128)

        def f(off=off, n=n):
            if off == 0:
                a(f"s_lshl_b32 {s(s_tmp)}, {s(S_I)}, 2")
                a(f"s_add_u32 {s(s_tmp)}, {s(s_tmp)}, s29")
                a(f"s_mul_i32 {s(s_tmp)}, {s(s_tmp)}, {pw}")
                if s_base is not None:
                    a(f"s_add_u32 {s(s_tmp)}, {s(s_tmp)}, {s(s_base)}")
            a(f"s_add_u32 s24, {s(s_tmp)}, {base + off}")
            if n < 64:
                a(f"s_mov_b64 exec, {hex((1 << n) - 1)}" if n <= 31 else f"s_mov_b32 exec_hi, {hex((1 << (n-32)) - 1)}")
            a(f"buffer_load_dword {v(vd)}, {v(vaddr)}, {WSR}, s24 offen {flags}")
            L.other("pf")
            if n < 64:
                a("s_mov_b64 exec, -1")
        items.append(f)
        off += n * 128
    return items


FLG = 0x1000
COLD = []
PENDING = []


def flag_base(a, phase, s_tile, dst):
    a(f"s_lshl_b32 {s(dst)}, {s(S_X)}, 3")
    a(f"s_add_u32 {s(dst)}, {s(dst)}, {s(s_tile)}")
    a(f"s_lshl_b32 {s(dst)}, {s(dst)}, 6")
    a(f"s_add_u32 {s(dst)}, {s(dst)}, {s(S_CNT)}")
    a(f"s_add_u32 {s(dst)}, {s(dst)}, {phase*8192 + FLG}")


def signal(a, phase, last_count, s_tile, s_slot):
    imp = a.label("sigimp")
    back = a.label("sigback")
    flag_base(a, phase, s_tile, 100)
    a(f"s_lshl_b32 s23, {s(s_slot)}, 2")
    a("s_add_u32 s100, s100, s23")

    def fire():
        a("v_mov_b32 v8, 0")
        a("v_mov_b32 v9, 1")
        a(f"s_cmp_eq_u32 {s(S_PURE)}, 0")
        a("s_mov_b64 exec, 1")
        a("s_waitcnt vmcnt(0)")
        a(f"s_cbranch_scc1 {imp}")
        a(f"buffer_store_dword v9, v8, {WSR}, s100 offen")
        a(f"{back}:")
        a("s_mov_b64 exec, -1")
        stamp(a, f"sig{phase+2}")
    PENDING.append(fire)

    def cold():
        a(f"{imp}:")
        a(f"v_mov_b32 v8, {SYNC_LDS}")
        a(f"s_lshl_b32 s22, {s(S_DOM)}, 8")
        a(f"s_add_u32 s22, s22, {s(S_CNT)}")
        a(f"s_add_u32 s22, s22, {phase*8192}")
        a("ds_add_rtn_u32 v10, v8, v9")
        a("v_mov_b32 v8, 0")
        a("s_waitcnt lgkmcnt(0)")
        a(f"v_cmp_ne_u32 vcc, {last_count}, v10")
        a(f"s_cbranch_vccnz {back}")
        a("buffer_wbl2 sc1")
        a("s_waitcnt vmcnt(0)")
        a(f"buffer_atomic_add v9, v8, {WSR}, s22 offen sc1")
        a(f"s_branch {back}")
    COLD.append(cold)


NSUB = 4


def signal_global(a, last_count):
    skip = a.label("nosig")
    a(f"v_mov_b32 v8, {SYNC_LDS}")
    a("v_mov_b32 v9, 1")
    a(f"s_and_b32 s22, {s(S_I)}, 7")
    a(f"s_mul_i32 s22, s22, {NSUB}")
    a(f"s_and_b32 s23, {s(S_X)}, {NSUB-1}")
    a("s_add_u32 s22, s22, s23")
    a("s_lshl_b32 s22, s22, 8")
    a(f"s_add_u32 s22, s22, {s(S_CNT)}")
    a("s_mov_b64 exec, 1")
    a("s_waitcnt vmcnt(0)")
    a("ds_add_rtn_u32 v10, v8, v9")
    a("v_mov_b32 v8, 0")
    a("s_waitcnt lgkmcnt(0)")
    a(f"v_cmp_ne_u32 vcc, {last_count}, v10")
    a(f"s_cbranch_vccnz {skip}")
    a(f"buffer_atomic_add v9, v8, {WSR}, s22 offen sc1")
    a(f"{skip}:")
    a("s_mov_b64 exec, -1")


def wait_global(a):
    oth = a.label("spin")
    done = a.label("go")
    poll = a.label("poll")
    out = a.label("polled")
    a(f"v_mov_b32 v8, {SYNC_LDS+4}")
    a(f"s_cmp_lg_u32 {s(S_W)}, 0")
    a(f"s_cbranch_scc1 {oth}")
    a(f"s_mul_i32 s22, {s(S_X)}, {NSUB*256}")
    a(f"s_add_u32 s22, s22, {s(S_CNT)}")
    a("s_mov_b32 s23, 200000")
    a("v_lshlrev_b32 v9, 8, v0")
    a(f"s_mov_b64 exec, {(1 << NSUB) - 1}")
    a(f"{poll}:")
    a(f"buffer_load_dword v10, v9, {WSR}, s22 offen sc1")
    a("s_sub_u32 s23, s23, 1")
    a(f"s_cbranch_scc1 {out}")
    a("s_waitcnt vmcnt(0)")
    a(f"v_cmp_gt_u32 vcc, {32 // NSUB}, v10")
    a(f"s_cbranch_vccnz {poll}")
    a(f"{out}:")
    a("v_mov_b32 v9, 1")
    a("ds_write_b32 v8, v9")
    a(f"s_branch {done}")
    a(f"{oth}:")
    a("s_mov_b64 exec, 1")
    a("s_mov_b32 s23, 8000000")
    sp = a.label("sp")
    a(f"{sp}:")
    a("ds_read_b32 v9, v8")
    a("s_sub_u32 s23, s23, 1")
    a(f"s_cbranch_scc1 {done}")
    a("s_waitcnt lgkmcnt(0)")
    a("v_cmp_gt_u32 vcc, 1, v9")
    a(f"s_cbranch_vccnz {sp}")
    a(f"{done}:")
    a("s_waitcnt lgkmcnt(0)")
    a("s_mov_b64 exec, -1")


def wait_sync(a, phase, s_tile):
    poll = a.label("poll")
    out = a.label("polled")
    imp = a.label("pollimp")
    PENDING[-1]()
    flag_base(a, phase, s_tile, 22)
    a("s_mov_b32 s23, 200000")
    a("v_lshlrev_b32 v9, 2, v0")
    a(f"s_cmp_eq_u32 {s(S_PURE)}, 0")
    a(f"s_cbranch_scc1 {imp}")
    a("s_mov_b64 exec, 0xffff")
    a(f"{poll}:")
    a(f"buffer_load_dword v10, v9, {WSR}, s22 offen sc1")
    a("s_sub_u32 s23, s23, 1")
    a(f"s_cbranch_scc1 {out}")
    a("s_waitcnt vmcnt(0)")
    a("v_cmp_ne_u32 vcc, 1, v10")
    a(f"s_cbranch_vccnz {poll}")
    a(f"{out}:")
    a("s_waitcnt lgkmcnt(0)")
    a("s_mov_b64 exec, -1")

    def cold():
        poll2 = a.label("poll2")
        out2 = a.label("polled2")
        a(f"{imp}:")
        a(f"s_lshl_b32 s22, {s(S_DOM)}, 8")
        a(f"s_add_u32 s22, s22, {s(S_CNT)}")
        a(f"s_add_u32 s22, s22, {phase*8192}")
        a("s_mov_b64 exec, 1")
        a(f"{poll2}:")
        a(f"buffer_load_dword v10, v9, {WSR}, s22 offen sc1")
        a("s_sub_u32 s23, s23, 1")
        a(f"s_cbranch_scc1 {out2}")
        a("s_waitcnt vmcnt(0)")
        a("v_cmp_gt_u32 vcc, 16, v10")
        a(f"s_cbranch_vccnz {poll2}")
        a(f"{out2}:")
        a("s_waitcnt vmcnt(0)")
        a("buffer_inv sc1")
        a("s_waitcnt vmcnt(0)")
        a(f"s_branch {out}")
    COLD.append(cold)


def xcc_value(a):
    a(f"s_getreg_b32 {s(S_XCC)}, hwreg(HW_REG_XCC_ID)")
    a(f"s_and_b32 {s(S_XCC)}, {s(S_XCC)}, 7")
    a(f"s_mul_i32 s22, {s(S_XCC)}, {s(S_XCC)}")
    a("s_lshl_b32 s22, s22, 8")
    a(f"s_add_u32 s22, s22, {s(S_XCC)}")
    a("s_lshl_b32 s22, s22, 8")
    a(f"s_add_u32 {s(S_XCC)}, s22, 1")
    a(f"s_lshl_b32 s22, {s(S_X)}, 5")
    a("v_mov_b32 v26, s22")


def publish_xcc(a):
    lab = a.label("nopub")
    a(f"s_or_b32 s22, {s(S_W)}, {s(S_L)}")
    a(f"s_cbranch_scc1 {lab}")
    a(f"v_mov_b32 v8, {s(S_XCC)}")
    a("s_mov_b64 exec, 1")
    a(f"buffer_atomic_add v8, v26, {s(S_DBG,4)}, 0 offen sc1")
    a("s_mov_b64 exec, -1")
    a(f"{lab}:")


def purity_load(a):
    a(f"buffer_load_dword v27, v26, {s(S_DBG,4)}, 0 offen sc1")


def purity_check(a):
    lp = a.label("pur")
    ok = a.label("purok")
    a("s_mov_b32 s23, 200000")
    a(f"{lp}:")
    a("v_readfirstlane_b32 s22, v27")
    a("s_and_b32 s24, s22, 0xff")
    a("s_cmp_eq_u32 s24, 32")
    a(f"s_cbranch_scc1 {ok}")
    a(f"buffer_load_dword v27, v26, {s(S_DBG,4)}, 0 offen sc1")
    a("s_waitcnt vmcnt(0)")
    a("s_sub_u32 s23, s23, 1")
    a(f"s_cbranch_scc0 {lp}")
    a(f"{ok}:")
    a(f"s_lshl_b32 s24, {s(S_XCC)}, 5")
    a("s_cmp_eq_u32 s24, s22")
    a(f"s_cselect_b32 {s(S_PURE)}, {0 if FORCE_IMPURE else 1}, 0")


RB = 100 * K


STG = 160
W1_ADDR = [c * 12 * K for c in range(10)]
STA = 208
RESL = 240
C1_LDS = 158 * K
CQ_LDS = 153 * K
NQS = int(__import__('os').environ.get('NQS', 4))


def att_phase(a):
    SX, SY, O0, O1, VB, K16, K4, Q4, QA, IDX = 32, 64, 96, 112, 128, 144, 148, 150, 152, 30
    a(f"s_lshr_b32 s48, {s(S_I)}, 3")
    a(f"s_lshl_b32 s22, {s(S_X)}, 2")
    a("s_add_u32 s48, s48, s22")
    a(f"s_and_b32 s49, {s(S_I)}, 7")
    a("s_mul_i32 s26, s48, 10240")
    a(f"s_add_u32 s26, s26, {KVQ}")
    a("v_lshlrev_b32 v2, 4, v0")
    a(f"s_and_b32 s29, {s(S_W)}, 3")
    a(f"s_lshr_b32 s33, {s(S_W)}, 2")
    a("s_lshl_b32 s27, s29, 1")
    a("s_lshl_b32 s22, s49, 1")
    a("s_lshr_b32 s23, s29, 1")
    a("s_add_u32 s22, s22, s23")
    a(f"s_mul_i32 s22, s22, {DOM_STRIDE}")
    a("s_mul_i32 s28, s48, 5120")
    a("s_add_u32 s28, s28, s22")
    a("s_and_b32 s22, s29, 1")
    a("s_mul_i32 s22, s22, 2560")
    a("s_add_u32 s28, s28, s22")
    a(f"s_add_u32 s28, s28, {KVQ + R_Q}")
    a("s_mul_i32 s22, s33, 1280")
    a("s_add_u32 s36, s28, s22")
    a("s_sub_u32 s37, s28, s22")
    a("v_and_b32 v5, 31, v0")
    a("v_lshrrev_b32 v6, 5, v0")
    a("v_xor_b32 v7, s33, v6")
    a("v_mul_u32_u24 v7, 1280, v7")
    a("v_lshl_add_u32 v7, v5, 3, v7")
    LA, LB = Loader(a), Loader(a)
    for L in (LA, LB):
        for _ in range(4):
            L.other("q")

    def pair(L, tag, d, js):
        for jj in js:
            if jj < 2:
                a(f"s_lshl_b32 s30, s29, 10")
            else:
                a("s_and_b32 s30, s29, 1")
                a("s_lshl_b32 s30, s30, 10")
            a("s_add_u32 s31, s26, s30")
            L.dma(tag, 1, RB + d * 10240 + jj * 4 * K, 31, d * DOM_STRIDE + jj * 4 * K, 30)

    def first_loads(L):
        a(f"s_lshl_b32 s30, {s(S_W)}, 10")
        a(f"s_add_u32 m0, s30, {RB}")
        a("s_add_u32 s31, s26, s30")
        a(f"buffer_load_dwordx4 v2, {WSR}, s31 offen {KVF()} lds")
        a(f"buffer_load_dwordx4 {v(QA,4)}, v2, {WSR}, s36 offen {KVF()}")
        a(f"buffer_load_dwordx4 {v(QA+4,4)}, v2, {WSR}, s37 offen offset:1280 {KVF()}")
        a(f"buffer_load_dwordx2 {v(Q4,2)}, v7, {WSR}, s28 offen offset:1024 {KVF()}")
        lab = a.label("nl")
        a(f"s_cmp_lt_u32 {s(S_W)}, 4")
        a(f"s_cbranch_scc1 {lab}")
        pair(L, "p0b", 0, [2])
        a(f"{lab}:")

    def s1_sync(role):
        skip = a.label("nos1")
        a(f"s_cmp_eq_u32 {s(S_L)}, 0")
        a(f"s_cbranch_scc1 {skip}")
        S1C = CNT + 0x8000 + 3 * 8192
        if role == 0:
            ns = a.label("nsig1")
            a(f"v_mov_b32 v8, {SYNC_LDS+8}")
            a("v_mov_b32 v9, 1")
            a(f"s_and_b32 s22, {s(S_I)}, 15")
            a("s_lshl_b32 s22, s22, 8")
            a(f"s_add_u32 s22, s22, {S1C}")
            a("s_mov_b64 exec, 1")
            a("s_waitcnt vmcnt(0)")
            stamp(a, "drain1")
            a("ds_add_rtn_u32 v10, v8, v9")
            a("v_mov_b32 v8, 0")
            a("s_waitcnt lgkmcnt(0)")
            a("v_cmp_ne_u32 vcc, 3, v10")
            a(f"s_cbranch_vccnz {ns}")
            a(f"buffer_atomic_add v9, v8, {WSR}, s22 offen sc1")
            a(f"{ns}:")
            a("s_mov_b64 exec, -1")
            a("s_barrier")
        else:
            a("s_barrier")
            np_, pl = a.label("nopoll1"), a.label("poll1")
            a("s_cmp_lg_u32 s29, 0")
            a(f"s_cbranch_scc1 {np_}")
            a("s_mov_b32 s23, 200000")
            a(f"s_mov_b32 s22, {S1C}")
            a("s_mov_b64 exec, 15")
            a(f"{pl}:")
            a(f"buffer_load_dword v10, v31, {WSR}, s22 offen sc1")
            a("s_sub_u32 s23, s23, 1")
            a(f"s_cbranch_scc1 {np_}")
            a("s_waitcnt vmcnt(0)")
            a("v_cmp_gt_u32 vcc, 16, v10")
            a(f"s_cbranch_vccnz {pl}")
            a(f"{np_}:")
            a("s_mov_b64 exec, -1")
        a("s_barrier")
        stamp(a, "S1")
        first_loads(Loader(a))
        a(f"{skip}:")

    def steady():
        a("s_lshr_b32 s30, s29, 1")
        a(f"s_mul_i32 s31, s30, {DOM_STRIDE}")
        a("s_and_b32 s30, s29, 1")
        a("s_mul_i32 s30, s30, 5120")
        a("s_add_u32 s31, s31, s30")
        a("s_add_u32 s31, s31, s26")
        a("s_mul_i32 s30, s29, 5120")

    lab = a.label("l1st")
    a(f"s_cmp_lg_u32 {s(S_L)}, 0")
    a(f"s_cbranch_scc1 {lab}")
    a("s_waitcnt lgkmcnt(0)")
    first_loads(LB)
    a(f"{lab}:")
    a("v_mov_b32 v31, 0")
    for ln, (mul, add, sh, off) in enumerate(((43, 0, 8, 0), (43, 32 * 43, 8, 0), (20, 0, 7, 11), (20, 19, 7, 11))):
        a(f"s_mul_i32 s22, s48, {mul}")
        a(f"s_add_u32 s22, s22, {add}")
        a(f"s_lshr_b32 s22, s22, {sh}")
        a(f"s_add_u32 s22, s22, {off}")
        a("s_lshl_b32 s22, s22, 8")
        a(f"v_writelane_b32 v31, s22, {ln}")
    a("s_add_u32 s27, s27, s33")
    a("s_mov_b32 s34, 0")
    a("s_lshl_b32 s22, s33, 10")
    a(f"s_add_u32 s22, s22, {RB}")
    a("v_add_u32 v11, s22, v2")
    a("s_lshl_b32 s22, s33, 8")
    a(f"s_add_u32 s22, s22, {RB+2048}")
    a("v_mul_u32_u24 v3, 5120, v6")
    a("v_lshl_add_u32 v3, v5, 3, v3")
    a("v_add_u32 v3, s22, v3")
    a("s_mul_i32 s22, s33, 1280")
    a(f"s_add_u32 s22, s22, {RB+2560}")
    a("v_mul_u32_u24 v4, 320, v6")
    a("v_lshl_add_u32 v4, v5, 4, v4")
    a("v_add_u32 v4, s22, v4")
    a(f"v_mov_b32 {v(IDX)}, 0xdddddddd")
    a("v_mov_b32 v8, 0x3f803f80")
    a("v_cmp_eq_u32 vcc, 20, v5")
    a("s_mov_b32 s40, 0x000fffff")
    a("s_mov_b32 s41, 0x000fffff")
    for j in range(16):
        a(f"v_cndmask_b32 {v(VB+j)}, 0, v8, vcc")
    for j in range(32):
        a(f"v_mov_b32 {v(O0+j)}, 0")
    a(f"s_and_b32 s39, {s(S_I)}, 15")
    a(f"s_mul_i32 s39, s39, {120*K}")
    a("s_mul_i32 s22, s29, 3072")
    a("s_add_u32 s39, s39, s22")
    xcc_value(a)
    for reg, x in ((12, 0), (13, 4)):
        a(f"s_xor_b32 s24, {s(S_W)}, {x}")
        a("s_mul_i32 s22, s24, 3072")
        a("s_cmp_ge_u32 s24, 6")
        a(f"s_cselect_b32 s24, {22*K}, 0")
        a("s_add_u32 s22, s22, s24")
        a(f"s_add_u32 s22, s22, {RB}")
        a(f"v_add_u32 {v(reg)}, s22, v2")
    a(f"s_lshl_b32 s22, {s(S_W)}, 2")
    a(f"s_add_u32 s22, s22, {SYNC_LDS+64}")
    a("v_mov_b32 v23, s22")
    a("v_and_b32 v24, 7, v0")
    a("v_lshlrev_b32 v24, 2, v24")
    a(f"v_add_u32 v24, {SYNC_LDS+64}, v24")
    a(f"v_mov_b32 v25, {fhex(2.0**64)}")
    a("v_lshlrev_b32 v29, 7, v0")
    a("v_lshrrev_b32 v9, 4, v5")
    a(f"v_mul_u32_u24 v9, {20*K}, v9")
    a("v_and_b32 v10, 3, v5")
    a("v_bfe_u32 v17, v5, 2, 1")
    a("v_lshl_add_u32 v10, v17, 3, v10")
    a("v_bfe_u32 v17, v5, 3, 1")
    a("v_lshl_add_u32 v10, v17, 2, v10")
    a("v_lshl_add_u32 v20, v10, 4, v9")
    a("v_lshl_add_u32 v20, v6, 8, v20")
    a("s_lshl_b32 s22, s48, 9")
    a("v_add_u32 v20, s22, v20")
    a("v_lshl_add_u32 v21, v10, 3, v9")
    a("s_lshl_b32 s22, s48, 7")
    a(f"s_add_u32 s22, s22, {16*K}")
    a("v_add_u32 v21, s22, v21")
    a(f"s_mul_i32 s38, s27, {2*20*K}")
    a(f"s_mul_i32 s22, s49, {SCR_STRIDE}")
    a("s_add_u32 s38, s38, s22")
    a(f"s_add_u32 s38, s38, {SCR + R_O}")
    for r in range(16, 20):
        a(f"v_mov_b32 {v(r)}, 0")

    def sbase(j):
        return ((j // 4) % 3) * 20480 + (j % 4) * 5120

    def readK(j):
        if j % 2 == 0 or j == 1:
            a(f"ds_read_b64 {v(K4,2)}, v3 offset:{sbase(j & ~1)}")
        a(f"ds_read_b128 {v(K16,4)}, v11 offset:{sbase(j)}")

    def readV(j):
        a("s_mov_b64 exec, s[40:41]")
        for u in range(2):
            a(f"ds_read_b128 {v(VB+8*(j & 1)+4*u,4)}, v4 offset:{sbase(j)+640*u}")
        a("s_mov_b64 exec, -1")

    def qk2b(Y, j, C="0"):
        a(f"v_mfma_f32_32x32x4_2b_bf16 {v(Y,32)}, {v(K4,2)}, {v(Q4,2)}, {C} cbsz:1 abid:{j & 1}")

    def qk16(Y, t):
        a(f"v_mfma_f32_32x32x16_bf16 {v(Y+16*t,16)}, {v(K16,4)}, {v(QA+4*t,4)}, {v(Y+16*t,16)}")

    def pv(j, X, u):
        a(f"v_smfmac_f32_32x32x32_bf16 {v(O0+16*(u >> 1),16)}, {v(VB+8*(j & 1)+4*(u & 1),4)}, {v(X+8*u,8)}, {v(IDX)}")

    def w1_item(L, c, reg):
        def f():
            a(f"s_add_u32 s24, s39, {W1T + c*12*K}")
            for jj in range(3):
                a(f"buffer_load_dwordx4 {v(reg+4*jj,4)}, v2, {WSR}, s24 offen offset:{jj*K}")
                L.other("w1")
        return f

    def main(role):
        L = LB if role else LA
        sched = {}

        def at(j, slot, f, kind=None):
            if kind and OPT.get("dbg_no" + kind, 0):
                return
            sched.setdefault((j, slot), []).append(f)

        if role:
            at(-1, 0, lambda: pair(L, "p1", 1, [0, 1, 2]))
            at(-1, 1, lambda: pair(L, "p2", 2, [0, 1, 2]))
            at(0, 1, lambda: pair(L, "p3", 3, [0, 1, 2]))
            at(1, 0, steady)
            at(1, 0, lambda: L.dma(("c", 2), 3, RB + 2 * 20480, 31, 4 * DOM_STRIDE, 30))
            at(1, 1, lambda: L.dma(("c", 2), 2, RB + 2 * 20480, 31, 4 * DOM_STRIDE, 30, 3))
            for c in range(3, 8):
                j = 4 * (c - 2) - 2
                at(j, 1, lambda c=c: L.dma(("c", c), 3, RB + (c % 3) * 20480, 31, 2 * c * DOM_STRIDE, 30))
                at(j + 1, 0, lambda c=c: L.dma(("c", c), 2, RB + (c % 3) * 20480, 31, 2 * c * DOM_STRIDE, 30, 3))
            j0 = OPT.get("w1s", 4)
            steps = [j for j in range(j0, 30) if j % 4 in (0, 1)]
            for n in range(8):
                at(steps[n], 0, w1_item(L, 2 + n, STG + 12 * n), 'w1')

            def consts():
                a(f"s_and_b32 s22, {s(S_I)}, 15")
                a("s_lshl_b32 s24, s22, 9")
                a(f"s_add_u32 s24, s24, {CSQ}")
                a(f"s_mov_b32 m0, {CQ_LDS}")
                a("s_mov_b32 exec_hi, 0")
                a(f"buffer_load_dwordx4 v2, {WSR}, s24 offen lds")
                a("s_mov_b64 exec, -1")
                L.other("k")
            at(27, 0, consts)
        else:
            def wo_setup():
                a("s_mul_i32 s30, s29, 5120")
                a(f"s_and_b32 s32, {s(S_I)}, 7")
                a(f"s_mul_i32 s32, s32, {100*K}")
                a("s_add_u32 s32, s32, s30")
                a(f"s_lshl_b32 s42, {s(S_I)}, 2")
                a("s_add_u32 s42, s42, s29")
                a("s_lshl_b32 s44, s42, 7")
                a(f"s_add_u32 s44, s44, {s(S_SCR)}")
                a(f"s_add_u32 s44, s44, {R_ST}")
                a(f"s_lshl_b32 s22, {s(S_X)}, 7")
                a("s_add_u32 s42, s42, s22")
                a("s_mul_i32 s42, s42, 2560")
                a(f"s_lshl_b32 s22, {s(S_L)}, 31")
                a("s_or_b32 s42, s42, s22")
                a("s_or_b32 s44, s44, s22")
            at(0, 0, wo_setup)
            if OPT.get("cpf", 1):
                def cp():
                    lab = a.label("ncp")
                    a(f"s_cmp_lg_u32 {s(S_W)}, 3")
                    a(f"s_cbranch_scc1 {lab}")
                    code_prefetch(a, S_I, 31, 28)
                    a(f"{lab}:")
                at(OPT.get("cpfs", 24), 1, cp)
            j0 = OPT.get("wos", 1)
            for c in range(5):
                at(j0 + 2 * c, 0, lambda c=c: L.dma("wo", 2, c * 20480, 32, WOT + c * 20480, 30))
                at(j0 + 2 * c, 1, lambda c=c: L.dma("wo", 1, c * 20480, 32, WOT + c * 20480, 30, 2))
                at(j0 + 2 * c + 1, 0, lambda c=c: L.dma("wo", 2, c * 20480, 32, WOT + c * 20480, 30, 3))
            if OPT.get("warm", 1):
                for n in range(4):
                    def z(n=n):
                        if n >= 2:
                            a("s_mov_b64 exec, 0xff" if n == 3 else "s_mov_b32 exec_hi, 0")
                        if n < 3:
                            a(f"buffer_store_dwordx4 v[16:19], v2, {XSR}, s42 offen offset:{n*K} sc1")
                        else:
                            a(f"buffer_store_dwordx4 v[16:19], v2, {WSR}, s44 offen sc1")
                        if n >= 2:
                            a("s_mov_b64 exec, -1")
                        L.other("z")
                    at(OPT.get("zs", 6) + 2 * n, 1, z)
            at(12, 0, w1_item(L, 0, STA))
            at(14, 0, w1_item(L, 1, STA + 12))

            def resid():
                l1 = a.label("res1")
                lj = a.label("resj")
                a(f"s_cmp_lg_u32 {s(S_L)}, 0")
                a(f"s_cbranch_scc1 {l1}")
                for t in range(5):
                    a(f"buffer_load_dwordx2 {v(RESL+2*t,2)}, v233, s[8:11], s47 offen offset:{t*32}")
                a(f"s_branch {lj}")
                a(f"{l1}:")
                for t in range(5):
                    a(f"s_add_u32 s24, s46, {t*K}")
                    a(f"buffer_load_dwordx2 {v(RESL+2*t,2)}, v232, {XSR}, s24 offen sc1")
                a(f"{lj}:")
                for t in range(5):
                    L.other("r")
            at(16, 0, resid)
            a("v_and_b32 v172, 15, v0")
            a("v_min_u32 v172, 11, v172")
            a("v_lshrrev_b32 v173, 4, v0")
            a(f"v_mul_u32_u24 v173, {5*6144}, v173")
            a("v_lshl_add_u32 v173, v172, 3, v173")
            a("v_lshlrev_b32 v174, 2, v172")
            a("s_mul_i32 s22, s29, 96")
            a(f"s_add_u32 s22, s22, {C1_LDS}")
            a("v_lshl_add_u32 v172, v172, 3, s22")

            def c1load():
                a(f"s_and_b32 s22, {s(S_I)}, 15")
                a("s_lshl_b32 s22, s22, 2")
                a("s_add_u32 s22, s22, s29")
                a("s_mul_i32 s23, s22, 48")
                a("s_mul_i32 s22, s22, 96")
                a(f"buffer_load_dword v170, v174, s[96:99], s23 offen" if False else f"buffer_load_dword v170, v174, {B1SR}, s23 offen")
                L.other("c1")
                for n in range(5):
                    a(f"s_add_u32 s24, s22, {CP1 + n*6144}")
                    a(f"buffer_load_dwordx2 {v(160+2*n,2)}, v173, {WSR}, s24 offen")
                    L.other("c1")
            at(17, 1, c1load)

            def c1sum():
                L.wait("c1")
                for n in range(1, 5):
                    a(f"v_add_f32 v160, v160, {v(160+2*n)}")
                    a(f"v_add_f32 v161, v161, {v(161+2*n)}")
                a("v_and_b32 v171, 0xffff0000, v170")
                a("v_lshlrev_b32 v170, 16, v170")
                for sw in ("16", "32"):
                    a("v_mov_b32 v162, v160")
                    a("v_mov_b32 v163, v161")
                    a.nop(1)
                    a(f"v_permlane{sw}_swap_b32 v160, v162")
                    a(f"v_permlane{sw}_swap_b32 v161, v163")
                    a("v_add_f32 v160, v160, v162")
                    a("v_add_f32 v161, v161, v163")
                a("ds_write_b64 v172, v[160:161]")
                a("ds_write_b64 v172, v[170:171] offset:384")
                a("s_waitcnt lgkmcnt(0)")
            at(27, 0, c1sum)

            def tflag():
                a("v_lshrrev_b32 v31, 2, v0")
                a("v_lshlrev_b32 v31, 13, v31")
                a("v_and_b32 v27, 3, v0")
                a("v_lshl_add_u32 v31, v27, 7, v31")
                a(f"s_lshl_b32 s24, {s(S_X)}, 9")
                a(f"s_add_u32 s24, s24, {s(S_CNT)}")
                a(f"s_add_u32 s24, s24, {8192 + FLG}")
                a("s_mov_b64 exec, 0xfff")
                a(f"buffer_load_dword v28, v31, {WSR}, s24 offen sc1")
                a("s_mov_b64 exec, -1")
                L.other("pf")
            if OPT.get("tflag", 1):
                at(29, 0, tflag)
            g16_addr(a, 232, 233, 45, 46, 47)
            for n, f in enumerate(touch_items(a, L, W2T, 1966080, None, 12, 29, 43)):
                at(OPT.get("w2s", 18) + n, 0, f, 'w2')

        if OPT.get("warm", 1):
            def zo():
                a(f"s_lshl_b32 s24, {s(S_L)}, 31")
                a("s_or_b32 s24, s24, s38")
                a(f"buffer_store_dwordx4 v[16:19], v20, {WSR}, s24 offen sc1")
                a(f"buffer_store_dwordx2 v[16:17], v21, {WSR}, s24 offen sc1")
                L.other("zo")
                L.other("zo")
            at(3, 1, zo)

        def run(j, slot):
            for f in sched.pop((j, slot), []):
                f()

        s1_sync(role)
        L.wait("q")
        stamp(a, "P0")
        a("s_barrier")
        stamp(a, "P0b")
        readK(0)
        readV(0)
        run(-1, 0)
        a("s_waitcnt lgkmcnt(2)")
        qk2b(SX, 0)
        a.nop(18)
        qk16(SX, 0)
        qk16(SX, 1)
        if role:
            L.wait("p0b")
        a("s_barrier")
        readK(1)
        run(-1, 1)
        a.nop(9)
        for j in range(32):
            X, Y = (SX, SY) if j % 2 == 0 else (SY, SX)
            e = [0]
            flip = 16 if j == 31 else 0

            def E(n):
                for _ in range(n):
                    r = X + (e[0] ^ flip)
                    a(f"v_exp_f32 {v(r)}, {v(r)}")
                    e[0] += 1

            if j >= 7:
                a(f"s_setprio {3 - ((j+1) % 4)}")
            else:
                a(f"s_setprio {j % 2}")
            nxt = j < 31
            E(2)
            if j > 0:
                pv(j - 1, Y, 3)
            E(1)
            if nxt:
                readV(j + 1)
            E(2)
            if nxt:
                a("s_waitcnt lgkmcnt(2)")
                qk2b(Y, j + 1)
            E(8)
            if not nxt:
                a("s_waitcnt lgkmcnt(0)")
            pv(j, X, 0 if nxt else 2)
            E(1)
            run(j, 0)
            E(4)
            pv(j, X, 1 if nxt else 3)
            E(3)
            if nxt:
                qk16(Y, 1 if j == 30 else 0)
            E(3)
            if nxt:
                qk16(Y, 0 if j == 30 else 1)
            E(1)
            if j + 2 < 32:
                tag = {0: "p1", 2: "p2", 4: "p3"}.get(j)
                if tag is None and (j + 2) % 4 == 0:
                    tag = ("c", (j + 2) // 4)
                if tag is not None:
                    if role:
                        L.wait(tag)
                    elif j == 22 and OPT.get("warm", 1):
                        L.wait("z")
                    if (j + 2) % 4 == 0:
                        a("s_waitcnt lgkmcnt(0)")
                    a("s_barrier")
                    stamp(a, f"B{(j+2)//4}" if (j + 2) % 4 == 0 else f"b{j}")
                    if j == 22 and not role:
                        publish_xcc(a)
                    if j == 26 and role:
                        a(f"v_mov_b32 v8, {SYNC_LDS}")
                        a("ds_write_b128 v8, v[16:19]")
                        a("s_waitcnt lgkmcnt(0)")
                readK(j + 2)
            run(j, 1)
            if j == 29:
                purity_load(a)
            E(2)
            pv(j, X, 2 if nxt else 0)
            if nxt:
                E(5)
            else:
                E(3)
                for t in range(3):
                    a(f"ds_write_b128 v12, {v(O1+4*t,4)} offset:{t*K}")
                E(2)
            assert e[0] == 32
        assert not sched, sched.keys()
        a(f"v_cmp_nle_f32 vcc, {fhex(2.0**-64)}, {v(O1+8)}")
        a(f"v_cmp_nle_f32 s[36:37], {v(O1+8)}, v25")
        pv(31, SY, 1)
        a("s_setprio 0")
        stamp(a, "attend")

    red = a.label("red")
    rb = a.label("roleb")
    a(f"s_cmp_ge_u32 {s(S_W)}, 4")
    a(f"s_cbranch_scc1 {rb}")
    main(0)
    a(f"s_branch {red}")
    a(f"{rb}:")
    main(1)
    a(f"{red}:")
    a("s_or_b32 s35, vcc_hi, s37")
    a("s_waitcnt vmcnt(0)")
    purity_check(a)
    a.nop(3)
    a(f"v_cmp_nle_f32 vcc, {fhex(2.0**-64)}, {v(O0+8)}")
    a(f"v_cmp_nle_f32 s[36:37], {v(O0+8)}, v25")
    a("s_or_b32 s35, s35, vcc_hi")
    a("s_or_b32 s35, s35, s37")
    a("v_mov_b32 v8, s35")
    a("ds_write_b32 v23, v8")
    a("s_waitcnt lgkmcnt(0)")
    stamp(a, "preRa")
    a("s_barrier")
    stamp(a, "Ra")
    a("ds_read_b32 v8, v24")
    for t in (2, 0, 1):
        a(f"ds_read_b128 {v(O1+4*t,4)}, v13 offset:{t*K}")
    epi = a.label("epi")
    slow = a.label("slow")
    a("s_waitcnt lgkmcnt(3)")
    a("v_cmp_ne_u32 vcc, 0, v8")
    a(f"s_cbranch_vccnz {slow}")
    a(f"{epi}:")
    a("s_waitcnt lgkmcnt(2)")
    for p in (4, 5):
        a(f"v_pk_add_f32 {v(O0+2*p,2)}, {v(O0+2*p,2)}, {v(O1+2*p,2)}")
    a(f"v_mov_b32 v8, {v(O0+8)}")
    a(f"v_mov_b32 v10, {v(O0+8)}")
    a("s_waitcnt lgkmcnt(0)")
    for p in range(2):
        a(f"v_pk_add_f32 {v(O0+2*p,2)}, {v(O0+2*p,2)}, {v(O1+2*p,2)}")
    a("v_permlane32_swap_b32 v8, v10")
    a("v_rcp_f32 v10, v10")
    for p in range(2, 4):
        a(f"v_pk_add_f32 {v(O0+2*p,2)}, {v(O0+2*p,2)}, {v(O1+2*p,2)}")
    for p in range(6):
        a(f"v_pk_mul_f32 {v(O0+2*p,2)}, {v(O0+2*p,2)}, v[10:11] op_sel_hi:[1,0]")
    for p in range(6):
        a(f"v_cvt_pk_bf16_f32 {v(O0+p)}, {v(O0+2*p)}, {v(O0+2*p+1)}")
    a(f"buffer_store_dwordx4 {v(O0,4)}, v20, {WSR}, s38 offen sc1")
    a("s_mov_b32 exec_hi, 0")
    a(f"buffer_store_dwordx2 {v(O0+4,2)}, v21, {WSR}, s38 offen sc1")
    a("s_mov_b64 exec, -1")

    def slow_path():
        a(f"{slow}:")
        a("s_cmp_lg_u32 s34, 0")
        a(f"s_cbranch_scc1 {epi}")
        a("s_mov_b32 s34, 1")
        a("v_mov_b32 v14, 0xff800000")
        a("v_mov_b32 v15, 0xff800000")
        a("v_lshlrev_b32 v16, 3, v0")
        a("s_mov_b32 s36, s26")
        a("s_mov_b32 s37, 32")
        lp = a.label("maxloop")
        a(f"{lp}:")
        a(f"buffer_load_dwordx2 {v(K4,2)}, v16, {WSR}, s36 offen offset:2048 sc1")
        for kt in range(2):
            a(f"buffer_load_dwordx4 {v(K16,4)}, v2, {WSR}, s36 offen offset:{kt*K} sc1")
            a("s_waitcnt vmcnt(0)")
            qk2b(SX, kt)
            a.nop(18)
            qk16(SX, 0)
            qk16(SX, 1)
            a.nop(12)
            for j in range(8):
                a(f"v_max3_f32 v14, {v(SX+2*j)}, {v(SX+2*j+1)}, v14")
                a(f"v_max3_f32 v15, {v(SX+16+2*j)}, {v(SX+16+2*j+1)}, v15")
        a("s_bitcmp1_b32 s37, 0")
        a(f"s_cselect_b32 s22, {DOM_STRIDE - 10240}, 0")
        a("s_add_u32 s36, s36, s22")
        a("s_add_u32 s36, s36, 5120")
        a("s_sub_u32 s37, s37, 1")
        a("s_cmp_lg_u32 s37, 0")
        a(f"s_cbranch_scc1 {lp}")
        for r in (14, 15):
            a(f"v_mov_b32 v16, {v(r)}")
            a.nop(2)
            a(f"v_permlane32_swap_b32 {v(r)}, v16")
            a(f"v_max_f32 {v(r)}, {v(r)}, v16")
        a("s_waitcnt lgkmcnt(0)")
        for j in range(32):
            a(f"v_sub_f32 {v(SY+j)}, 0, {v(14 + j//16)}")
            a(f"v_mov_b32 {v(O0+j)}, 0")
        a(f"v_subrev_u32 v14, {RB}, v11")
        a(f"v_subrev_u32 v15, {RB}, v4")
        a("s_lshl_b32 s22, s33, 8")
        a("v_lshlrev_b32 v16, 3, v5")
        a("v_add_u32 v16, s22, v16")
        a("s_mov_b32 s36, s26")
        a("s_mov_b32 s37, 32")
        lp = a.label("pass2")
        a(f"{lp}:")
        a(f"buffer_load_dwordx2 {v(K4,2)}, v16, {WSR}, s36 offen offset:2048 sc1")
        a(f"buffer_load_dwordx4 {v(K16,4)}, v14, {WSR}, s36 offen sc1")
        a("s_mov_b64 exec, s[40:41]")
        a(f"buffer_load_dwordx4 {v(VB,4)}, v15, {WSR}, s36 offen sc1")
        a(f"buffer_load_dwordx4 {v(VB+4,4)}, v15, {WSR}, s36 offen offset:640 sc1")
        a("s_mov_b64 exec, -1")
        a("s_waitcnt vmcnt(0)")
        qk2b(SX, 0, v(SY, 32))
        a.nop(18)
        qk16(SX, 0)
        qk16(SX, 1)
        a.nop(12)
        for j in range(32):
            a(f"v_exp_f32 {v(SX+j)}, {v(SX+j)}")
        a.nop(2)
        for u in range(4):
            pv(0, SX, u)
        a("s_bitcmp1_b32 s37, 0")
        a(f"s_cselect_b32 s22, {DOM_STRIDE - 10240}, 0")
        a("s_add_u32 s36, s36, s22")
        a("s_add_u32 s36, s36, 5120")
        a("s_sub_u32 s37, s37, 1")
        a("s_cmp_lg_u32 s37, 0")
        a(f"s_cbranch_scc1 {lp}")
        a.nop(12)
        a("s_barrier")
        for t in range(3):
            a(f"ds_write_b128 v12, {v(O1+4*t,4)} offset:{t*K}")
        a(f"s_branch {red}")
    return slow_path


class Dumper:
    def __init__(self, a, s_part):
        self.a = a
        self.s_part = s_part
        self.m0 = None

    def reset(self):
        self.m0 = None

    def __call__(self, reg, addr):
        a = self.a
        if addr + K > 49152 + 65536:
            for r in range(4):
                a(f"ds_write_b32 v12, {v(reg+r)} offset:{addr - 65536 + 256*r}")
            return
        base = 0 if addr + K <= 65536 else 49152
        if self.m0 != base:
            a(f"s_add_u32 m0, {s(self.s_part)}, {base}")
            a("s_nop 0")
            self.m0 = base
        for r in range(4):
            a(f"ds_write_addtid_b32 {v(reg+r)} offset:{addr - base + 256*r}")


def g16_addr(a, vx, vr, s_tb, s_x, s_rm):
    a(f"s_lshr_b32 s22, {s(S_I)}, 3")
    a("s_lshl_b32 s22, s22, 2")
    a(f"s_and_b32 s23, {s(S_W)}, 1")
    a("s_lshl_b32 s23, s23, 1")
    a("s_add_u32 s22, s22, s23")
    a(f"s_lshr_b32 s23, {s(S_W)}, 1")
    a(f"s_add_u32 {s(s_tb)}, s22, s23")
    a(f"s_lshr_b32 {s(s_x)}, {s(s_tb)}, 1")
    a(f"s_mul_i32 {s(s_x)}, {s(s_x)}, {40*K}")
    a(f"s_and_b32 s22, {s(s_tb)}, 1")
    a("s_lshl_b32 s22, s22, 8")
    a(f"s_add_u32 {s(s_x)}, {s(s_x)}, s22")
    a(f"s_and_b32 s23, {s(S_I)}, 7")
    a(f"s_mul_i32 s22, s23, {5*K}")
    a(f"s_add_u32 {s(s_x)}, {s(s_x)}, s22")
    a(f"s_mul_i32 s22, {s(S_X)}, {320*K}")
    a(f"s_add_u32 {s(s_x)}, {s(s_x)}, s22")
    a(f"s_lshl_b32 {s(s_rm)}, {s(S_X)}, 4")
    a(f"s_add_u32 {s(s_rm)}, {s(s_rm)}, {s(s_tb)}")
    a(f"s_mul_i32 {s(s_rm)}, {s(s_rm)}, {16*1280}")
    a("s_mul_i32 s22, s23, 160")
    a(f"s_add_u32 {s(s_rm)}, {s(s_rm)}, s22")
    a("v_and_b32 v234, 15, v0")
    a("v_lshrrev_b32 v235, 4, v0")
    a("v_lshrrev_b32 v236, 5, v0")
    a("v_lshlrev_b32 v236, 9, v236")
    a(f"v_lshl_add_u32 {v(vx)}, v234, 4, v236")
    a("v_and_b32 v236, 1, v235")
    a(f"v_lshl_add_u32 {v(vx)}, v236, 3, {v(vx)}")
    a(f"v_mul_u32_u24 {v(vr)}, 1280, v234")
    a(f"v_lshl_add_u32 {v(vr)}, v235, 3, {v(vr)}")


G_ACC = 64
G_WB = 128
G_AW = 160
G_NW = 14
G_CR = 216
RES = 112
WQ_ADDR = [c * 16 * K for c in range(6)] + [120 * K, 136 * K, 100 * K, 0]
QKV_SCR = 152 * K


class Rec:
    def __init__(self):
        self.l = []

    def __call__(self, t):
        self.l.append(t)

    def nop(self, n):
        self.l.append(f"s_nop {n-1}")


def gemm32_main(a, NT, addr, bars, swap, s_act, s_st, ld, fill, WB=G_WB, tail=None):
    UP = OPT.get("up1", 8) if NT == 3 else OPT.get("upq", 12)
    loads = []
    ops = []
    WS_ = 4 * NT

    def act_load():
        k = len(loads)
        if k % 4 == 0:
            a(f"s_add_u32 s25, {s(s_act)}, {k*K}")
        a(f"buffer_load_dwordx4 {v(G_AW + 4*(k % G_NW), 4)}, v2, {XSR}, s25 offen offset:{(k % 4)*K} {ld}")
        loads.append(k)
        ops.append(k)

    lds = []

    def wread(k, t):
        off = addr[k // 4] + ((k % 4) * NT + t) * K
        a(f"ds_read_b128 {v(WB + WS_*(k & 1) + 4*t, 4)}, {v(2 + off // 65536)} offset:{off % 65536}")
        lds.append((k, t))

    for k in range(UP):
        if k in (0, 2, 4, 7):
            a(f"s_setprio {3 - (0, 2, 4, 7).index(k)}")
        act_load()
    a("s_setprio 0")
    a(f"buffer_load_dwordx4 v[8:11], v7, {WSR}, {s(s_st)} offen {ld}")
    a(f"buffer_load_dwordx4 v[12:15], v7, {WSR}, {s(s_st)} offen offset:16 {ld}")
    ops += ["s", "s"]
    assert 0 in bars
    a("s_barrier")
    for t in range(NT):
        wread(0, t)
    fill = list(fill)
    if OPT.get("nofill", 0):
        post = fill
        fill = []
    per = -(-len(fill) // (NT * (37 - UP)))
    for k in range(40):
        last = (k == 39)
        bar = (k % 4 == 3) and not last and ((k + 1) // 4 in bars)
        for t in range(NT):
            nl = min(15, len(lds) - 1 - lds.index((k, t)))
            if t == 0:
                a(f"s_waitcnt vmcnt({len(ops)-1-ops.index(k)}) lgkmcnt({nl})")
            else:
                a(f"s_waitcnt lgkmcnt({nl})")
            A_ = v(WB + WS_ * (k & 1) + 4 * t, 4)
            B_ = v(G_AW + 4 * (k % G_NW), 4)
            if swap:
                A_, B_ = B_, A_
            D_ = v(G_ACC + 16 * t, 16)
            a(f"v_mfma_f32_32x32x16_bf16 {D_}, {A_}, {B_}, {D_ if k else 0}")
            if not last:
                if bar and t == 0:
                    a("s_barrier")
                wread(k + 1, t)
            n = len(loads)
            rp = OPT.get("ramp32", 0)
            if n < 40 and ((t == NT - 1 and n - k <= G_NW) or (rp and t == 0 and n - k < G_NW and k % rp == 0)):
                act_load()
            if k >= UP or (fill and fill[0].startswith("ds_read") and k >= 1):
                for _ in range(per if k >= UP else 1):
                    if fill:
                        x = fill.pop(0)
                        a(x)
                        if x.startswith("ds_"):
                            lds.append("f")
            if last and t == 0 and tail:
                tail()
            if t == 0 and k % 4 == 0:
                stamp(a, f"g{NT}k{k}")
    assert not fill
    if OPT.get("nofill", 0):
        for x in post:
            a(x)
            if x.startswith("ds_"):
                a("s_waitcnt lgkmcnt(0)")


def g32_common(a, X, STAT):
    a(f"s_lshl_b32 s29, {s(S_DOM)}, 2")
    a(f"s_add_u32 s29, s29, {s(S_W)}")
    a("v_lshlrev_b32 v2, 4, v0")
    a("v_and_b32 v5, 31, v0")
    a("v_lshrrev_b32 v6, 5, v0")
    if X is None:
        return
    a("s_and_b32 s28, s29, 7")
    a(f"s_mul_i32 s30, s29, {40*K}")
    a("v_add_u32 v3, 0x10000, v2")
    a("v_add_u32 v4, 0x20000, v2")
    a("v_lshlrev_b32 v7, 6, v5")
    a("v_lshl_add_u32 v7, v6, 5, v7")
    a("s_lshl_b32 s31, s28, 11")
    a(f"s_add_u32 s31, s31, {s(S_SCR)}")
    a(f"s_add_u32 s31, s31, {STAT}")


MLP1_BARS = {0, 3, 6}
QKV_BARS = set(range(10))
MLP2_BARS = {0, 2, 4, 6, 8, 10}


def mlp1_compute(a):
    g32_common(a, 0, R_ST)
    a(f"s_and_b32 s27, {s(S_I)}, 15")
    a("v_lshlrev_b32 v16, 4, v6")
    a(f"v_add_u32 v16, {C1_LDS}, v16")
    CSR = [20 + 4 * (i % 6) for i in range(12)]
    BR = [216 + 4 * i for i in range(10)] + [152, 156]
    BIAS2 = 52
    a("v_lshrrev_b32 v62, 4, v0")
    a("v_lshlrev_b32 v62, 3, v62")
    a(f"s_and_b32 s33, {s(S_I)}, 7")
    a("s_mul_i32 s33, s33, 160")
    a("v_lshrrev_b32 v17, 4, v5")
    a(f"v_mul_u32_u24 v17, {48*K}, v17")
    a("v_and_b32 v18, 15, v5")
    a("v_lshl_add_u32 v17, v18, 4, v17")
    a("v_lshl_add_u32 v17, v6, 8, v17")
    a(f"s_mul_i32 s34, {s(S_W)}, {2*48*K}")
    a(f"s_mul_i32 s35, s27, {3*K}")
    a("s_add_u32 s34, s34, s35")
    a(f"s_mul_i32 s35, {s(S_DOM)}, {DOM_STRIDE}")
    a("s_add_u32 s34, s34, s35")
    a(f"s_add_u32 s34, s34, {KVQ}")
    k0 = -2.0 * math.sqrt(2.0 / math.pi) * math.log2(math.e)
    a(f"s_mov_b32 s36, {fhex(k0)}")
    a(f"s_mov_b32 s37, {fhex(k0)}")
    a(f"v_mov_b32 v18, {fhex(k0*0.044715)}")
    f = Rec()
    for j in range(12):
        f(f"ds_read_b128 {v(BR[j],4)}, v16 offset:{384 + (j//4)*128 + (j%4)*32}")
    for j in range(6):
        f(f"ds_read_b128 {v(CSR[j],4)}, v16 offset:{(j//4)*128 + (j%4)*32}")
    ln_stats(f, 8, True)
    f("v_mul_f32 v8, v8, v9")
    f("v_mov_b32 v10, v9")
    for j in range(12):
        for e in range(4):
            f(f"v_fma_f32 {v(BR[j]+e)}, -v8, {v(CSR[j]+e)}, {v(BR[j]+e)}")
        if j < 6:
            f(f"ds_read_b128 {v(CSR[j],4)}, v16 offset:{((j+6)//4)*128 + ((j+6)%4)*32}")

    def tail():
        for t in range(5):
            a(f"buffer_load_dwordx2 {v(BIAS2+2*t,2)}, v62, s[16:19], s33 offen offset:{t*32}")
    stamp(a, "preS3")
    wait_sync(a, 1, 28)
    stamp(a, "S3")
    gemm32_main(a, 3, W1_ADDR, MLP1_BARS, False, 30, 31, LD, f.l, tail=tail)
    stamp(a, "preE1")
    a("s_barrier")
    stamp(a, "E1")
    a.nop(8)
    TS = [20, 28, 36]
    stages = []
    for g in range(6):
        r = G_ACC + 8 * g
        T = TS[g % 3]
        A_, B_, C_ = [], [], []
        for p in range(4):
            b = BR[2 * g + p // 2] + 2 * (p % 2)
            A_.append(f"v_pk_fma_f32 {v(r+2*p,2)}, {v(r+2*p,2)}, v[10:11], {v(b,2)} op_sel_hi:[1,0,1]")
        for p in range(4):
            A_.append(f"v_pk_mul_f32 {v(T+2*p,2)}, {v(r+2*p,2)}, {v(r+2*p,2)}")
        for p in range(4):
            A_.append(f"v_pk_fma_f32 {v(T+2*p,2)}, {v(T+2*p,2)}, v[18:19], s[36:37] op_sel_hi:[1,0,1]")
        for p in range(4):
            A_.append(f"v_pk_mul_f32 {v(T+2*p,2)}, {v(T+2*p,2)}, {v(r+2*p,2)}")
        for e in range(8):
            A_.append(f"v_exp_f32 {v(T+e)}, {v(T+e)}")
        for p in range(4):
            B_.append(f"v_pk_add_f32 {v(T+2*p,2)}, {v(T+2*p,2)}, 1.0 op_sel_hi:[1,0]")
        for e in range(8):
            B_.append(f"v_rcp_f32 {v(T+e)}, {v(T+e)}")
        for p in range(4):
            C_.append(f"v_pk_mul_f32 {v(r+2*p,2)}, {v(r+2*p,2)}, {v(T+2*p,2)}")
        for p in range(4):
            C_.append(f"v_cvt_pk_bf16_f32 {v(r+p)}, {v(r+2*p)}, {v(r+2*p+1)}")
        C_.append(f"buffer_store_dwordx4 {v(r,4)}, v17, {WSR}, s34 offen offset:{(g//2)*K + (g%2)*512} {'sc1' if g < OPT.get('hsc1', 6) else ''}")
        stages.append((A_, B_, C_))
    for g in range(6):
        for part in stages[g]:
            for x in part:
                a(x)


def qkv_compute(a, X, STAT, addr, bars, sync, ld, fin, first=False, st=""):
    g32_common(a, X, STAT)
    CL = K1_CS if first else CQ_LDS
    a(f"s_lshr_b32 s33, {s(S_W)}, 1")
    a(f"s_mul_i32 s32, {s(S_DOM)}, {DOM_STRIDE}")
    a(f"s_add_u32 s32, s32, {KVQ}")
    a("s_and_b32 s34, s29, 1")
    vpath = a.label("vpath")
    a("s_cmp_ge_u32 s27, 11")
    a(f"s_cbranch_scc1 {vpath}")
    if first:
        k1_prologue(a, True)
    CR = [216 + 4 * i for i in range(10)] + [48, 52, 56, 60, 24]
    if first:
        CR = [188 + 4 * i for i in range(15)]
    a("v_lshlrev_b32 v16, 4, v6")
    a(f"v_add_u32 v16, {CL}, v16")
    crd = [f"ds_read_b128 {v(CR[i],4)}, v16 offset:{(i//4)*128 + (i%4)*32}" for i in range(15)]
    a("v_and_b32 v17, 0x13, v5")
    a("v_bfe_u32 v18, v5, 2, 1")
    a("v_lshl_add_u32 v17, v18, 3, v17")
    a("v_bfe_u32 v18, v5, 3, 1")
    a("v_lshl_add_u32 v17, v18, 2, v17")
    a("v_lshlrev_b32 v32, 4, v17")
    a("v_lshl_add_u32 v32, v6, 9, v32")
    a("v_lshlrev_b32 v17, 3, v17")
    a("s_mul_i32 s22, s33, 5120")
    a("s_add_u32 s22, s22, s32")
    a(f"s_sub_u32 s22, s22, {32*10240}")
    a("s_lshl_b32 s23, s34, 10")
    a("s_add_u32 s35, s22, s23")
    a("s_lshl_b32 s23, s34, 8")
    a("s_add_u32 s36, s22, s23")
    a("s_add_u32 s36, s36, 2048")
    a(f"s_mul_i32 s37, {s(S_W)}, 1280")
    a("s_add_u32 s37, s37, s32")
    a(f"s_add_u32 s37, s37, {R_Q}")
    a("s_add_u32 s38, s37, 1024")
    SA, SB, SC = [39, 42, 45], [41, 44, 47], [33, 34, 48]
    for g in range(3):
        a("s_mul_i32 s22, s27, 6")
        a(f"s_add_u32 s22, s22, {2*g}")
        a("s_movk_i32 s23, 5120")
        a("s_cmp_ge_u32 s22, 32")
        a("s_cselect_b32 s23, 10240, s23")
        a(f"s_cselect_b32 {s(SA[g])}, s35, s37")
        a(f"s_cselect_b32 {s(SB[g])}, s36, s38")
        a(f"s_cselect_b32 {s(SC[g])}, 1.0, {fhex(QSCALE)}")
        a("s_mul_i32 s24, s22, s23")
        a("s_cmp_ge_u32 s22, 64")
        a("s_cselect_b32 s24, 0x80000000, s24")
        a(f"s_add_u32 {s(SA[g])}, {s(SA[g])}, s24")
        a(f"s_add_u32 {s(SA[g]+1)}, {s(SA[g])}, s23")
        a(f"s_add_u32 {s(SB[g])}, {s(SB[g])}, s24")
        a(f"v_mad_u32_u24 {v(33+g)}, v6, s23, v17")

    def pr(i):
        return i // 4 if i < 12 else i - 12
    f = Rec()
    ln_stats(f, 8, False)
    for g in range(3):
        f(f"v_mul_f32 {v(36+2*g)}, {s(SC[g])}, v9")
        f(f"v_mul_f32 {v(42+2*g)}, -v8, {v(36+2*g)}")
    for i in range(15):
        for e in range(4):
            f(f"v_mul_f32 {v(CR[i]+e)}, {v(42+2*pr(i))}, {v(CR[i]+e)}")
    if first:
        sync()
        k1_main(a, False)
        for x in crd + f.l[:-60]:
            a(x)
        a("s_waitcnt lgkmcnt(0)")
        for i in range(15):
            for p in range(2):
                a(f"v_pk_mul_f32 {v(CR[i]+2*p,2)}, {v(CR[i]+2*p,2)}, {v(42+2*pr(i),2)} op_sel_hi:[1,0]")
    else:
        sync()
        gemm32_main(a, 4, addr, bars, False, 30, 31, ld, crd + f.l)
        a.nop(8)
    stamp(a, "qkvmain")
    for i in range(15):
        r = G_ACC + 4 * i
        d = G_ACC + 8 * (i // 2) + 2 * (i % 2) if i < 12 else r
        for p in range(2):
            a(f"v_pk_fma_f32 {v(r+2*p,2)}, {v(r+2*p,2)}, {v(36+2*pr(i),2)}, {v(CR[i]+2*p,2)} op_sel_hi:[1,0,1]")
        a(f"v_cvt_pk_bf16_f32 {v(d)}, {v(r)}, {v(r+1)}")
        a(f"v_cvt_pk_bf16_f32 {v(d+1)}, {v(r+2)}, {v(r+3)}")
        if i < 12 and i % 2:
            a(f"buffer_store_dwordx4 {v(d-2,4)}, v32, {WSR}, {s(SA[i//4] + (i//2) % 2)} offen {st}")
        elif i >= 12:
            a(f"buffer_store_dwordx2 {v(d,2)}, {v(33+i-12)}, {WSR}, {s(SB[i-12])} offen {st}")
    a(f"s_branch {fin}")
    a(f"{vpath}:")
    if first:
        k1_prologue(a, False)
    CV = 40
    RR = 216
    a("v_lshlrev_b32 v16, 2, v5")
    a(f"v_add_u32 v23, {CL}, v16")
    a("s_sub_u32 s35, s27, 11")
    a("s_lshl_b32 s46, s35, 7")
    a("s_mul_i32 s42, s33, 5120")
    a("s_mul_i32 s43, s34, 1280")
    a("s_add_u32 s42, s42, s43")
    a("s_add_u32 s42, s42, s32")
    a("s_add_u32 s42, s42, 2560")
    a("s_mov_b32 s47, 52429")
    a("s_movk_i32 s36, 10240")
    a("v_mul_u32_u24 v17, 320, v6")
    for t in range(4):
        a(f"s_add_u32 s48, s46, {32*t}")
        a("v_add_u32 v20, s48, v5")
        a("v_mul_u32_u24 v21, s47, v20")
        a("v_lshrrev_b32 v21, 20, v21")
        a("v_mul_u32_u24 v22, 20, v21")
        a("v_sub_u32 v22, v20, v22")
        a("v_mul_u32_u24 v21, s36, v21")
        a("v_lshl_add_u32 v21, v22, 4, v21")
        a(f"v_add_u32 {v(32+t)}, v21, v17")
    a(f"s_lshl_b32 s49, {s(S_W)}, 8")
    a(f"s_add_u32 s49, s49, {QKV_SCR}")
    a("v_add_u32 v18, s49, v16")
    a("v_lshlrev_b32 v19, 4, v6")
    a("v_add_u32 v19, s49, v19")
    f = Rec()
    for i in range(4):
        f(f"ds_read_b32 {v(CV+2*i)}, v23 offset:{i*128}")
    ln_stats(f, 8, False)
    f("v_mul_f32 v8, -v8, v9")
    f("ds_write_b32 v18, v9")
    f("ds_write_b32 v18, v8 offset:128")
    for gq in range(4):
        f(f"ds_read_b128 {v(RR+4*gq,4)}, v19 offset:{32*gq}")
        f(f"ds_read_b128 {v(RR+16+4*gq,4)}, v19 offset:{128+32*gq}")
    sync()
    if first:
        k1_main(a, True)
        for x in f.l:
            a(x)
        a("s_waitcnt lgkmcnt(0)")
    else:
        gemm32_main(a, 4, addr, bars, True, 30, 31, ld, f.l)
        a.nop(8)
    stamp(a, "qkvmain")
    for t in range(4):
        r = G_ACC + 16 * t
        for p in range(8):
            a(f"v_pk_mul_f32 {v(r+2*p,2)}, {v(r+2*p,2)}, {v(RR+2*p,2)}")
        for p in range(8):
            a(f"v_pk_fma_f32 {v(r+2*p,2)}, {v(RR+16+2*p,2)}, {v(CV+2*t,2)}, {v(r+2*p,2)} op_sel_hi:[1,0,1]")
        for p in range(8):
            a(f"v_cvt_pk_bf16_f32 {v(r+p)}, {v(r+2*p)}, {v(r+2*p+1)}")
        a(f"buffer_store_dwordx4 {v(r,4)}, {v(32+t)}, {WSR}, s42 offen {st}")
        a(f"buffer_store_dwordx4 {v(r+4,4)}, {v(32+t)}, {WSR}, s42 offen offset:640 {st}")


def g16_compute(a, mlp2, fin):
    KS = 48 if mlp2 else 20
    STO = R_ST
    CB = 20 * K
    RED = 100 * K if mlp2 else 128 * K
    ACC, WB, AW, NW = 16, 56, 128, (13 if mlp2 else 10)
    RF = 232 if mlp2 else 96
    RS = RES if mlp2 else RESL
    UP = OPT.get("up2", 6) if mlp2 else OPT.get("upo", 6)
    g16_addr(a, 7, 15, 34, 35, 42)
    a(f"s_and_b32 s27, {s(S_I)}, 7")
    a(f"s_lshr_b32 s30, {s(S_W)}, 1")
    a("s_xor_b32 s31, s34, 1")
    a("s_lshl_b32 s22, s30, 10")
    if mlp2:
        a(f"s_mul_i32 s23, {s(S_DOM)}, {DOM_STRIDE}")
        a("s_add_u32 s22, s22, s23")
        a(f"s_and_b32 s23, {s(S_DOM)}, 1")
        a(f"s_mul_i32 s23, s23, {8*48*K}")
        a(f"s_add_u32 s22, s22, {KVQ}")
        a("s_sub_u32 s22, s22, s23")
    else:
        a(f"s_add_u32 s22, s22, {s(S_SCR)}")
    a(f"s_mul_i32 s32, s34, {KS*K}")
    a("s_add_u32 s32, s32, s22")
    a(f"s_mul_i32 s33, s31, {KS*K}")
    a("s_add_u32 s33, s33, s22")
    a(f"s_mul_i32 s38, s30, {5*K}")
    a("v_add_u32 v12, s38, v2")
    a("v_add_u32 v13, 0x10000, v12")
    a("v_add_u32 v14, 0x20000, v12")
    a(f"s_mul_i32 s39, {s(S_W)}, 5120")
    a(f"s_add_u32 s39, s39, {RED}")
    a("v_add_u32 v3, s39, v2")
    a(f"s_xor_b32 s40, {s(S_W)}, 2")
    a("s_mul_i32 s40, s40, 5120")
    a(f"s_add_u32 s40, s40, {RED}")
    a("v_add_u32 v4, s40, v2")
    a("s_add_u32 s37, s35, 4096")
    a("s_lshl_b32 s43, s34, 10")
    a("s_lshl_b32 s44, s27, 3")
    a("s_add_u32 s43, s43, s44")
    a(f"s_add_u32 s43, s43, {s(S_SCR)}")
    a(f"s_add_u32 s43, s43, {STO}")
    a("s_lshr_b32 s45, s34, 1")
    a("s_lshl_b32 s46, s27, 1")
    a("s_add_u32 s46, s46, s30")
    a("v_lshlrev_b32 v1, 6, v234")
    a("v_and_b32 v236, 1, v235")
    a("v_mul_u32_u24 v5, 1016, v236")
    a("v_add_u32 v5, v5, v7")
    if not mlp2:
        a("v_lshlrev_b32 v6, 8, v235")
        a("v_lshl_add_u32 v6, v234, 3, v6")
    else:
        a("v_mul_u32_u24 v6, 24, v236")
        a("v_add_u32 v6, v6, v15")
    if mlp2:
        a("s_waitcnt vmcnt(6)")
    for jx in range(10):
        a(f"v_lshlrev_b32 {v(RF+2*jx)}, 16, {v(RS+jx)}")
        a(f"v_and_b32 {v(RF+2*jx+1)}, 0xffff0000, {v(RS+jx)}")
        if mlp2:
            a(f"v_lshlrev_b32 v10, 16, {v(52+jx)}")
            a(f"v_and_b32 v11, 0xffff0000, {v(52+jx)}")
            a(f"v_pk_add_f32 {v(RF+2*jx,2)}, {v(RF+2*jx,2)}, v[10:11]")
    if mlp2:
        wait_sync(a, 2, 45)
        stamp(a, "S4")
    else:
        stamp(a, "preS2")
        wait_global(a)
        stamp(a, "S2")
    nk = KS // 2
    loads = []
    ops = []

    def act_load():
        n = len(loads)
        i, tt = n // 2, n % 2
        if i % 2 == 0:
            a(f"s_add_u32 {s(24+tt)}, {s(32+tt)}, {i*2048}")
        r = AW + 8 * (i % NW) + 4 * tt
        if not mlp2 and i >= 8:
            for e in range(2):
                a(f"buffer_load_dwordx2 {v(r+2*e, 2)}, v6, {WSR}, {s(24+tt)} offen offset:{(i % 2)*2048 + e*128} {LD}")
            ops.append((i, tt, 0))
        else:
            a(f"buffer_load_dwordx4 {v(r, 4)}, v2, {WSR}, {s(24+tt)} offen offset:{(i % 2)*2048} {LD}")
        ops.append((i, tt))
        loads.append((i, tt))

    def wread(i, t):
        c = i // 2
        off = (c % 7) * CB + (i % 2) * 10240 + t * K
        a(f"ds_read_b128 {v(WB + 20*(i & 1) + 4*t, 4)}, {v(12 + off // 65536)} offset:{off % 65536}")

    for n in range(2 * UP):
        if n in (0, 2, 4, 8):
            a(f"s_setprio {3 - (0, 2, 4, 8).index(n)}")
        act_load()
    a("s_setprio 0")
    if mlp2:
        a("s_barrier")
    for t in range(5):
        wread(0, t)
    a("v_mov_b32 v8, 0")
    a("v_mov_b32 v9, 0")
    a("v_mov_b32 v11, 0x3f803f80")
    for i in range(nk):
        last = (i == nk - 1)
        bar = mlp2 and (i % 2 == 1) and not last and ((i + 1) // 2 in MLP2_BARS)
        order = [(t, tt) for t in range(5) for tt in range(2)]
        if last:
            order = [(t, 1) for t in range(5)] + [(t, 0) for t in range(5)]
        seen_t, seen_tt = set(), set()
        for t, tt in order:
            w = []
            if tt not in seen_tt:
                after = len(ops) - 1 - ops.index((i, tt))
                w.append(f"vmcnt({min(after,63)})")
                seen_tt.add(tt)
            if t not in seen_t:
                w.append(f"lgkmcnt({4 if not last else 4-t})")
                seen_t.add(t)
            if w:
                a("s_waitcnt " + " ".join(w))
            D_ = v(ACC + 20 * tt + 4 * t, 4)
            C_ = D_ if i else (v(RF + 4 * t, 4) if tt == 0 else "0")
            a(f"v_mfma_f32_16x16x32_bf16 {D_}, {v(WB + 20*(i & 1) + 4*t, 4)}, {v(AW + 8*(i % NW) + 4*tt, 4)}, {C_}")
            if not last and tt == 1:
                if bar and t == 0:
                    stamp(a, f"m2p{(i+1)//2}")
                    a("s_barrier")
                    stamp(a, f"m2b{(i+1)//2}")
                wread(i + 1, t)
                extra = (t == 4 and i % 2 == 0 and OPT.get("ramp", 0))
                if (t in (1, 3) or extra) and len(loads) < 2 * nk and len(loads) // 2 - i < NW:
                    act_load()
    stamp(a, "m2main" if mlp2 else "womain")
    for t in range(5):
        a(f"ds_write_b128 v3, {v(ACC+20+4*t,4)} offset:{t*K}")
    a("s_waitcnt lgkmcnt(0)")
    stamp(a, "preRm" if mlp2 else "preRw")
    a("s_barrier")
    stamp(a, "Rm" if mlp2 else "Rw")
    for t in range(5):
        a(f"ds_read_b128 {v(WB+4*t,4)}, v4 offset:{t*K}")
    lastl = a.label("lastl")
    if mlp2:
        a(f"s_cmp_lg_u32 {s(S_L)}, 0")
        a(f"s_cbranch_scc1 {lastl}")

    def fin_tile(t):
        r = ACC + 4 * t
        a(f"s_waitcnt lgkmcnt({4-t})")
        for p in range(2):
            a(f"v_pk_add_f32 {v(r+2*p,2)}, {v(r+2*p,2)}, {v(WB+4*t+2*p,2)}")
        a(f"v_cvt_pk_bf16_f32 {v(RES+2*t)}, {v(r)}, {v(r+1)}")
        a(f"v_cvt_pk_bf16_f32 {v(RES+2*t+1)}, {v(r+2)}, {v(r+3)}")

    SW = WB + 20

    def widen(p):
        r = RES + 4 * p
        a(f"v_pk_mov_b32 {v(SW+4*p,2)}, {v(r,2)}, {v(r,2)} op_sel:[0,1]")
        a(f"v_pk_mov_b32 {v(SW+4*p+2,2)}, {v(r+2,2)}, {v(r+2,2)} op_sel:[0,1]")
        a.nop(2)
        a(f"v_permlane16_swap_b32 {v(SW+4*p)}, {v(SW+4*p+2)}")
        a(f"v_permlane16_swap_b32 {v(SW+4*p+1)}, {v(SW+4*p+3)}")

    xs = 'sc1' if OPT.get('xsc1', 0) else ''
    for t in range(5):
        fin_tile(t)
        if t % 2:
            widen(t // 2)
            a(f"buffer_store_dwordx4 {v(SW+4*(t//2),4)}, v5, {XSR}, s35 offen offset:{(t-1)*K} {xs}")
        if t == 4:
            a(f"buffer_store_dwordx2 {v(RES+2*t,2)}, v7, {XSR}, s37 offen {xs}")
    for jx in range(10):
        a(f"v_dot2_f32_bf16 v8, {v(RES+jx)}, v11, v8")
        a(f"v_dot2_f32_bf16 v9, {v(RES+jx)}, {v(RES+jx)}, v9")
    a.nop(2)
    a("v_mov_b32 v10, v8")
    a("v_mov_b32 v11, v9")
    a.nop(1)
    a("v_permlane16_swap_b32 v8, v10")
    a("v_permlane16_swap_b32 v9, v11")
    a("v_pk_add_f32 v[8:9], v[8:9], v[10:11]")
    a("v_pk_mov_b32 v[10:11], v[8:9], v[8:9] op_sel:[0,1]")
    a.nop(2)
    a("v_permlane32_swap_b32 v8, v10")
    a("v_permlane32_swap_b32 v9, v11")
    a("v_pk_add_f32 v[8:9], v[8:9], v[10:11]")
    a("s_mov_b64 exec, 0xffff")
    a(f"buffer_store_dwordx2 v[8:9], v1, {WSR}, s43 offen {ST}")
    a("s_mov_b64 exec, -1")

    def last_layer():
        a(f"{lastl}:")
        for t in range(5):
            fin_tile(t)
            if t % 2:
                widen(t // 2)
                a(f"buffer_store_dwordx4 {v(SW+4*(t//2),4)}, v6, s[12:15], s42 offen offset:{(t-1)*32}")
            if t == 4:
                a(f"buffer_store_dwordx2 {v(RES+2*t,2)}, v15, s[12:15], s42 offen offset:{t*32}")
        a(f"s_branch {fin}")
    return last_layer


def helper_chain(a, fin):
    def w2reg(k):
        return 16 + 4 * ((k + 1) % 60)
    WQR = 20
    a(f"s_and_b32 s29, {s(S_W)}, 3")
    a("s_mul_i32 s30, s29, 5120")
    a(f"s_and_b32 s31, {s(S_I)}, 7")
    a(f"s_mul_i32 s31, s31, {240*K}")
    a("s_add_u32 s31, s31, s30")
    a("s_mul_i32 s32, s29, 3072")
    a("s_lshl_b32 s33, s29, 12")
    a(f"s_and_b32 s34, {s(S_I)}, 15")
    a(f"s_mov_b32 s35, {s(S_L)}")
    a(f"s_mul_i32 s34, s34, {160*K}")
    a("s_add_u32 s34, s34, s33")
    a("s_lshl_b32 s22, s35, 31")
    a("s_or_b32 s38, s34, s22")
    a("v_lshlrev_b32 v12, 2, v0")
    a("v_add_u32 v12, s30, v12")
    a("v_add_u32 v12, 0x10000, v12")
    a("v_lshlrev_b32 v15, 7, v0")
    L = Loader(a)
    n2 = [0]
    nq = [0]

    def w2(n, depth):
        for _ in range(n):
            k = n2[0]
            if k >= 60:
                return
            a(f"s_add_u32 s24, s31, {W2T + (k//5)*20*K + (k % 5)*K}")
            a(f"buffer_load_dwordx4 {v(w2reg(k),4)}, v2, {WSR}, s24 offen")
            L.other(("w2", k))
            if depth:
                a(f"s_waitcnt vmcnt({depth-1})")
            n2[0] += 1

    def wq(n):
        for _ in range(n):
            k = nq[0]
            if k >= 4 * NQS:
                return
            a(f"s_add_u32 s24, s38, {WQT + (k//4)*16*K + (k % 4)*K}")
            a(f"buffer_load_dwordx4 {v(WQR+4*k,4)}, v2, {WSR}, s24 offen")
            L.other(("wq", k))
            nq[0] += 1

    th, tx, ty = [], [], []
    a(f"s_lshl_b32 s39, {s(S_L)}, 31")
    tq = touch_items(a, L, WQT, 2560 * K, 39, OPT.get("tql", 15), 15, 40, vd=14)

    def run(spec):
        for tok in spec.split():
            body, _, n = tok.partition("*")
            for _ in range(int(n or 1)):
                for ch in body:
                    if ch == "w":
                        w2(1, 0)
                    elif ch == "q":
                        wq(1)
                    elif ch in "hxyt":
                        lst = {"h": th, "x": tx, "y": ty, "t": tq}[ch]
                        if lst:
                            lst.pop(0)()
                    elif ch == "B":
                        lab = a.label("nowb")
                        a(f"s_and_b32 s22, {s(S_I)}, 15")
                        a("s_lshl_b32 s22, s22, 2")
                        a("s_add_u32 s22, s22, s29")
                        a("s_cmp_lg_u32 s22, 63")
                        a(f"s_cbranch_scc1 {lab}")
                        a("buffer_wbl2 sc1")
                        a(f"{lab}:")
                    else:
                        a(f"s_waitcnt vmcnt({ch})")

    run(SCHED["a"])
    stamp(a, "preRw")
    a("s_barrier")
    stamp(a, "Rw")
    run(SCHED["r"])
    assert n2[0] <= 35
    D = Dumper(a, 32)
    for k in range(24):
        D(STG + 4 * k, W1_ADDR[2 + k // 3] + (k % 3) * K)
    a("s_waitcnt lgkmcnt(0)")
    run(SCHED["b"])
    stamp(a, "preS3")
    a("s_barrier")
    stamp(a, "S3")
    run(SCHED["c"])
    gd = a.label("gdone")
    gp = a.label("gpoll")
    a("s_cmp_lg_u32 s29, 0")
    a(f"s_cbranch_scc1 {gd}")
    a("s_mov_b32 s23, 200000")
    a("v_lshlrev_b32 v9, 8, v0")
    a("s_mov_b32 exec_hi, 0")
    a(f"{gp}:")
    a(f"buffer_load_dword v10, v9, {WSR}, {s(S_CNT)} offen sc1")
    a("s_sub_u32 s23, s23, 1")
    a(f"s_cbranch_scc1 {gd}")
    a("s_waitcnt vmcnt(0)")
    a(f"v_cmp_gt_u32 vcc, {32 // NSUB}, v10")
    a(f"s_cbranch_vccnz {gp}")
    a(f"{gd}:")
    a("s_mov_b64 exec, -1")
    a("s_barrier")
    run(SCHED["c3"])
    a("s_barrier")
    run(SCHED["c6"])
    assert n2[0] >= 35
    stamp(a, "preE1")
    a("s_barrier")
    stamp(a, "E1")
    D = Dumper(a, 30)

    def dump2(c):
        L.wait(("w2", 5 * c + 4))
        for jj in range(5):
            D(w2reg(5 * c + jj), (c % 7) * 20 * K + jj * K)

    for c in range(7):
        run(SCHED["e"])
        dump2(c)
    a("s_waitcnt lgkmcnt(0)")
    run(SCHED["f"])
    stamp(a, "sig4")
    a("s_barrier")
    stamp(a, "S4")
    run(SCHED["g0"])
    w2(60, 0)
    a(f"s_setprio {OPT.get('hprio', 0)}")
    for b, (k0, k1) in ((2, (35, 40)), (4, (40, 47)), (6, (47, 54)), (8, (54, 60)), (10, (60, 60))):
        stamp(a, f"m2p{b}")
        a("s_barrier")
        stamp(a, f"m2b{b}")
        if k1 > k0:
            L.wait(("w2", k1 - 1))
        for k in range(k0, k1):
            D(w2reg(k), ((k // 5) % 7) * 20 * K + (k % 5) * K)
        run(SCHED[f"g{b}"])
        a("s_waitcnt lgkmcnt(0)")
    a("s_setprio 0")
    wq(24)
    a("s_barrier")
    a("s_cmp_lg_u32 s35, 0")
    a(f"s_cbranch_scc1 {fin}")
    a("s_waitcnt vmcnt(0)")
    D = Dumper(a, 33)
    for k in range(4 * NQS):
        D(WQR + 4 * k, WQ_ADDR[k // 4] + (k % 4) * K)
    a("s_waitcnt lgkmcnt(0)")
    a("s_barrier")
    L = Loader(a)

    def dq(c):
        if NQS <= c < 10:
            L.dma(("wq", c), 4, WQ_ADDR[c], 34, WQT + c * 16 * K, 33)

    def wt(c):
        if c >= NQS:
            L.wait(("wq", c))
    LEAD = NQS
    for c in range(10):
        if c:
            wt(c)
            a("s_barrier")
        dq(c + LEAD)
    if not OPT.get("kvsc1", 1):
        lab = a.label("noinv")
        a("s_cmp_lg_u32 s29, 3")
        a(f"s_cbranch_scc1 {lab}")
        a("buffer_inv sc1")
        a("s_waitcnt vmcnt(0)")
        a(f"{lab}:")


def roles(a):
    a(f"s_and_b32 {s(S_X)}, s2, 7")
    a(f"s_lshr_b32 {s(S_I)}, s2, 3")
    a(f"s_lshr_b32 s22, {s(S_I)}, 4")
    a(f"s_lshl_b32 {s(S_DOM)}, {s(S_X)}, 1")
    a(f"s_add_u32 {s(S_DOM)}, {s(S_DOM)}, s22")


def prof_dump(a, kidx):
    if not gen1.PROFILE:
        return
    a("s_memrealtime s[98:99]")
    a("s_memtime s[92:93]")
    a("s_waitcnt lgkmcnt(0)")
    a("v_mov_b32 v9, 0")
    for i in range(16):
        a(f"v_writelane_b32 v9, s{60+2*i}, {i}")
    a("v_writelane_b32 v9, s92, 16")
    a("v_writelane_b32 v9, s96, 17")
    a("v_writelane_b32 v9, s98, 18")
    a("v_writelane_b32 v9, s94, 19")
    a("s_lshl_b32 s22, s2, 3")
    a(f"s_add_u32 s22, s22, {s(S_W)}")
    a("s_lshl_b32 s22, s22, 7")
    a(f"s_add_u32 s22, s22, {PROF + kidx*256*8*128}")
    a("v_lshlrev_b32 v8, 2, v0")
    a("s_mov_b32 exec_hi, 0")
    a(f"buffer_store_dword v9, v8, {WSR}, s22 offen")
    a("s_mov_b64 exec, -1")
    a("s_mov_b32 s96, s98")
    for i in range(14):
        a(f"s_mov_b32 s{60+2*i}, 0")


def gen_chain(a):
    a(".globl chain_kernel")
    a(".p2align 8")
    a(".type chain_kernel,@function")
    a("chain_kernel:")
    stamp(a, "cstart")
    a(f"s_mov_b32 {s(S_L)}, 0")
    name = "chain"
    if LEAK:
        a("s_memrealtime s[80:81]")
    if gen1.PROFILE:
        a("s_memrealtime s[96:97]")
        a("s_memtime s[94:95]")
        for i in range(16):
            a(f"s_mov_b32 s{60+2*i}, 0")
    a("s_cmp_ge_u32 s2, 256")
    a(f"s_cbranch_scc1 L_end_{name}")
    gen1.load_srd(a, S_WS, 10, WS_END)
    gen1.load_srd(a, 8, 0, 2621440)
    gen1.load_srd(a, 12, 8, 2621440)
    gen1.load_srd(a, 16, 7, 1280)
    gen1.load_srd(a, S_DBG, 9, 256)
    gen1.load_srd(a, 88, 5, 3072)
    a("v_lshrrev_b32 v1, 6, v0")
    a("v_and_b32 v0, 63, v0")
    a(f"v_readfirstlane_b32 {s(S_W)}, v1")
    roles(a)
    a(f"s_mov_b32 {s(S_CNT)}, {CNT}")
    a(f"s_mul_i32 {s(S_SCR)}, {s(S_X)}, {SCR_STRIDE}")
    a(f"s_add_u32 {s(S_SCR)}, {s(S_SCR)}, {SCR}")
    a("L_layer:")
    slow_path = att_phase(a)
    stamp(a, "ostored")
    signal_global(a, 7)
    stamp(a, "sig2")
    fin = a.label("fin")
    comp = a.label("comp")
    a(f"s_cmp_lt_u32 {s(S_W)}, 4")
    a(f"s_cbranch_scc1 {comp}")
    helper_chain(a, fin)
    a("s_branch L_next")
    slow_path()
    a(f"{comp}:")
    g16_compute(a, False, fin)
    stamp(a, "xstored")
    a(f"s_mul_i32 s32, {s(S_W)}, 3072")
    D = Dumper(a, 32)
    for k in range(6):
        D(STA + 4 * k, W1_ADDR[k // 3] + (k % 3) * K)
    signal(a, 1, 11, 45, 46)
    mlp1_compute(a)
    stamp(a, "hstored")
    signal(a, 2, 15, 28, 27)
    last_layer = g16_compute(a, True, fin)
    a(f"s_and_b32 s27, {s(S_I)}, 15")
    a("s_mov_b32 s26, s45")
    a("s_mov_b32 s101, s46")

    def sync():
        signal(a, 3, 19, 26, 101)
        wait_sync(a, 3, 28)
        stamp(a, "S5")
    qkv_compute(a, 0, R_ST, WQ_ADDR, QKV_BARS, sync, LD, "L_next", st="sc1")
    a("L_next:")
    stamp(a, "lend")
    if LEAK:
        a("s_waitcnt lgkmcnt(0)")
        a("s_sub_u32 s82, s86, s84")
    stamp(a, "cstart")
    prof_dump(a, 1)
    a(f"s_mov_b32 {s(S_L)}, 1")
    a(f"s_mov_b32 {s(S_CNT)}, {CNT + 0x8000}")
    a("s_branch L_layer")
    last_layer()
    for c in COLD:
        c()
    a(f"{fin}:")
    if LEAK:
        stamp(a, "lend")
        lab = a.label("noleak")
        a(f"s_or_b32 s22, s2, {s(S_W)}")
        a(f"s_cbranch_scc1 {lab}")
        a("s_waitcnt vmcnt(0) lgkmcnt(0)")
        if LEAK["l"] == 1:
            a("s_sub_u32 s82, s86, s84")
        if LEAK["l"] == 2:
            a("v_mov_b32 v1, 0")
            a(f"s_mov_b32 s22, {PROF}")
            a(f"buffer_load_dwordx2 v[4:5], v1, {WSR}, s22 offen")
            a("s_waitcnt vmcnt(0)")
            a("v_readfirstlane_b32 s82, v5")
        if LEAK["l"] == 3:
            a("v_mov_b32 v1, 0")
            a(f"s_mov_b32 s22, {PROF}")
            a(f"buffer_load_dwordx2 v[4:5], v1, {WSR}, s22 offen")
            a("s_waitcnt vmcnt(0)")
            a("v_readfirstlane_b32 s82, v4")
            a("s_sub_u32 s82, s80, s82")
        if LEAK.get("cyc"):
            a("s_lshr_b32 s82, s82, 3")
        else:
            a("s_lshl_b32 s82, s82, 2")
        a("s_min_u32 s82, s82, 30000")
        a("s_memrealtime s[84:85]")
        a("s_waitcnt lgkmcnt(0)")
        lp = a.label("leak")
        a(f"{lp}:")
        a("s_memrealtime s[86:87]")
        a("s_waitcnt lgkmcnt(0)")
        a("s_sub_u32 s22, s86, s84")
        a("s_cmp_lt_u32 s22, s82")
        a(f"s_cbranch_scc1 {lp}")
        a(f"{lab}:")
    gen1.kernel_tail(a, name, 2)


K1_NW = 20
K1_PC = 128 * K
K1_CS = 148 * K
K1_TA = 48


def tr_coef(qk, t):
    if not qk:
        return 64 * t, 32, 8
    return (80 * t, 40, 8) if t < 3 else (32, 160, 40)


def tr_addr32(a, dst, qk=None, sc=None):
    a("v_bfe_u32 v24, v0, 2, 2")
    a("v_lshrrev_b32 v25, 5, v0")
    a("v_lshl_add_u32 v25, v25, 3, v24")
    a("v_lshlrev_b32 v25, 8, v25")
    a("v_lshlrev_b32 v24, 6, v24")
    a("v_bfe_u32 v26, v0, 4, 1")
    a("v_and_b32 v27, 3, v0")
    for t in range(4 if sc is None else 1):
        A_, B_, C_ = tr_coef(qk, t) if sc is None else (s(sc), s(sc + 1), s(sc + 2))
        a(f"v_mul_u32_u24 v28, {B_}, v26")
        a(f"v_add_u32 v28, {A_}, v28")
        a(f"v_mul_u32_u24 {v(dst+2*t)}, {C_}, v27")
        a(f"v_add_u32 v28, v28, {v(dst+2*t)}")
        a("v_and_b32 v28, 0xff, v28")
        a("v_xor_b32 v28, v28, v24")
        a(f"v_add_u32 {v(dst+2*t)}, v28, v25")


K1_XB = 64 * K
K1_STX = 149 * K


def x_addr(a, dst, s_tile):
    a("v_and_b32 v24, 31, v0")
    a("v_bfe_u32 v25, v0, 1, 3")
    a("v_lshrrev_b32 v26, 5, v0")
    a("v_xor_b32 v25, v25, v26")
    a("v_lshlrev_b32 v24, 7, v24")
    a(f"s_lshl_b32 s22, {s(s_tile)}, 12")
    a(f"s_add_u32 s22, s22, {K1_XB}")
    a("v_add_u32 v24, s22, v24")
    for ks in range(4):
        a(f"v_xor_b32 v26, {2*ks}, v25")
        a(f"v_lshl_add_u32 {v(dst+ks)}, v26, 4, v24")


def k1_dma_setup(a):
    a("v_lshrrev_b32 v3, 4, v0")
    a("v_lshlrev_b32 v4, 2, v3")
    a("v_and_b32 v60, 15, v0")
    a("v_xor_b32 v60, v60, v4")
    a("v_lshlrev_b32 v60, 4, v60")
    a("v_mul_u32_u24 v4, 3840, v3")
    a("v_add_u32 v60, v60, v4")
    a("v_lshrrev_b32 v5, 3, v0")
    a("v_and_b32 v61, 7, v0")
    a("v_xor_b32 v61, v61, v3")
    a("v_mul_u32_u24 v5, 1280, v5")
    a("v_xor_b32 v62, 4, v61")
    a("v_lshl_add_u32 v61, v61, 4, v5")
    a("v_lshl_add_u32 v62, v62, 4, v5")
    a(f"s_mul_i32 s54, s29, {16*3840}")
    a("s_mul_i32 s22, s27, 240")
    a("s_lshl_b32 s23, s27, 8")
    a("s_sub_u32 s23, s23, 256")
    a("s_cmp_ge_u32 s27, 11")
    a("s_cselect_b32 s22, s23, s22")
    a("s_add_u32 s54, s54, s22")
    a(f"s_lshl_b32 s55, {s(S_DOM)}, 2")
    a("s_add_u32 s55, s55, s29")
    a(f"s_mul_i32 s55, s55, {32*1280}")
    a("s_lshl_b32 s56, s29, 12")


def k1_dma(a, L, c, js=range(4)):
    for j in js:
        a(f"s_add_u32 m0, s56, {(c % 4)*16*K + j*K}")
        a(f"s_add_u32 s24, s54, {(64*c + 4*j)*3840}")
        a("buffer_load_dwordx4 v60, s[12:15], s24 offen lds")
        a(f"s_add_u32 m0, s56, {K1_XB + (c % 4)*16*K + j*K}")
        a(f"s_add_u32 s24, s55, {128*c + 8*j*1280}")
        a(f"buffer_load_dwordx4 {v(61 + (j & 1))}, s[8:11], s24 offen lds")
        L.other(("w", c))
        L.other(("w", c))


def k1_touch(a):
    a("s_lshl_b32 s22, s2, 2")
    a("s_add_u32 s22, s22, s29")
    a("v_lshlrev_b32 v63, 7, v0")
    a("s_mul_i32 s23, s22, 2560")
    a("s_mul_i32 s22, s22, 2432")
    if OPT.get("k1tm", 3) & 1:
        a("s_mov_b64 exec, 0xfffff")
        a("buffer_load_dword v254, v63, s[8:11], s23 offen")
    if OPT.get("k1tm", 3) & 2:
        a("s_mov_b64 exec, 0x7ffff")
        a("buffer_load_dword v254, v63, s[12:15], s22 offen")
    a("s_mov_b64 exec, -1")


K1_SA = 176
K1_X16 = 168


def k1_prologue(a, qk):
    tr_addr32(a, K1_TA, qk=qk)
    x_addr(a, 56, S_W)
    a("v_and_b32 v24, 15, v0")
    a("v_lshrrev_b32 v25, 4, v0")
    a("v_bfe_u32 v60, v0, 1, 3")
    a("v_xor_b32 v60, v60, v25")
    a("v_xor_b32 v61, 4, v60")
    a("v_lshlrev_b32 v24, 7, v24")
    a("v_add_u32 v24, s22, v24")
    a("v_lshl_add_u32 v60, v60, 4, v24")
    a("v_lshl_add_u32 v61, v61, 4, v24")
    for r in range(4):
        a(f"v_mov_b32 {v(192+r)}, 0x3f803f80")
    for r in range(10, 16):
        a(f"v_mov_b32 {v(r)}, 0")


def k1_main(a, swap):
    lds = []

    def wread(k, t):
        sl = ((k // 4) % 4) * 16 * K
        off = sl + (k % 4) * 4096
        r = G_WB + 16 * (k & 1) + 4 * t
        if t == 0:
            a(f"ds_read_b128 {v(G_AW + 4*(k & 1), 4)}, {v(56 + k % 4)} offset:{sl}")
            lds.append("x")
        a(f"ds_read_b64_tr_b16 {v(r,2)}, {v(K1_TA + 2*t)} offset:{off}")
        a(f"ds_read_b64_tr_b16 {v(r+2,2)}, {v(K1_TA + 2*t)} offset:{off + K}")
        lds.extend(["h", (k, t)])
        if t == 1:
            a(f"ds_read_b128 {v(K1_X16 + 4*(k & 1), 4)}, {v(60 + ((k >> 1) & 1))} offset:{sl + (k & 1)*2048}")
            lds.append("y")

    if OPT.get("k1touch", 0) == 1:
        a(f"s_mov_b32 s28, s29")
        a(f"s_mov_b32 s29, {s(S_W)}")
        k1_touch(a)
        a(f"s_mov_b32 s29, s28")
    stamp(a, "k1p0")
    a("s_barrier")
    stamp(a, "k1b0")
    for t in range(4):
        wread(0, t)
    for k in range(40):
        last = (k == 39)
        for t in range(4):
            a(f"s_waitcnt lgkmcnt({len(lds) - 1 - lds.index((k, t))})")
            A_ = v(G_WB + 16 * (k & 1) + 4 * t, 4)
            B_ = v(G_AW + 4 * (k & 1), 4)
            if swap:
                A_, B_ = B_, A_
            D_ = v(G_ACC + 16 * t, 16)
            a(f"v_mfma_f32_32x32x16_bf16 {D_}, {A_}, {B_}, {D_ if k else 0}")
            if not last:
                if k % 4 == 3 and t == 0:
                    a("s_barrier")
                    stamp(a, f"k1b{(k+1)//4}")
                wread(k + 1, t)
            if t >= 2:
                X_ = v(K1_X16 + 4 * (k & 1), 4)
                D2 = v(K1_SA + 8 * (t - 2) + 4 * (k & 1), 4)
                a(f"v_mfma_f32_16x16x32_bf16 {D2}, {'v[192:195]' if t == 2 else X_}, {X_}, {D2 if k > 1 else 0}")
    a("v_and_b32 v25, 3, v0")
    a("v_and_b32 v26, 15, v0")
    a(f"s_lshl_b32 s22, {s(S_W)}, 8")
    a(f"s_add_u32 s22, s22, {K1_STX}")
    a("v_lshlrev_b32 v26, 3, v26")
    a("v_add_u32 v26, s22, v26")
    a("v_lshlrev_b32 v24, 3, v5")
    a("v_add_u32 v24, s22, v24")
    G0, G1 = K1_SA + 8, K1_SA + 12
    for r in range(1, 4):
        a(f"v_cmp_eq_u32 vcc, {r}, v25")
        a.nop(2)
        a(f"v_cndmask_b32 {v(G0)}, {v(G0)}, {v(G0+r)}, vcc")
        a(f"v_cndmask_b32 {v(G1)}, {v(G1)}, {v(G1+r)}, vcc")
    a(f"v_mov_b32 {v(K1_SA+1)}, {v(G0)}")
    a(f"v_mov_b32 {v(K1_SA+5)}, {v(G1)}")
    a("s_mov_b32 exec_lo, 0x00f0000f")
    a("s_mov_b32 exec_hi, 0xf0000f00")
    a(f"ds_write_b64 v26, {v(K1_SA,2)}")
    a(f"ds_write_b64 v26, {v(K1_SA+4,2)} offset:128")
    a("s_mov_b64 exec, -1")
    a("ds_read_b64 v[8:9], v24")
    a("s_barrier")
    a("s_waitcnt lgkmcnt(0)")
    a("v_mul_f32 v8, 0.5, v8")
    a("v_mul_f32 v9, 0.5, v9")


def code_prefetch(a, idx_sgpr, va=24, vd=255):
    here = a.label("pc")
    a("s_getpc_b64 s[22:23]")
    a(f"{here}:")
    a(f"s_sub_u32 s22, s22, {here}-L_text_begin")
    a("s_subb_u32 s23, s23, 0")
    a(f"s_mul_i32 s24, {s(idx_sgpr)}, 128*((L_text_end-L_text_begin+4095)/4096)")
    a(f"v_lshlrev_b32 {v(va)}, 7, v0")
    a(f"v_add_u32 {v(va)}, s24, {v(va)}")
    a(f"v_min_u32 {v(va)}, L_text_end-L_text_begin-4, {v(va)}")
    a("v_cmp_gt_u32 vcc, (L_text_end-L_text_begin+4095)/4096, v0")
    a("s_and_saveexec_b64 s[24:25], vcc")
    a(f"global_load_dword {v(vd)}, {v(va)}, s[22:23]")
    a("s_mov_b64 exec, -1")


def t_layout(a, r):
    a(f"v_permlane32_swap_b32 {v(r)}, {v(r+2)}")
    a(f"v_permlane32_swap_b32 {v(r+1)}, {v(r+3)}")
    a.nop(2)
    a(f"v_permlane16_swap_b32 {v(r)}, {v(r+1)}")
    a(f"v_permlane16_swap_b32 {v(r+2)}, {v(r+3)}")


def piece_load(a, L):
    w1, w2, hi, go, dn = (a.label(x) for x in ("pw1", "pw2", "phi", "pgo", "pdn"))
    a("s_cmp_ge_u32 s34, 544")
    a(f"s_cbranch_scc1 {w1}")
    a("s_lshr_b32 s25, s34, 3")
    a("s_cmp_ge_u32 s34, 160")
    a(f"s_cbranch_scc1 {w2}")
    a("s_mov_b64 s[40:41], s[16:17]")
    a("s_mov_b32 s42, 819200")
    a("s_cmp_ge_u32 s34, 128")
    a(f"s_cbranch_scc1 {hi}")
    a("s_mul_i32 s25, s25, 40")
    a("s_mov_b32 s44, 4")
    a("s_mov_b32 s45, 0")
    a("s_mov_b32 s46, 0")
    a(f"s_branch {go}")
    a(f"{hi}:")
    a("s_mul_i32 s25, s25, 160")
    a(f"s_sub_u32 s25, s25, {16*160 - 16}")
    a("s_mov_b32 s44, 64")
    a("s_mov_b32 s45, 36")
    a("s_mov_b32 s46, 12")
    a(f"s_branch {go}")
    a(f"{w2}:")
    a("s_sub_u32 s25, s25, 20")
    a("s_lshl_b32 s25, s25, 5")
    a("s_mov_b32 s44, 0")
    a("s_mov_b32 s45, 0")
    a("s_mov_b32 s46, 0")
    a(f"{go}:")
    a("s_mul_i32 s25, s25, 1280")
    a("s_and_b32 s26, s34, 7")
    a("s_mul_i32 s26, s26, 160")
    a("s_add_u32 s25, s25, s26")
    for j in range(5):
        a(f"v_add_u32 v20, {64*j}, v0")
        a("v_mul_u32_u24 v21, 205, v20")
        a("v_lshrrev_b32 v21, 11, v21")
        a("v_mul_u32_u24 v22, 10, v21")
        a("v_sub_u32 v20, v20, v22")
        a("v_lshrrev_b32 v22, 4, v21")
        a("v_mad_u32_u24 v23, v22, s44, v21")
        a("v_bfe_u32 v22, v21, 2, 1")
        a("v_mad_u32_u24 v23, v22, s45, v23")
        a("v_bfe_u32 v22, v21, 3, 1")
        a("v_mad_u32_u24 v23, v22, s46, v23")
        a("v_mul_u32_u24 v23, 1280, v23")
        a(f"s_add_u32 m0, s35, {j*K}")
        a("v_lshl_add_u32 v20, v20, 4, v23")
        a("buffer_load_dwordx4 v20, s[40:43], s25 offen lds")
    a(f"s_branch {dn}")
    a(f"{w1}:")
    a("s_sub_u32 s23, s34, 544")
    a(f"s_mov_b32 s24, {magic(24)}")
    a("s_mul_hi_u32 s25, s23, s24")
    a("s_mul_i32 s26, s25, 24")
    a("s_sub_u32 s26, s23, s26")
    a(f"s_mul_i32 s25, s25, {32*3072}")
    a("s_lshl_b32 s26, s26, 7")
    a("s_add_u32 s25, s25, s26")
    a("v_lshrrev_b32 v20, 3, v0")
    a("v_and_b32 v21, 7, v0")
    a("v_mul_u32_u24 v20, 3072, v20")
    a("v_lshl_add_u32 v20, v21, 4, v20")
    for j in range(4):
        a(f"s_add_u32 m0, s35, {j*K}")
        a(f"s_add_u32 s24, s25, {8*j*3072}")
        a("buffer_load_dwordx4 v20, s[36:39], s24 offen lds")
    a("buffer_load_dword v21, v20, s[36:39], s24 offen")
    a(f"{dn}:")
    for _ in range(5):
        L.other("pc")


def PS():
    return "sc1" if OPT.get("k1sc1", 0) & 2 else ""


def piece_finish(a):
    w1, dn = a.label("fw1"), a.label("fdn")
    a("v_lshrrev_b32 v21, 4, v0")
    a("v_bfe_u32 v22, v0, 2, 2")
    a("v_and_b32 v23, 3, v0")
    a("v_lshrrev_b32 v24, 1, v21")
    a("v_and_b32 v25, 1, v21")
    a("s_cmp_ge_u32 s34, 544")
    a(f"s_cbranch_scc1 {w1}")
    a("v_lshlrev_b32 v24, 4, v24")
    a("v_lshl_add_u32 v24, v25, 2, v24")
    a("v_add_u32 v24, v24, v22")
    a("v_mul_u32_u24 v24, 160, v24")
    a("v_lshl_add_u32 v24, v23, 3, v24")
    a("v_add_u32 v24, s35, v24")
    for t in range(5):
        a(f"ds_read_b64_tr_b16 {v(28+4*t,2)}, v24 offset:{32*t}")
        a(f"ds_read_b64_tr_b16 {v(30+4*t,2)}, v24 offset:{32*t + 8*160}")
    a("s_lshr_b32 s25, s34, 3")
    a("s_and_b32 s26, s34, 7")
    wo = a.label("fwo")
    a("s_cmp_lt_u32 s34, 160")
    a(f"s_cbranch_scc1 {wo}")
    a("s_mul_i32 s26, s26, 48")
    a("s_add_u32 s25, s25, s26")
    a("s_mul_i32 s25, s25, 5120")
    a(f"s_add_u32 s25, s25, {W2T - 20*5120}")
    a("s_add_u32 s26, s25, 4096")
    for t in range(5):
        a(f"s_waitcnt lgkmcnt({2*(4-t)})")
        t_layout(a, 28 + 4 * t)
        a(f"buffer_store_dwordx4 {v(28+4*t,4)}, v11, {WSR}, {'s25' if t < 4 else 's26'} offen offset:{(t % 4)*K} {PS()}")
    a(f"s_branch {dn}")
    a(f"{wo}:")
    a("s_mul_i32 s26, s26, 20")
    a("s_add_u32 s25, s25, s26")
    a("s_mul_i32 s25, s25, 5120")
    a(f"s_add_u32 s25, s25, {WOT}")
    a("s_add_u32 s26, s25, 4096")
    for t in range(5):
        a(f"s_waitcnt lgkmcnt({2*(4-t)})")
        a(f"buffer_store_dwordx4 {v(28+4*t,4)}, v10, {WSR}, {'s25' if t < 4 else 's26'} offen offset:{(t % 4)*K} {PS()}")
    a(f"s_branch {dn}")
    a(f"{w1}:")
    a("v_lshl_add_u32 v24, v24, 3, v22")
    a("v_lshlrev_b32 v24, 7, v24")
    a("v_lshl_add_u32 v24, v23, 3, v24")
    a("v_lshl_add_u32 v24, v25, 5, v24")
    a("v_add_u32 v24, s35, v24")
    frs = [(ks * 16 * 128 + ft * 64, ft, ks) for ft in range(2) for ks in range(2)]
    for i, (off, ft, ks) in enumerate(frs):
        a(f"ds_read_b64_tr_b16 {v(28+4*i,2)}, v24 offset:{off}")
        a(f"ds_read_b64_tr_b16 {v(30+4*i,2)}, v24 offset:{off+512}")
    a("s_sub_u32 s23, s34, 544")
    a(f"s_mov_b32 s24, {magic(24)}")
    a("s_mul_hi_u32 s25, s23, s24")
    a("s_mul_i32 s26, s25, 24")
    a("s_sub_u32 s26, s23, s26")
    for i, (off, ft, ks) in enumerate(frs):
        a("s_lshl_b32 s23, s26, 1")
        a(f"s_add_u32 s23, s23, {ft}")
        a("s_lshl_b32 s28, s25, 1")
        a(f"s_add_u32 s28, s28, {ks}")
        a(f"s_mov_b32 s24, {magic(3)}")
        a("s_mul_hi_u32 s24, s23, s24")
        a("s_mul_i32 s22, s24, 3")
        a("s_sub_u32 s23, s23, s22")
        a("s_mul_i32 s24, s24, 40")
        a("s_add_u32 s24, s24, s28")
        a("s_mul_i32 s24, s24, 3")
        a("s_add_u32 s24, s24, s23")
        a("s_lshl_b32 s24, s24, 10")
        a(f"s_add_u32 s24, s24, {W1T}")
        a(f"s_waitcnt lgkmcnt({2*(3-i)})")
        a(f"v_mfma_f32_16x16x32_bf16 {v(48+4*ft,4)}, {v(28+4*i,4)}, v[116:119], {v(48+4*ft,4) if ks else 0}")
        t_layout(a, 28 + 4 * i)
        a(f"buffer_store_dwordx4 {v(28+4*i,4)}, v11, {WSR}, s24 offen {PS()}")
    a("s_mul_i32 s25, s25, 6144")
    a("s_lshl_b32 s26, s26, 8")
    a("s_add_u32 s25, s25, s26")
    a(f"s_add_u32 s25, s25, {CP1}")
    a("s_mov_b32 exec_lo, 0x00030003")
    a("s_mov_b32 exec_hi, 0x00030003")
    a(f"buffer_store_dwordx4 v[48:51], v3, {WSR}, s25 offen {PS()}")
    a(f"buffer_store_dwordx4 v[52:55], v3, {WSR}, s25 offen offset:128 {PS()}")
    a("s_mov_b64 exec, -1")
    a(f"{dn}:")


def k1_helper(a):
    L = Loader(a)
    k1_dma_setup(a)
    a("s_waitcnt lgkmcnt(0)")
    NF = OPT.get("k1first", 2)
    for c in range(NF):
        k1_dma(a, L, c)
    a("s_setprio 2")
    a("s_lshl_b32 s44, s29, 6")
    a("s_mov_b32 s45, 32")
    a("s_mov_b32 s46, 8")
    lab = a.label("vco")
    a("s_cmp_ge_u32 s27, 11")
    a(f"s_cbranch_scc1 {lab}")
    a("s_mul_i32 s44, s29, 80")
    a("s_cmp_eq_u32 s29, 3")
    a("s_cselect_b32 s44, 32, s44")
    a("s_cselect_b32 s45, 160, 40")
    a("s_cselect_b32 s46, 40, 8")
    a(f"{lab}:")
    tr_addr32(a, 8, sc=44)
    a("v_and_b32 v5, 15, v0")
    a("v_lshrrev_b32 v6, 4, v0")
    a("v_xor_b32 v18, v5, v6")
    a("v_and_b32 v18, 1, v18")
    a("v_cmp_eq_u32 vcc, 0, v18")
    a("v_mov_b32 v12, 0x3f803f80")
    a("v_lshlrev_b32 v10, 4, v0")
    for r in range(4):
        a(f"v_cndmask_b32 {v(116+r)}, 0, v12, vcc")
    a("v_lshl_add_u32 v11, v5, 2, v6")
    a("v_lshlrev_b32 v11, 4, v11")
    a(f"s_mul_i32 s32, s27, {160*K}")
    a("s_lshl_b32 s22, s29, 10")
    a("s_add_u32 s32, s32, s22")
    a(f"s_add_u32 s32, s32, {WQT}")
    a("s_lshl_b32 s34, s2, 2")
    a("s_add_u32 s34, s34, s29")
    a("s_mul_i32 s35, s29, 5120")
    a(f"s_add_u32 s35, s35, {K1_PC}")
    a(f"s_lshr_b32 s30, {s(S_DOM)}, 2")
    a(f"s_and_b32 s31, {s(S_DOM)}, 3")
    a("s_lshl_b32 s22, s31, 12")
    a("s_add_u32 s32, s32, s22")
    a("v_add_u32 v9, s22, v8")
    for c in range(10):
        L.wait(("w", c))
        a("s_barrier")
        off = (c % 4) * 16 * K
        for ks in range(4):
            a(f"ds_read_b64_tr_b16 {v(80+4*ks,2)}, v8 offset:{off + ks*4096}")
            a(f"ds_read_b64_tr_b16 {v(82+4*ks,2)}, v8 offset:{off + ks*4096 + K}")
        nost = a.label("nost")
        a(f"s_cmp_lg_u32 s30, {c % 4}")
        a(f"s_cbranch_scc1 {nost}")
        a(f"ds_read_b64_tr_b16 v[96:97], v9 offset:{off}")
        a(f"ds_read_b64_tr_b16 v[98:99], v9 offset:{off + K}")
        a(f"s_add_u32 s24, s32, {c*16*K}")
        a("s_waitcnt lgkmcnt(0)")
        if c < NQS:
            t_layout(a, 96)
        a(f"buffer_store_dwordx4 v[96:99], {'v11' if c < NQS else 'v10'}, {WSR}, s24 offen")
        a(f"{nost}:")
        cn = c + 2 if (c + 2 >= NF and c + 2 < 10) else None
        if c == 0 and NF == 3:
            cn = 3
        if c == 1 and NF == 3:
            cn = None
        for ks in range(4):
            if cn is not None:
                k1_dma(a, L, cn, [ks])
            a(f"s_waitcnt lgkmcnt({6-2*ks})")
            a(f"v_mfma_f32_16x16x32_bf16 v[56:59], {v(80+4*ks,4)}, v[116:119], {'v[56:59]' if c or ks else 0}")
        if c == OPT.get("k1pc", 8):
            piece_load(a, L)
    a("v_lshlrev_b32 v3, 6, v5")
    a("v_lshl_add_u32 v3, v6, 4, v3")
    a("s_lshl_b32 s23, s29, 7")
    a(f"s_add_u32 s22, s23, {K1_CS}")
    a("v_add_u32 v4, s22, v3")
    a("s_lshl_b32 s22, s27, 9")
    a("s_add_u32 s22, s22, s23")
    a(f"s_add_u32 s22, s22, {CSQ}")
    a("s_mov_b32 exec_lo, 0x00030003")
    a("s_mov_b32 exec_hi, 0x00030003")
    a("ds_write_b128 v4, v[56:59]")
    lab = a.label("nocs")
    a(f"s_cmp_lg_u32 {s(S_DOM)}, 0")
    a(f"s_cbranch_scc1 {lab}")
    a(f"buffer_store_dwordx4 v[56:59], v3, {WSR}, s22 offen")
    a(f"{lab}:")
    a("s_mov_b64 exec, -1")
    a("s_waitcnt lgkmcnt(0)")
    pf = OPT.get("k1pf", 0)
    if pf:
        a("s_waitcnt vmcnt(0)")
        piece_finish(a)
    stamp(a, "hb")
    a("s_barrier")
    if not pf:
        a("s_waitcnt vmcnt(0)")
        stamp(a, "hl")
        piece_finish(a)
    stamp(a, "hs")


def gen_k1(a):
    name = "first_kernel"
    gen1.kernel_head(a, name, 256, [(8, 0, 2621440), (12, 1, 2457600), (16, 2, 819200), (36, 4, 1966080),
                                    (40, 6, 1966080)])
    a.lines.pop()
    if LEAK:
        a("s_memrealtime s[80:81]")
        stamp(a, "k1start")
    lab = a.label("nocp")
    a(f"s_cmp_lg_u32 {s(S_W)}, 3")
    a(f"s_cbranch_scc1 {lab}")
    a("s_lshr_b32 s26, s2, 3")
    if OPT.get("cpf", 1):
        code_prefetch(a, 26)
    a(f"{lab}:")
    a("s_and_b32 s22, s2, 7")
    a("s_lshr_b32 s23, s2, 3")
    a("s_lshr_b32 s24, s22, 1")
    a("s_lshl_b32 s24, s24, 2")
    a("s_lshr_b32 s25, s23, 3")
    a(f"s_add_u32 {s(S_DOM)}, s24, s25")
    a("s_and_b32 s27, s22, 1")
    a("s_lshl_b32 s27, s27, 3")
    a("s_and_b32 s23, s23, 7")
    a("s_add_u32 s27, s27, s23")
    a(f"s_and_b32 s29, {s(S_W)}, 3")
    fin = a.label("fin")
    comp = a.label("comp")
    a(f"s_cmp_lt_u32 {s(S_W)}, 4")
    a(f"s_cbranch_scc1 {comp}")
    k1_helper(a)
    a(f"s_branch {fin}")
    a(f"{comp}:")
    a("s_waitcnt lgkmcnt(0)")
    if OPT.get("k1touch", 0) == 2:
        k1_touch(a)
    a("v_mov_b32 v4, 0")
    a("s_lshl_b32 s22, s2, 2")
    a("s_add_u32 s22, s22, s29")
    a("s_lshl_b32 s22, s22, 6")
    a(f"s_add_u32 s22, s22, {CNT}")
    a(f"buffer_store_byte v4, v0, {WSR}, s22 offen")
    qkv_compute(a, None, None, None, None, lambda: None, "", fin, first=True, st="sc1" if OPT.get("k1sc1", 0) & 1 else "")
    a(f"{fin}:")
    if LEAK:
        stamp(a, "k1end")
        lab = a.label("noleak")
        a(f"s_or_b32 s22, s2, {s(S_W)}")
        a(f"s_cbranch_scc1 {lab}")
        a("s_waitcnt lgkmcnt(0)")
        a("s_sub_u32 s82, s86, s84")
        a("v_mov_b32 v4, s80")
        a("v_mov_b32 v5, s82")
        a("v_mov_b32 v1, 0")
        a(f"s_mov_b32 s22, {PROF}")
        a(f"buffer_store_dwordx2 v[4:5], v1, {WSR}, s22 offen")
        a(f"{lab}:")
    gen1.kernel_tail(a, name, 0)
    return name


def generate(profile=False):
    gen1.PROFILE = profile
    a = Asm()
    a("L_text_begin:")
    names = [gen_k1(a)]
    gen_chain(a)
    a("L_text_end:")
    names += ["chain_kernel"]
    body = a.text()
    probs = check_hazards(body)
    hdr = open("cdna_kernels/" + NAME + ".s.ref").read().split("; Override launch")[0]
    out = hdr
    for n in names:
        lds = {"pre": 32768}.get(n[:3], 163840)
        out += f"; @launch kernel={n} grid=(256,1,1) block=(512,1,1) lds={lds}\n"
    out += '.amdgcn_target "amdgcn-amd-amdhsa--gfx950"\n.text\n' + body
    out += '.section .rodata,"a"\n'
    for n in names:
        out += ".p2align 6\n" + gen1.descriptor(n)
    return out, probs


if __name__ == "__main__":
    prof = "--profile" in sys.argv
    for arg in sys.argv[2:]:
        if arg.startswith("leak="):
            x = arg[5:].split(",")
            LEAK.update(a=x[0], b=x[1], l=int(x[2]), cyc=(len(x) > 3))
        elif arg.startswith("st="):
            ACTIVE.extend(arg[3:].split(","))
        elif arg.startswith("s."):
            kk, vv = arg[2:].split("=")
            SCHED[kk] = vv.replace(",", " ")
        elif "=" in arg:
            OPT[arg.split("=")[0]] = int(arg.split("=")[1])
    if not ACTIVE:
        ACTIVE.extend("P0,B1,B4,B7,preRa,S2,womain,sig3,S3,E1,sig4,S4,m2main,sig5,S5,qkvmain".split(","))
    out, probs = generate(prof)
    for p in probs[:50]:
        print("HAZARD", p)
    print("hazards:", len(probs))
    path = sys.argv[1]
    if prof:
        out = "; stamps: " + ",".join(ACTIVE) + "\n" + out
    open(path, "w").write(out)
    print("wrote", path, len(out), "bytes")
```
